```python
import torch

def _softmax(x, axis=-1):
    return torch.softmax(x, dim=axis)
def _gelu(x):
    return torch.nn.functional.gelu(x, approximate="tanh")
def _silu(x):
    return torch.nn.functional.silu(x)
def _sigmoid(x):
    return torch.sigmoid(x)
def _layernorm(x, axis=-1, eps=1e-5):
    m = x.mean(dim=axis, keepdim=True)
    v = x.var(dim=axis, keepdim=True, unbiased=False)
    return (x - m) / torch.sqrt(v + eps)
def _scatter_add(tgt, idx, src, axis=0):
    return tgt.clone().index_add_(axis, idx, src)
def _segment_sum(src, seg, n):
    out = torch.zeros((n,) + src.shape[1:], dtype=src.dtype)
    return out.index_add_(0, seg, src)
def _pad(x, pw):
    flat = tuple(v for pair in reversed(pw) for v in pair)
    return torch.nn.functional.pad(x, flat)

kernel_name = 'recurrent_scan__sliding_block_cached__moe_arch_mod__prompt'

def setup_inputs():

    _w = (lambda a: (lambda t: t.to(torch.bfloat16) if t.is_floating_point() else t)(torch.as_tensor(a)))
    def _A_setup():
        B, Sq, D = 1, 2048, 512
        Hq, Hkv, Sk, Dh = 32, 32, 2048, 128
        assert Hq % Hkv == 0, (Hq, Hkv)
        return {
            "x": _w((lambda *s: torch.randn(*s, dtype=torch.bfloat16) * 0.05)(B, Sq, D)),
            "k_cache": _w((lambda *s: torch.randn(*s, dtype=torch.bfloat16) * 0.8)(B, Hkv, Sk, Dh)),
            "v_cache": _w((lambda *s: torch.randn(*s, dtype=torch.bfloat16) * 0.2)(B, Hkv, Sk, Dh)),
            "wq": _w((lambda *s: torch.randn(*s, dtype=torch.bfloat16) * 0.8)(D, Hq * Dh) * (D ** -0.5)),
            "wo": _w((lambda *s: torch.randn(*s, dtype=torch.bfloat16) * 0.2)(Hq * Dh, D) * ((Hq * Dh) ** -0.5)),
        }
    _A_in = _A_setup()

    def _B_setup():
        B, S, D, F, C = 1, 2048, 512, 1376, 2
        return {
            "x": _w((lambda *s: torch.randn(*s, dtype=torch.bfloat16) * 0.05)(B, S, D)),
            "w_r": _w((lambda *s: torch.randn(*s, dtype=torch.bfloat16) * 0.2)(D)),
            "w_gate": _w((lambda *s: torch.randn(*s, dtype=torch.bfloat16) * 0.1)(D, F)),
            "w_up": _w((lambda *s: torch.randn(*s, dtype=torch.bfloat16) * 0.1)(D, F)),
            "w_down": _w((lambda *s: torch.randn(*s, dtype=torch.bfloat16) * 0.1)(F, D)),
        }
    _B_in = _B_setup()

    return {
        "A_x": _A_in["x"],
        "A_k_cache": _A_in["k_cache"],
        "A_v_cache": _A_in["v_cache"],
        "A_wq": _A_in["wq"],
        "A_wo": _A_in["wo"],
        "B_x": _B_in["x"],
        "B_w_r": _B_in["w_r"],
        "B_w_gate": _B_in["w_gate"],
        "B_w_up": _B_in["w_up"],
        "B_w_down": _B_in["w_down"],
    }

def reference(A_x, A_k_cache, A_v_cache, A_wq, A_wo, B_x, B_w_r, B_w_gate, B_w_up, B_w_down):
    def _A_ref(x, k_cache, v_cache, wq, wo):
        B, Sq, D = x.shape
        Hq, Dh = 32, 128
        Hkv, Sk = k_cache.shape[1], k_cache.shape[2]
        W = min(4096, max(256, Sk // 4))
        rep = Hq // Hkv
        q = (lambda x, *d: x.permute(*d))((x @ wq).reshape(B, Sq, Hq, Dh), 0, 2, 1, 3)
        k = (lambda x, n, axis: torch.repeat_interleave(x, n, dim=axis))(k_cache[:, :, Sk - W:, :], rep, axis=1)
        v = (lambda x, n, axis: torch.repeat_interleave(x, n, dim=axis))(v_cache[:, :, Sk - W:, :], rep, axis=1)
        scores = torch.einsum("bhqd,bhkd->bhqk", q, k) * (Dh ** -0.5)
        p = _softmax(scores, axis=-1)
        o = torch.einsum("bhqk,bhkd->bhqd", p, v)
        return (lambda x, *d: x.permute(*d))(o, 0, 2, 1, 3).reshape(B, Sq, Hq * Dh) @ wo

    def _B_ref(x, w_r, w_gate, w_up, w_down):
        B, S, D = x.shape
        C = 2
        r = x @ w_r
        idx = torch.argsort(-r, axis=-1)[:, :C]
        idx_e = (lambda x, n, axis: torch.repeat_interleave(x, n, dim=axis))(idx.reshape(B, C, 1), D, axis=2)
        x_sel = (lambda x, i, axis: torch.take_along_dim(x, i, dim=axis))(x, idx_e, axis=1)
        g = _silu(x_sel @ w_gate)
        u = x_sel @ w_up
        y = (g * u) @ w_down
        r_sel = _sigmoid((lambda x, i, axis: torch.take_along_dim(x, i, dim=axis))(r, idx, axis=1))
        y = y * r_sel.reshape(B, C, 1)
        b_off = (torch.arange(B) * S).reshape(B, 1)
        flat_idx = (idx + b_off).reshape(B * C)
        zero = (x * 0.0).reshape(B * S, D)
        upd = _scatter_add(zero, flat_idx, y.reshape(B * C, D), axis=0)
        return x + upd.reshape(B, S, D)

    x = A_x
    xn = _layernorm(x, axis=-1)
    s = _A_ref(xn, A_k_cache, A_v_cache, A_wq, A_wo)
    g = _silu(_B_ref(xn, B_w_r, B_w_gate, B_w_up, B_w_down))
    return x + s * g
```

```python
import re

REG_RE = re.compile(r'\b([vas])\[(\d+):(\d+)\]|\b([vas])(\d+)\b|\b(vcc|exec|m0|scc)\b')

def regs_of(tok):
    out = []
    for m in REG_RE.finditer(tok):
        if m.group(1):
            out += [(m.group(1), i) for i in range(int(m.group(2)), int(m.group(3)) + 1)]
        elif m.group(4):
            out.append((m.group(4), int(m.group(5))))
        else:
            out.append((m.group(6), 0))
    return out

TRANS = ("v_exp_f32", "v_log_f32", "v_rcp_f32", "v_rsq_f32", "v_sqrt_f32", "v_sin_f32", "v_cos_f32")

class Ins:
    __slots__ = ("text", "op", "defs", "uses", "kind", "tag", "wait", "srcc", "comment")
    def __init__(self, text, tag=None):
        self.text = text; self.tag = tag; self.wait = None; self.srcc = []
        t = text.split(";")[0].strip()
        if t.endswith(":") or t.startswith("."):
            self.op = "label" if t.endswith(":") else "dir"; self.kind = "label"; self.defs = []; self.uses = []; return
        sp = t.split(None, 1)
        op = sp[0]; self.op = op
        rest = sp[1] if len(sp) > 1 else ""
        ops = [o.strip() for o in re.split(r',(?![^\[]*\])', rest)] if rest else []
        R = [regs_of(o) for o in ops]
        flat = lambda l: [x for y in l for x in y]
        d, u = [], []
        if op.startswith("v_mfma"):
            self.kind = "mfma"; d = R[0]; u = flat(R[1:]); self.srcc = R[3]
        elif op.startswith("ds_read") or op.startswith("ds_bpermute") or op.startswith("ds_swizzle") or op.startswith("ds_permute"):
            self.kind = "ds"; d = R[0]; u = flat(R[1:])
        elif op.startswith("ds_"):
            self.kind = "ds"; u = flat(R)
        elif op.startswith("buffer_load") or op.startswith("global_load"):
            self.kind = "vmem"
            if re.search(r'\blds\b', rest) or "_lds_" in op:
                u = flat(R) + [("m0", 0)]
            else:
                d = R[0]; u = flat(R[1:])
        elif op.startswith("buffer_store") or op.startswith("global_store"):
            self.kind = "vmem"; u = flat(R)
        elif op.startswith("buffer_atomic") or op.startswith("global_atomic"):
            self.kind = "vmem"; u = flat(R)
            if re.search(r'\bsc0\b', rest): d = R[0]
        elif op.startswith("buffer_inv") or op.startswith("buffer_wbl2"):
            self.kind = "vmem"
        elif op.startswith("s_load") or op.startswith("s_memtime") or op.startswith("s_memrealtime"):
            self.kind = "smem"; d = R[0]; u = flat(R[1:])
        elif op in ("s_waitcnt", "s_barrier", "s_nop", "s_endpgm", "s_sleep", "s_setprio") or op.startswith("s_branch") or op.startswith("s_cbranch"):
            self.kind = "ctl"
            if "scc" in op: u = [("scc", 0)]
            if "vcc" in op: u = [("vcc", 0)]
            if "exec" in op: u = [("exec", 0)]
        elif op.startswith("s_cmp") or op.startswith("s_bitcmp"):
            self.kind = "salu"; d = [("scc", 0)]; u = flat(R)
        elif op.startswith("s_"):
            self.kind = "salu"; d = R[0] + [("scc", 0)]; u = flat(R[1:])
            if "saveexec" in op: d = d + [("exec", 0)]; u = u + [("exec", 0)]
            if op.startswith("s_addc") or op.startswith("s_subb") or op.startswith("s_cselect"): u = u + [("scc", 0)]
            if op.startswith("s_mov") or op.startswith("s_getpc") or op.startswith("s_cselect") or op.startswith("s_mul") or op.startswith("s_getreg"): d = R[0]
        elif op.startswith("v_"):
            self.kind = "valu"
            if op.startswith("v_permlane") and "swap" in op:
                d = R[0] + R[1]; u = R[0] + R[1]
            elif op.startswith("v_add_co") or op.startswith("v_sub_co") or op.startswith("v_addc_co") or op.startswith("v_subb_co"):
                d = R[0] + R[1]; u = flat(R[2:])
            else:
                d = R[0]; u = flat(R[1:])
                if op.startswith("v_fmac") or op.startswith("v_dot2c") or op.startswith("v_writelane") or "_dpp" in op or "dpp" in rest or "row_" in rest or "quad_perm" in rest:
                    u = u + R[0]
        else:
            raise ValueError("unknown op " + text)
        self.defs = d; self.uses = u

    def is_dpp(self):
        return "_dpp" in self.op or "row_" in self.text or "quad_perm" in self.text
    def is_trans(self):
        return any(self.op.startswith(t) for t in TRANS)
    def states(self):
        if self.kind == "label": return 0
        if self.op == "s_nop": return int(self.text.split()[1], 0) + 1
        return 1
    def passes(self):
        if "16x16x32" in self.op: return 4
        if "32x32x16" in self.op: return 8
        raise ValueError(self.op)

class Wait(Ins):
    def __init__(self, vm=None, lgkm=None):
        Ins.__init__(self, "s_waitcnt vmcnt(0)")
        self.wait = (vm, lgkm)

class Kern:
    def __init__(self, name):
        self.name = name; self.ins = []; self._lab = 0
    def I(self, text, tag=None):
        if isinstance(text, Ins): self.ins.append(text); return text
        if isinstance(text, (list, tuple)):
            for t in text: self.I(t)
            return
        i = Ins(text, tag); self.ins.append(i); return i
    __call__ = I
    def label(self, base="L"):
        self._lab += 1; return f"{self.name}_{base}{self._lab}"
    def wait(self, vm=None, lgkm=None): self.ins.append(Wait(vm, lgkm))

    def resolve(self):
        vm = []; lg = []; waited = set()
        for i in self.ins:
            if i.kind in ("vmem", "ds", "smem") and i.tag is not None:
                assert i.tag not in waited, f"op tagged {i.tag} issued after a wait on that tag: {i.text}"
            if isinstance(i, Wait):
                v, l = i.wait
                if v: waited.add(v)
                if l: waited.add(l)
                parts = []
                if v is not None:
                    if v == 0: n = 0
                    else:
                        idx = [k for k, t in enumerate(vm) if t == v]
                        assert idx, f"vm tag {v} not issued before wait in {self.name}"
                        n = len(vm) - 1 - idx[-1]
                    assert n <= 63, (v, n)
                    parts.append(f"vmcnt({n})")
                if l is not None:
                    if l == 0: n = 0
                    else:
                        idx = [k for k, t in enumerate(lg) if t == l]
                        assert idx, f"lgkm tag {l} not issued"
                        n = len(lg) - 1 - idx[-1]
                    n = min(n, 15)
                    parts.append(f"lgkmcnt({n})")
                i.text = "s_waitcnt " + " ".join(parts)
            elif i.kind == "vmem": vm.append(i.tag)
            elif i.kind in ("ds", "smem"): lg.append(i.tag)

    def check(self, verbose=True):
        errs = []
        ins = self.ins
        pos = []; p = 0
        for i in ins:
            pos.append(p); p += i.states()
        lastw = {}
        lastc = {}
        laststore = {}
        pend_vm = []; pend_lg = []
        def dist(a, b):
            return pos[b] - pos[a] - ins[a].states() + (ins[a].states() - 1 if ins[a].op == "s_nop" else 0)
        for k, i in enumerate(ins):
            if i.kind == "label": continue
            if i.op == "s_waitcnt":
                m = re.search(r'vmcnt\((\d+)\)', i.text)
                if m:
                    n = int(m.group(1)); pend_vm = pend_vm[len(pend_vm) - n:] if n < len(pend_vm) else pend_vm
                    if n == 0: pend_vm = []
                m = re.search(r'lgkmcnt\((\d+)\)', i.text)
                if m:
                    n = int(m.group(1))
                    if n == 0: pend_lg = []
                    else:
                        if any(ins[j].kind == "smem" for j, _ in pend_lg): pass
                        else: pend_lg = pend_lg[len(pend_lg) - n:] if n < len(pend_lg) else pend_lg
                continue
            touched = set(i.defs) | set(i.uses)
            for (j, ds) in pend_vm + pend_lg:
                if ds & touched:
                    errs.append(f"[wait] {self.name}#{k} '{i.text}' touches pending dst of #{j} '{ins[j].text}'")
            def need(j, n, why):
                d = pos[k] - pos[j] - ins[j].states()
                if d < n: errs.append(f"[haz {why}] {self.name}#{k} '{i.text}' needs {n} states after #{j} '{ins[j].text}', has {d}")
            for r in set(i.uses):
                j = lastw.get(r)
                if j is None: continue
                w = ins[j]
                if w.kind == "valu" and r[0] in "va":
                    if i.kind == "mfma": need(j, 2, "valu->mfma")
                    if i.kind == "valu":
                        if w.is_trans() and not i.is_trans(): need(j, 1, "trans")
                        if i.op.startswith("v_permlane"): need(j, 2, "permlane")
                        if i.is_dpp(): need(j, 2, "dpp")
                        if i.op.startswith("v_readlane") or i.op.startswith("v_readfirstlane"): need(j, 1, "readlane")
                    if w.is_trans() and i.kind in ("vmem", "ds"): need(j, 1, "trans->mem")
                if w.kind == "valu" and (r[0] == "s" or r[0] == "vcc"):
                    if i.kind == "valu": need(j, 4 if i.op.startswith("v_readlane") or i.op.startswith("v_writelane") else 2, "valu sgpr->valu")
                    if i.kind == "vmem": need(j, 5, "valu sgpr->vmem")
                    if i.kind in ("salu", "ctl", "smem"): need(j, 1, "valu sgpr->salu(pad)")
                if w.kind == "salu" and r == ("m0", 0) and i.kind == "vmem": need(j, 1, "m0")
                if w.kind == "mfma":
                    ps = w.passes()
                    if i.kind == "mfma":
                        if r in i.srcc and r not in (set(i.uses) - set(i.srcc)):
                            if i.srcc == w.defs and i.passes() == ps: pass
                            else: need(j, {4: 6, 8: 10}[ps], "mfma D->C overlap")
                        else: need(j, {4: 8, 8: 12}[ps], "mfma D->AB")
                    else: need(j, {4: 8, 8: 12}[ps], "mfma D->read")
            for r in set(i.defs):
                j = lastw.get(r)
                if j is not None and ins[j].kind == "mfma" and i.kind != "mfma":
                    need(j, {4: 8, 8: 12}[ins[j].passes()], "mfma D WAW")
                if j is not None and ins[j].kind == "mfma" and i.kind == "mfma" and r not in i.srcc:
                    need(j, {4: 6, 8: 10}[ins[j].passes()], "mfma D WAW mfma")
                j = lastc.get(r)
                if j is not None and i.kind == "valu": need(j, {4: 3, 8: 7}[ins[j].passes()], "srcC WAR")
                j = laststore.get(r)
                if j is not None: need(j, 2 if i.kind == "valu" else 1, "store WAR")
            for r in i.defs: lastw[r] = k
            if i.kind == "mfma":
                for r in i.srcc: lastc[r] = k
            if i.kind == "vmem" and ("store_dwordx4" in i.op or "store_dwordx3" in i.op):
                for r in i.uses:
                    if r[0] in "va": laststore[r] = k
            if i.kind == "vmem":
                pend_vm.append((k, set(i.defs)))
                if len(pend_vm) > 63: errs.append(f"[vmcnt>63] {self.name}#{k} {i.text}")
            if i.kind in ("ds", "smem"): pend_lg.append((k, set(i.defs)))
        return errs

    def text(self):
        out = []
        for i in self.ins:
            out.append(i.text if i.kind == "label" else "  " + i.text)
        return "\n".join(out)

    def nbytes_est(self):
        return sum(0 if i.kind == "label" else (4 if i.kind in ("ctl", "salu") else 8) for i in self.ins)

def weave(k, mfmas, gaps):
    for i, m in enumerate(mfmas):
        if m is not None: k.I(m)
        g = gaps.get(i, []) if isinstance(gaps, dict) else gaps[i]
        for x in g: k.I(x)

def kernel_text(k, vgprs, accum, sgprs=96):
    n = k.name
    return (f".globl {n}\n.p2align 8\n.type {n},@function\n{n}:\n" + k.text() + "\n")

def desc_text(name, nfv, accum, sgprs=96):
    return (f".p2align 6\n.amdhsa_kernel {name}\n  .amdhsa_next_free_vgpr {nfv}\n  .amdhsa_next_free_sgpr {sgprs}\n"
            f"  .amdhsa_accum_offset {accum}\n  .amdhsa_group_segment_fixed_size 0\n  .amdhsa_kernarg_size 104\n"
            f"  .amdhsa_user_sgpr_count 2\n  .amdhsa_user_sgpr_kernarg_segment_ptr 1\n  .amdhsa_system_sgpr_workgroup_id_x 1\n"
            f"  .amdhsa_float_denorm_mode_32 3\n"
            f".end_amdhsa_kernel\n")

def fix_hazards(k, maxit=50):
    for _ in range(maxit):
        errs = [e for e in k.check() if e.startswith("[haz")]
        if not errs: return
        need = {}
        for e in errs:
            m = re.match(r"\[haz [^\]]*\] \S+?#(\d+) .* needs (\d+) states after #\d+ .*, has (-?\d+)$", e)
            idx, n, d = int(m.group(1)), int(m.group(2)), int(m.group(3))
            need[idx] = max(need.get(idx, 0), n - d)
        for idx in sorted(need, reverse=True):
            n = need[idx]
            while n > 0:
                c = min(n, 16)
                k.ins.insert(idx, Ins(f"s_nop {c-1}"))
                n -= c
    raise RuntimeError("hazard fixing did not converge")

class Sched:
    def __init__(self, k, budget=8):
        self.k = k; self.mf = []; self.vq = []; self.other = {}; self.budget = budget; self.pre = {}
    def mfma(self, text, needs=()):
        self.mf.append((text, set(needs))); return len(self.mf) - 1
    def valu(self, text, ready=-1, cost=None):
        if cost is None: cost = 8 if any(text.startswith(t) for t in TRANS) else 4
        self.vq.append((text, ready, cost)); return len(self.vq) - 1
    def at(self, gap, item):
        self.other.setdefault(gap, []).append(item)
    def before(self, idx, item):
        self.pre.setdefault(idx, []).append(item)
    def emit(self):
        k = self.k; head = 0; stats = []
        for i, (m, needs) in enumerate(self.mf):
            forced = 0
            if needs:
                mx = max(needs)
                while head <= mx:
                    assert self.vq[head][1] < i, f"valu '{self.vq[head][0]}' ready {self.vq[head][1]} but needed before mfma {i}"
                    k.I(self.vq[head][0]); forced += self.vq[head][2]; head += 1
            for x in self.pre.get(i, []): k.I(x)
            k.I(m)
            for x in self.other.get(i, []): k.I(x)
            b = self.budget
            while head < len(self.vq) and self.vq[head][1] <= i and self.vq[head][2] <= b:
                k.I(self.vq[head][0]); b -= self.vq[head][2]; head += 1
            stats.append(forced)
        rest = 0
        while head < len(self.vq):
            k.I(self.vq[head][0]); rest += self.vq[head][2]; head += 1
        extra = [g for g in self.other if g >= len(self.mf) or g < 0]
        assert not extra, extra
        return sum(stats), rest
```

```python
NAME = "recurrent_scan__sliding_block_cached__moe_arch_mod__prompt"
KA = dict(x=0, k=8, v=16, wq=24, wo=32, bx=40, wr=48, wg=56, wu=64, wd=72, out=80, dbg=88, ws=96)
SZ = dict(x=2048*512*2, k=32*2048*128*2, v=32*2048*128*2, wq=512*4096*2, wo=4096*512*2, wr=1024,
          wg=512*1376*2, wu=512*1376*2, wd=1376*512*2, out=2048*512*2, dbg=256, ws=1 << 28)
WS_XN = 1 << 20
WS_KEY = 0
WS_H = WS_KEY + 8192
WS_Y = WS_H + 8192
WS_IDX = WS_Y + 4096
WS_O = 4 << 20

def srd(k, d, plo, size):
    k(f"s_mov_b32 s{d}, s{plo}")
    k(f"s_mov_b32 s{d+1}, s{plo+1}")
    k(f"s_mov_b32 s{d+2}, {size:#x}")
    k(f"s_mov_b32 s{d+3}, 0x00020000")

def wave_sum_dpp(k, v):
    for mod in ("quad_perm:[1,0,3,2] row_mask:0xf bank_mask:0xf", "quad_perm:[2,3,0,1] row_mask:0xf bank_mask:0xf",
                "row_half_mirror row_mask:0xf bank_mask:0xf", "row_mirror row_mask:0xf bank_mask:0xf",
                "row_bcast:15 row_mask:0xa bank_mask:0xf", "row_bcast:31 row_mask:0xc bank_mask:0xf"):
        k("s_nop 1")
        k(f"v_add_f32_dpp v{v}, v{v}, v{v} {mod}")

def wave_umax_dpp(k, v):
    for mod in ("quad_perm:[1,0,3,2] row_mask:0xf bank_mask:0xf", "quad_perm:[2,3,0,1] row_mask:0xf bank_mask:0xf",
                "row_half_mirror row_mask:0xf bank_mask:0xf", "row_mirror row_mask:0xf bank_mask:0xf",
                "row_bcast:15 row_mask:0xa bank_mask:0xf", "row_bcast:31 row_mask:0xc bank_mask:0xf"):
        k("s_nop 1")
        k(f"v_max_u32_dpp v{v}, v{v}, v{v} {mod}")
```

```python
from asmlib import *
from common import *

def gen_k0(name="ln_kernel"):
    k = Kern(name)
    end = k.label("end")
    k("s_cmp_ge_u32 s2, 256"); k(f"s_cbranch_scc1 {end}")
    k(f"s_load_dwordx2 s[4:5], s[0:1], {KA['x']}")
    k(f"s_load_dwordx2 s[6:7], s[0:1], {KA['wr']}")
    k(f"s_load_dwordx2 s[8:9], s[0:1], {KA['ws']}")
    k("v_and_b32 v1, 63, v0")
    k("v_lshrrev_b32 v2, 6, v0")
    k("s_lshl_b32 s3, s2, 13")
    k("v_lshlrev_b32 v3, 4, v0")
    k("v_add_u32 v3, s3, v3")
    k("v_lshlrev_b32 v20, 4, v1")
    k("s_lshl_b32 s10, s2, 3")
    k("v_add_u32 v2, s10, v2")
    k("s_waitcnt lgkmcnt(0)")
    k("global_load_dwordx4 v[4:7], v3, s[4:5]", tag="x")
    k("global_load_dwordx4 v[8:11], v20, s[6:7]", tag="w")
    k("v_lshrrev_b32 v21, 6, v2")
    k("v_lshlrev_b32 v21, 16, v21")
    k("v_lshrrev_b32 v22, 2, v1")
    k("v_lshl_add_u32 v21, v22, 12, v21")
    k("v_bfe_u32 v22, v2, 4, 2")
    k("v_lshl_add_u32 v21, v22, 10, v21")
    k("v_and_b32 v22, 3, v1")
    k("v_lshl_add_u32 v21, v22, 8, v21")
    k("v_and_b32 v22, 15, v2")
    k("v_lshl_add_u32 v21, v22, 4, v21")
    k(f"v_add_u32 v21, {WS_XN:#x}, v21")
    k("v_lshlrev_b32 v23, 2, v2")
    k(f"v_add_u32 v23, {WS_KEY:#x}, v23")
    k("v_sub_u32 v24, 0xffff, v2")
    k.wait(vm="x")
    for i in range(4):
        k(f"v_lshlrev_b32 v{12+2*i}, 16, v{4+i}")
        k(f"v_and_b32 v{13+2*i}, 0xffff0000, v{4+i}")
    k("v_add_f32 v25, v12, v13"); k("v_add_f32 v26, v14, v15"); k("v_add_f32 v27, v16, v17"); k("v_add_f32 v28, v18, v19")
    k("v_add_f32 v25, v25, v26"); k("v_add_f32 v27, v27, v28"); k("v_add_f32 v25, v25, v27")
    wave_sum_dpp(k, 25)
    k("s_nop 0")
    k("v_readlane_b32 s12, v25, 63")
    k("s_nop 1")
    k("v_mov_b32 v26, 0x3b000000")
    k("v_mul_f32 v26, s12, v26")
    for i in range(8): k(f"v_sub_f32 v{32+i}, v{12+i}, v26")
    k("v_mul_f32 v27, v32, v32"); k("v_mul_f32 v28, v33, v33")
    for i in range(2, 8, 2):
        k(f"v_fmac_f32 v27, v{32+i}, v{32+i}"); k(f"v_fmac_f32 v28, v{33+i}, v{33+i}")
    k("v_add_f32 v27, v27, v28")
    wave_sum_dpp(k, 27)
    k("s_nop 0")
    k("v_readlane_b32 s13, v27, 63")
    k("s_nop 1")
    k("v_mov_b32 v27, 0x3b000000")
    k("v_mul_f32 v27, s13, v27")
    k("v_cvt_pk_bf16_f32 v28, v26, v27")
    k("v_lshlrev_b32 v26, 16, v28")
    k("v_and_b32 v27, 0xffff0000, v28")
    k("v_add_f32 v27, 0x3727c5ac, v27")
    k("v_cvt_pk_bf16_f32 v27, v27, v27")
    k("v_lshlrev_b32 v27, 16, v27")
    k("v_sqrt_f32 v27, v27")
    for i in range(8): k(f"v_sub_f32 v{32+i}, v{12+i}, v26")
    k("v_cvt_pk_bf16_f32 v27, v27, v27")
    k("v_lshlrev_b32 v27, 16, v27")
    k("v_rcp_f32 v27, v27")
    for i in range(4): k(f"v_cvt_pk_bf16_f32 v{40+i}, v{32+2*i}, v{33+2*i}")
    for i in range(4):
        k(f"v_lshlrev_b32 v{32+2*i}, 16, v{40+i}")
        k(f"v_and_b32 v{33+2*i}, 0xffff0000, v{40+i}")
    for i in range(8): k(f"v_mul_f32 v{32+i}, v{32+i}, v27")
    for i in range(4): k(f"v_cvt_pk_bf16_f32 v{40+i}, v{32+2*i}, v{33+2*i}")
    k("global_store_dwordx4 v21, v[40:43], s[8:9]")
    k.wait(vm="w")
    k("v_mov_b32 v25, 0")
    for i in range(4): k(f"v_dot2c_f32_bf16 v25, v{40+i}, v{8+i}")
    k("s_nop 2")
    wave_sum_dpp(k, 25)
    k("v_cvt_pk_bf16_f32 v25, v25, v25")
    k("v_bfe_i32 v26, v25, 15, 1")
    k("v_and_b32 v26, 0x7fff, v26")
    k("v_or_b32 v26, 0x8000, v26")
    k("v_xor_b32 v25, v25, v26")
    k("v_lshl_or_b32 v25, v25, 16, v24")
    k("s_mov_b32 exec_lo, 0"); k("s_mov_b32 exec_hi, 0x80000000")
    k("global_store_dword v23, v25, s[8:9]")
    k(f"{end}:")
    k("s_endpgm")
    return k, 48, 48
```

```python
from asmlib import *
from common import *
import struct

MF = "v_mfma_f32_16x16x32_bf16"
def q4(f, r): return f"{f}[{r}:{r+3}]"
def q2(f, r): return f"{f}[{r}:{r+1}]"

aW, aK, aV, oK, oV, oW, oL = 4, 8, 12, 20, 24, 26, 28
AF = 32; S = 32; P = 64; NM = 80; LS = 96; TMP = 104; ACC = 128
QF, KF, VF = 0, 64, 128
def acc(T, qb): return ACC + (T * 4 + qb) * 4
sWS, sWQ, sK, sV = 8, 12, 16, 20
sWAVE, sH, sQT, sKS, sBW, sBX, sOW, sOX, sM0W, sM0K, sBKV, sOKV, sSC, sROT, sOO = 24, 25, 26, 27, 28, 29, 30, 31, 32, 33, 34, 35, 36, 37, 38
QSCALE = struct.unpack("<I", struct.pack("<f", 1.4426950408889634 * 128 ** -0.5))[0]
LTHRESH = 0x4b800000

def gen_k1(name="attn_kernel", upfront=32, vpace=4):
    k = Kern(name)
    end = k.label("end")
    k("s_cmp_ge_u32 s2, 256"); k(f"s_cbranch_scc1 {end}")
    k(f"s_load_dwordx4 s[40:43], s[0:1], {KA['k']}")
    k(f"s_load_dwordx2 s[44:45], s[0:1], {KA['wq']}")
    k(f"s_load_dwordx2 s[46:47], s[0:1], {KA['ws']}")
    k("v_and_b32 v1, 63, v0")
    k("v_lshrrev_b32 v2, 6, v0")
    k("s_and_b32 s3, s2, 7"); k("s_lshr_b32 s4, s2, 3")
    k(f"v_readfirstlane_b32 s{sWAVE}, v2")
    k("s_lshl_b32 s3, s3, 2"); k("s_and_b32 s5, s4, 3"); k(f"s_add_u32 s{sH}, s3, s5")
    k(f"s_lshr_b32 s{sQT}, s4, 2")
    k("v_lshrrev_b32 v2, 4, v1")
    k("v_and_b32 v3, 15, v1")
    k(f"v_lshlrev_b32 v{oL}, 4, v1")
    k("v_lshlrev_b32 v29, 2, v2"); k("v_xor_b32 v29, v29, v3"); k("v_lshlrev_b32 v29, 4, v29")
    k(f"v_lshl_add_u32 v{oW}, v2, 13, v29")
    k(f"v_add_u32 v{oW+1}, {4*8192-1024}, v{oW}")
    k(f"s_lshl_b32 s{sBW}, s{sH}, 8"); k(f"s_lshl_b32 s3, s{sWAVE}, 16"); k(f"s_add_u32 s{sBW}, s{sBW}, s3")
    k(f"s_lshl_b32 s3, s{sQT}, 2"); k(f"s_add_u32 s3, s3, s{sWAVE}")
    k(f"s_lshl_b32 s{sBX}, s3, 16"); k(f"s_add_u32 s{sBX}, s{sBX}, {WS_XN:#x}")
    k(f"s_lshl_b32 s{sOO}, s3, 19"); k(f"s_lshl_b32 s4, s{sH}, 14"); k(f"s_add_u32 s{sOO}, s{sOO}, s4"); k(f"s_add_u32 s{sOO}, s{sOO}, {WS_O:#x}")
    k(f"s_lshl_b32 s{sM0W}, s{sWAVE}, 11")
    k(f"s_lshl_b32 s{sM0K}, s{sWAVE}, 12")
    k(f"s_lshl_b32 s{sBKV}, s{sH}, 19"); k(f"s_add_u32 s{sBKV}, s{sBKV}, {1536*256}"); k(f"s_add_u32 s{sBKV}, s{sBKV}, s{sM0K}")
    k(f"s_lshl_b32 s{sROT}, s{sQT}, 1")
    k(f"s_mov_b32 s{sSC}, {QSCALE:#x}")
    k("s_waitcnt lgkmcnt(0)")
    srd(k, sWQ, 44, SZ['wq']); srd(k, sWS, 46, SZ['ws'])

    def D(ks):
        return [[f"s_add_u32 s{sKS}, s{sROT}, {ks}", f"s_and_b32 s{sKS}, s{sKS}, 15", f"s_lshl_b32 s{sOW}, s{sKS}, 18", f"s_add_u32 s{sOW}, s{sOW}, s{sBW}",
                 f"s_add_u32 m0, s{sM0W}, {ks*8192}", "s_nop 0",
                 Ins(f"buffer_load_dwordx4 v{oW}, s[{sWQ}:{sWQ+3}], s{sOW} offen lds", tag=f"D{ks}")],
                [Ins(f"buffer_load_dwordx4 v{oW+1}, s[{sWQ}:{sWQ+3}], s{sOW} offen offset:1024 lds", tag=f"D{ks}")]]
    def X(ks):
        g = []
        for qb in range(4):
            pre = [f"s_add_u32 s{sKS}, s{sROT}, {ks}", f"s_and_b32 s{sKS}, s{sKS}, 15", f"s_lshl_b32 s{sOX}, s{sKS}, 12", f"s_add_u32 s{sOX}, s{sOX}, s{sBX}"] if qb == 0 else []
            g.append(pre + [Ins(f"buffer_load_dwordx4 {q4('a', (ks*4+qb)*4)}, v{oL}, s[{sWS}:{sWS+3}], s{sOX} offen" + (f" offset:{qb*1024}" if qb else ""), tag=f"X{ks}")])
        return g
    def KV(j):
        base = (j % 4) * 32768
        g = []
        for i in range(4):
            pre = [f"s_add_u32 s{sKS}, s{sQT}, {j}", f"s_and_b32 s{sKS}, s{sKS}, 7", f"s_lshl_b32 s{sOKV}, s{sKS}, 14", f"s_add_u32 s{sOKV}, s{sOKV}, s{sBKV}",
                   f"s_add_u32 m0, s{sM0K}, {base}", "s_nop 0"] if i == 0 else []
            g.append(pre + [Ins(f"buffer_load_dwordx4 v{oK+i}, s[{sK}:{sK+3}], s{sOKV} offen" + (f" offset:{i*1024}" if i else "") + " lds", tag=f"KV{j}")])
        for i in range(4):
            pre = [f"s_add_u32 m0, s{sM0K}, {base+16384}", "s_nop 0"] if i == 0 else []
            g.append(pre + [Ins(f"buffer_load_dwordx4 v{oV+(i&1)}, s[{sV}:{sV+3}], s{sOKV} offen" + (f" offset:{i*1024}" if i else "") + " lds", tag=f"KV{j}")])
        return g
    queue = D(0) + D(1) + X(0)
    for p in range(1, 6):
        queue += D(2*p) + D(2*p+1) + X(2*p-1) + (X(2*p) if p < 5 else [])
    queue += X(10) + D(12) + D(13) + D(14) + D(15) + X(11) + X(12) + X(13) + X(14) + X(15)
    assert len(queue) == 96
    for g in queue[:6]:
        for x in g: k(x)
    srd(k, sK, 40, SZ['k']); srd(k, sV, 42, SZ['v'])
    k("v_bfe_u32 v29, v1, 2, 2")
    k("v_and_b32 v30, 3, v1")
    k("v_lshl_add_u32 v31, v2, 3, v29"); k("v_lshlrev_b32 v31, 8, v31"); k("v_lshl_add_u32 v31, v30, 4, v31")
    for s in range(4):
        k(f"v_xor_b32 v{aW+s}, {s}, v29"); k(f"v_lshl_add_u32 v{aW+s}, v{aW+s}, 6, v31")
    for g in queue[6:upfront]:
        for x in g: k(x)
    for s in range(4):
        k(f"v_add_u32 v31, {4*s}, v2"); k("v_xor_b32 v31, v31, v3"); k("v_lshlrev_b32 v31, 4, v31"); k(f"v_lshl_add_u32 v{aK+s}, v3, 8, v31")
    k("v_lshl_add_u32 v31, v2, 2, v29")
    k(f"v_and_b32 v{TMP}, 7, v31"); k(f"v_lshlrev_b32 v{TMP}, 1, v{TMP}")
    k(f"v_lshrrev_b32 v{TMP+1}, 1, v30"); k(f"v_xor_b32 v{TMP}, v{TMP}, v{TMP+1}")
    k(f"v_and_b32 v{TMP+1}, 1, v30"); k(f"v_lshlrev_b32 v{TMP+1}, 3, v{TMP+1}"); k(f"v_lshl_add_u32 v{TMP+1}, v31, 8, v{TMP+1}")
    k(f"v_add_u32 v{TMP+1}, 16384, v{TMP+1}")
    for T in range(8):
        k(f"v_xor_b32 v{aV+T}, {2*T}, v{TMP}"); k(f"v_lshl_add_u32 v{aV+T}, v{aV+T}, 4, v{TMP+1}")
    for i in range(4):
        k(f"v_add_u32 v31, {4*i}, v2"); k("v_xor_b32 v31, v31, v3"); k("v_lshlrev_b32 v31, 4, v31"); k(f"v_lshl_add_u32 v{oK+i}, v2, 8, v31")
    for i in range(2):
        k(f"v_add_u32 v31, {4*i}, v2"); k("v_lshlrev_b32 v31, 1, v31"); k("v_xor_b32 v31, v31, v3"); k("v_lshlrev_b32 v31, 4, v31"); k(f"v_lshl_add_u32 v{oV+i}, v2, 8, v31")
    for i in range(8): k(f"v_mov_b32 v{LS+i}, 0")

    steps = [[(ks, T) for T in range(8)] for ks in range(12)]
    steps += [[(ks, 2*s+t) for ks in range(12, 16) for t in range(2)] for s in range(4)]
    def wreads(st):
        out = []
        for f, (ks, T) in enumerate(steps[st]):
            s, t = T >> 1, T & 1
            for u in range(2):
                off = (ks % 8) * 8192 + u * 1024 + t * 8
                out.append(Ins(f"ds_read_b64_tr_b16 {q2('v', AF + (st&1)*32 + f*4 + u*2)}, v{aW+s} offset:{off}", tag=f"W{st}"))
        return out
    k.wait(vm="D1"); k("s_barrier")
    for x in wreads(0): k(x)

    sc = Sched(k)
    qfin = {}
    rest = queue[upfront:]
    firstuse = set()
    for st in range(16):
        g0 = len(sc.mf)
        need_x = max(ks for ks, _ in steps[st])
        pre = [Wait(vm=f"X{need_x}" if st <= 12 else None, lgkm=0)]
        bar = None
        if st % 2 == 1 and st <= 9: bar = f"D{st+2}"
        if st == 11: bar = "D15"
        if st == 15: bar = "KV0"
        sc.before(g0, pre[0])
        if bar:
            sc.at(g0, Wait(vm=bar)); sc.at(g0, "s_barrier")
        for f, (ks, T) in enumerate(steps[st]):
            for qb in range(4):
                a = acc(T, qb)
                c = q4('v', a) if (T, qb) in firstuse else "0"
                firstuse.add((T, qb))
                sc.mfma(f"{MF} {q4('v', a)}, {q4('v', AF + (st&1)*32 + f*4)}, {q4('a', (ks*4+qb)*4)}, {c}")
        if st < 15:
            rd = wreads(st + 1)
            if st + 1 == 8:
                for s in range(4): sc.valu(f"v_add_u32 v{aW+s}, 0x10000, v{aW+s}", ready=g0 - 1)
                sc.mf[g0] = (sc.mf[g0][0], {len(sc.vq) - 1})
            for n, x in enumerate(rd): sc.at(g0 + 1 + (n * 3) // 2, x)
        if st >= 13 or True:
            pass
        if st >= 12:
            s = st - 12
            last = len(sc.mf) - 1
            for qb in range(4):
                a0, a1 = acc(2*s, qb), acc(2*s+1, qb)
                rdy = last + 2
                for i in range(4): sc.valu(f"v_mul_f32 v{a0+i}, s{sSC}, v{a0+i}", ready=rdy)
                for i in range(4): sc.valu(f"v_mul_f32 v{a1+i}, s{sSC}, v{a1+i}", ready=rdy)
                sc.valu(f"v_cvt_pk_bf16_f32 v{a0}, v{a0}, v{a0+1}", ready=rdy); sc.valu(f"v_cvt_pk_bf16_f32 v{a0+1}, v{a0+2}, v{a0+3}", ready=rdy)
                sc.valu(f"v_cvt_pk_bf16_f32 v{a0+2}, v{a1}, v{a1+1}", ready=rdy); sc.valu(f"v_cvt_pk_bf16_f32 v{a0+3}, v{a1+2}, v{a1+3}", ready=rdy)
                for i in range(4): idv = sc.valu(f"v_accvgpr_write_b32 a{QF + (qb*4+s)*4 + i}, v{a0+i}", ready=rdy)
                qfin[(qb, s)] = idv
    nq = len(sc.mf)
    g = 2
    for grp in rest:
        for x in grp: sc.at(g, x)
        g += vpace
    for j, freeg in ((0, 3*32 + 1), (1, 7*32 + 1), (2, 11*32 + 1)):
        g = max(g, freeg + 1)
        for grp in KV(j):
            for x in grp: sc.at(g, x)
            g += vpace
    assert g < 15 * 32, g
    for i, (t, r, c) in enumerate(sc.vq):
        if r >= nq: sc.vq[i] = (t, nq - 1, c)

    def kreads(p):
        slot = (p // 2) % 4
        out = []
        for kb2 in range(2):
            for s in range(4):
                off = (slot & 1) * 32768 + (p & 1) * 8192 + kb2 * 4096
                out.append(Ins(f"ds_read_b128 {q4('a', KF + (p&1)*32 + (kb2*4+s)*4)}, v{aK+s} offset:{off}", tag=f"K{p}"))
        return out
    def vreads(p):
        slot = (p // 2) % 4
        out = []
        for T in range(8):
            for u in range(2):
                off = (slot & 1) * 32768 + (p & 1) * 8192 + u * 4096
                out.append(Ins(f"ds_read_b64_tr_b16 {q2('a', VF + (p&1)*32 + T*4 + u*2)}, v{aV+T} offset:{off}", tag=f"V{p}"))
        return out
    for n, x in enumerate(kreads(0)): sc.at(15*32 + 2 + 2*n, x)
    for n, grp in enumerate(KV(3)):
        for x in grp: sc.at(15*32 + 3 + 3*n + (n % 2), x)

    pdone = {}
    nmdone = {}
    def Sblk(p, qb):
        first = len(sc.mf)
        for kb2 in range(2):
            d = S + qb * 8 + kb2 * 4
            for s in range(4):
                c = q4('v', d) if s else ("0" if p == 0 else q4('v', NM + 4*qb))
                needs = set()
                if p == 0: needs.add(qfin[(qb, 3)])
                if p == 1 and s == 0: needs.add(nmdone[qb])
                sc.mfma(f"{MF} {q4('v', d)}, {q4('a', KF + (p&1)*32 + (kb2*4+s)*4)}, {q4('a', QF + (qb*4+s)*4)}, {c}", needs)
        last = len(sc.mf) - 1
        b = S + qb * 8
        rdy = last + 3
        if p == 0:
            t = TMP + 2 * qb
            sc.valu(f"v_max3_f32 v{t}, v{b}, v{b+1}, v{b+2}", ready=rdy); sc.valu(f"v_max3_f32 v{t+1}, v{b+3}, v{b+4}, v{b+5}", ready=rdy)
            sc.valu(f"v_max3_f32 v{t}, v{t}, v{b+6}, v{b+7}", ready=rdy); sc.valu(f"v_max_f32 v{t}, v{t}, v{t+1}", ready=rdy)
            for sw in ("v_permlane32_swap_b32", "v_permlane16_swap_b32"):
                sc.valu(f"v_mov_b32 v{t+1}, v{t}", ready=rdy, cost=8)
                sc.valu(f"{sw} v{t}, v{t+1}", ready=rdy)
                sc.valu(f"v_max_f32 v{t}, v{t}, v{t+1}", ready=rdy)
            for i in range(4): idv = sc.valu(f"v_sub_f32 v{NM+4*qb+i}, 0, v{t}", ready=rdy)
            nmdone[qb] = idv
            for i in range(8): sc.valu(f"v_sub_f32 v{b+i}, v{b+i}, v{t}", ready=rdy)
        E = lambda i: sc.valu(f"v_exp_f32 v{b+i}, v{b+i}", ready=rdy)
        A = lambda i: sc.valu(f"v_add_f32 v{LS+2*qb+(i&1)}, v{LS+2*qb+(i&1)}, v{b+i}", ready=rdy)
        C = lambda i: sc.valu(f"v_cvt_pk_bf16_f32 v{P+4*qb+i}, v{b+2*i}, v{b+2*i+1}", ready=rdy)
        E(0); E(1); E(2); A(0); A(1); E(3); C(0); A(2); E(4); E(5); A(3); C(1); E(6); A(4); A(5); E(7); C(2); A(6); A(7)
        pdone[(p, qb)] = C(3)
        return first
    def PVblk(p, qb):
        first = len(sc.mf)
        for T in range(8):
            a = acc(T, qb)
            c = q4('v', a) if p else "0"
            sc.mfma(f"{MF} {q4('v', a)}, {q4('a', VF + (p&1)*32 + T*4)}, {q4('v', P + 4*qb)}, {c}", {pdone[(p, qb)]} if T == 0 else ())
        return first
    ofin = []
    def Ofin(qb, rdy):
        t = TMP + 8 + 2 * qb
        l0 = LS + 2 * qb
        sc.valu(f"v_add_f32 v{t}, v{l0}, v{l0+1}", ready=rdy)
        for sw in ("v_permlane32_swap_b32", "v_permlane16_swap_b32"):
            sc.valu(f"v_mov_b32 v{t+1}, v{t}", ready=rdy)
            sc.valu(f"{sw} v{t}, v{t+1}", ready=rdy)
            sc.valu(f"v_add_f32 v{t}, v{t}, v{t+1}", ready=rdy)
        sc.valu(f"v_mov_b32 v{l0}, v{t}", ready=rdy)
        sc.valu(f"v_rcp_f32 v{t}, v{t}", ready=rdy)
        for s in range(4):
            a0, a1 = acc(2*s, qb), acc(2*s+1, qb)
            for i in range(4): sc.valu(f"v_mul_f32 v{a0+i}, v{a0+i}, v{t}", ready=rdy)
            for i in range(4): sc.valu(f"v_mul_f32 v{a1+i}, v{a1+i}, v{t}", ready=rdy)
            sc.valu(f"v_cvt_pk_bf16_f32 v{a0}, v{a0}, v{a0+1}", ready=rdy); sc.valu(f"v_cvt_pk_bf16_f32 v{a0+1}, v{a0+2}, v{a0+3}", ready=rdy)
            sc.valu(f"v_cvt_pk_bf16_f32 v{a0+2}, v{a1}, v{a1+1}", ready=rdy); sc.valu(f"v_cvt_pk_bf16_f32 v{a0+3}, v{a1+2}, v{a1+3}", ready=rdy)
            sc.valu(f"s_add_u32 s3, s{sOO}, {s*4096}", ready=rdy, cost=0)
            sc.valu(f"buffer_store_dwordx4 {q4('v', a0)}, v{oL}, s[{sWS}:{sWS+3}], s3 offen" + (f" offset:{qb*1024}" if qb else ""), ready=rdy, cost=0)

    for p in range(16):
        g0 = len(sc.mf)
        sc.before(g0, Wait(lgkm=0))
        Sblk(p, 0)
        if p: PVblk(p-1, 2)
        Sblk(p, 1)
        if p: PVblk(p-1, 3)
        mid = len(sc.mf)
        Sblk(p, 2)
        PVblk(p, 0)
        if p == 15: o0 = len(sc.mf)
        Sblk(p, 3)
        PVblk(p, 1)
        gend = len(sc.mf)
        nh = mid - g0
        vr = vreads(p)
        if p % 4 == 0 and p > 0:
            for T in range(8): sc.before(g0, f"v_xor_b32 v{aV+T}, 0x10000, v{aV+T}")
        for n, x in enumerate(vr): sc.at(g0 + (n * (nh - 6)) // 16, x)
        sc.before(mid, Wait(lgkm=0))
        if p < 15:
            if p % 2 == 1:
                j = (p + 1) // 2
                sc.at(mid, Wait(vm=f"KV{j}")); sc.at(mid, "s_barrier")
                if j + 3 <= 7:
                    for n, grp in enumerate(KV(j + 3)):
                        for x in grp: sc.at(mid + 2 + 6 * n, x)
            if (p + 1) % 4 == 0:
                for s in range(4): sc.before(mid, f"v_xor_b32 v{aK+s}, 0x10000, v{aK+s}")
            for n, x in enumerate(kreads(p + 1)): sc.at(mid + 1 + 3 * n, x)
    PVblk(15, 2)
    Ofin(0, len(sc.mf) - 1)
    PVblk(15, 3)
    nm = len(sc.mf)
    Ofin(1, nm - 1); Ofin(2, nm - 1); Ofin(3, nm - 1)
    forced, restv = sc.emit()
    print(f"[k1] mfma={nm} forced_valu_cycles={forced} tail_valu_cycles={restv}")
    k(f"{end}:")
    k("s_endpgm")
    return k, 512, 256
```

```python
from asmlib import *
from common import *
MF = "v_mfma_f32_16x16x32_bf16"
def q4(f, r): return f"{f}[{r}:{r+3}]"
def q2(f, r): return f"{f}[{r}:{r+1}]"
LOG2E = 0x3fb8aa3b

def silu_bf16(k, z, t):
    k(f"v_mul_f32 v{t}, 0xbfb8aa3b, v{z}")
    k(f"v_exp_f32 v{t}, v{t}")
    k(f"v_add_f32 v{t}, 1.0, v{t}")
    k(f"v_rcp_f32 v{t}, v{t}")
    k(f"v_mul_f32 v{z}, v{z}, v{t}")

def gen_k2(name="oproj_kernel", depth=7):
    k = Kern(name)
    end = k.label("end")
    sWS, sWO, sY = 8, 12, 16
    sWAVE, sQ64, sNT, sOW, sOO, sM0 = 24, 25, 26, 27, 28, 29
    aT, oWO, oL = 4, 8, 12
    XR, XNR, YR, G = 16, 24, 32, 40
    AF = 56
    ACC = 88
    assert ACC + 64 <= 160
    k("s_cmp_ge_u32 s2, 256"); k(f"s_cbranch_scc1 {end}")
    k(f"s_load_dwordx2 s[40:41], s[0:1], {KA['wo']}")
    k(f"s_load_dwordx2 s[42:43], s[0:1], {KA['ws']}")
    k(f"s_load_dwordx2 s[44:45], s[0:1], {KA['x']}")
    k(f"s_load_dwordx2 s[46:47], s[0:1], {KA['out']}")
    k("v_and_b32 v1, 63, v0"); k("v_lshrrev_b32 v2, 6, v0")
    k("s_and_b32 s3, s2, 7"); k("s_lshr_b32 s4, s2, 3")
    k(f"v_readfirstlane_b32 s{sWAVE}, v2")
    k("s_lshl_b32 s3, s3, 2"); k("s_and_b32 s5, s4, 3"); k(f"s_add_u32 s{sQ64}, s3, s5"); k(f"s_lshr_b32 s{sNT}, s4, 2")
    k(f"v_lshlrev_b32 v{oL}, 4, v1")
    k("v_lshrrev_b32 v2, 4, v1"); k("v_lshlrev_b32 v3, 1, v2"); k("v_and_b32 v13, 7, v1"); k("v_xor_b32 v3, v3, v13"); k("v_lshlrev_b32 v3, 4, v3")
    k("v_lshrrev_b32 v13, 3, v1"); k(f"v_lshl_add_u32 v{oWO}, v13, 10, v3")
    for i in range(1, 4): k(f"v_add_u32 v{oWO+i}, {i*7168}, v{oWO}")
    k(f"s_lshl_b32 s{sOW}, s{sNT}, 7"); k(f"s_lshl_b32 s3, s{sWAVE}, 20"); k(f"s_add_u32 s{sOW}, s{sOW}, s3")
    k(f"s_lshl_b32 s{sOO}, s{sQ64}, 19"); k(f"s_lshl_b32 s3, s{sWAVE}, 17"); k(f"s_add_u32 s{sOO}, s{sOO}, s3"); k(f"s_add_u32 s{sOO}, s{sOO}, {WS_O:#x}")
    k(f"s_lshl_b32 s{sM0}, s{sWAVE}, 15")
    k("s_waitcnt lgkmcnt(0)")
    srd(k, sWO, 40, SZ['wo']); srd(k, sWS, 42, SZ['ws'])
    k(f"s_load_dwordx2 s[48:49], s[42:43], {WS_IDX:#x}")
    def loads(i):
        g = []
        for n in range(4):
            pre = [f"s_add_u32 m0, s{sM0}, {(i%8)*4096}", "s_nop 0"] if n == 0 else []
            post = [f"s_add_u32 s{sOW}, s{sOW}, 32768"] if n == 3 else []
            g.append(pre + [Ins(f"buffer_load_dwordx4 v{oWO+n}, s[{sWO}:{sWO+3}], s{sOW} offen" + (f" offset:{n*1024}" if n else "") + " lds", tag=f"D{i}")] + post)
        for qb in range(4):
            post = [f"s_add_u32 s{sOO}, s{sOO}, 4096"] if qb == 3 else []
            g.append([Ins(f"buffer_load_dwordx4 {q4('a', (i%8)*16 + qb*4)}, v{oL}, s[{sWS}:{sWS+3}], s{sOO} offen" + (f" offset:{qb*1024}" if qb else ""), tag=f"O{i}")] + post)
        return g
    for i in range(2):
        for g in loads(i):
            for x in g: k(x)
    k("v_lshrrev_b32 v13, 3, v0"); k("v_and_b32 v14, 7, v0")
    k(f"s_lshl_b32 s3, s{sQ64}, 16"); k(f"s_lshl_b32 s4, s{sNT}, 7"); k("s_add_u32 s5, s3, s4")
    k("v_lshlrev_b32 v15, 10, v13"); k("v_lshl_add_u32 v15, v14, 4, v15"); k("v_add_u32 v15, s5, v15")
    k(f"v_add_u32 v{G+1}, 32768, v15")
    k(f"global_load_dwordx4 {q4('v', XR)}, v15, s[44:45]", tag="E")
    k(f"global_load_dwordx4 {q4('v', XR+4)}, v{G+1}, s[44:45]", tag="E")
    k(f"s_lshl_b32 s4, s{sNT}, 13"); k("s_add_u32 s5, s3, s4"); k(f"s_add_u32 s5, s5, {WS_XN:#x}")
    k(f"v_lshrrev_b32 v{G}, 2, v14"); k(f"v_lshlrev_b32 v{G}, 12, v{G}")
    k(f"v_lshrrev_b32 v{G+1}, 4, v13"); k(f"v_lshl_add_u32 v{G}, v{G+1}, 10, v{G}")
    k(f"v_and_b32 v{G+1}, 3, v14"); k(f"v_lshl_add_u32 v{G}, v{G+1}, 8, v{G}")
    k(f"v_and_b32 v{G+1}, 15, v13"); k(f"v_lshl_add_u32 v{G}, v{G+1}, 4, v{G}")
    k(f"buffer_load_dwordx4 {q4('v', XNR)}, v{G}, s[{sWS}:{sWS+3}], s5 offen", tag="E")
    k(f"buffer_load_dwordx4 {q4('v', XNR+4)}, v{G}, s[{sWS}:{sWS+3}], s5 offen offset:2048", tag="E")
    k(f"s_add_u32 s{sY}, s42, {WS_Y:#x}"); k(f"s_addc_u32 s{sY+1}, s43, 0"); k(f"s_mov_b32 s{sY+2}, 2048"); k(f"s_mov_b32 s{sY+3}, 0x00020000")
    k("s_waitcnt lgkmcnt(0)")
    k("s_and_b32 s48, s48, 0xffff"); k("s_sub_u32 s48, 0xffff, s48"); k("s_and_b32 s49, s49, 0xffff"); k("s_sub_u32 s49, 0xffff, s49")
    k(f"s_lshl_b32 s3, s{sQ64}, 6"); k("s_sub_u32 s48, s48, s3"); k("s_sub_u32 s49, s49, s3")
    k(f"s_lshl_b32 s4, s{sNT}, 7")
    k(f"v_lshl_add_u32 v{G+2}, v14, 4, s4")
    for e in range(2):
        k(f"v_add_u32 v{G+3}, {32*e}, v13")
        k(f"v_mov_b32 v{G+4}, 0x10000")
        k(f"v_cmp_eq_u32 vcc, s48, v{G+3}"); k("s_nop 1"); k(f"v_cndmask_b32 v{G+4}, v{G+4}, 0, vcc")
        k(f"v_mov_b32 v{G+5}, 1024")
        k(f"v_cmp_eq_u32 vcc, s49, v{G+3}"); k("s_nop 1"); k(f"v_cndmask_b32 v{G+4}, v{G+4}, v{G+5}, vcc")
        k(f"v_add_u32 v{G+6+e}, v{G+4}, v{G+2}")
        k(f"buffer_load_dwordx4 {q4('v', YR+4*e)}, v{G+6+e}, s[{sY}:{sY+3}], 0 offen", tag="E")
    for i in range(2, depth - 1):
        for g in loads(i):
            for x in g: k(x)
    k("v_bfe_u32 v13, v1, 2, 2"); k("v_lshl_add_u32 v13, v2, 2, v13")
    k("v_and_b32 v14, 3, v1")
    k("v_bfe_u32 v3, v13, 1, 2"); k("v_lshlrev_b32 v3, 1, v3"); k("v_lshrrev_b32 v2, 1, v14"); k("v_xor_b32 v3, v3, v2")
    k("v_and_b32 v2, 1, v14"); k("v_lshlrev_b32 v2, 3, v2"); k("v_lshl_add_u32 v2, v13, 7, v2"); k(f"v_add_u32 v2, s{sM0}, v2")
    for T in range(4):
        k(f"v_xor_b32 v{aT+T}, {2*T}, v3"); k(f"v_lshl_add_u32 v{aT+T}, v{aT+T}, 4, v2")
    k.wait(vm="E")
    for g in loads(depth - 1):
        for x in g: k(x)
    for i in range(8):
        k(f"v_lshlrev_b32 v{G+2*i}, 16, v{XNR+i}"); k(f"v_and_b32 v{G+2*i+1}, 0xffff0000, v{XNR+i}")
        k(f"v_lshlrev_b32 v2, 16, v{YR+i}"); k(f"v_and_b32 v3, 0xffff0000, v{YR+i}")
        k(f"v_add_f32 v{G+2*i}, v{G+2*i}, v2"); k(f"v_add_f32 v{G+2*i+1}, v{G+2*i+1}, v3")
        k(f"v_cvt_pk_bf16_f32 v2, v{G+2*i}, v{G+2*i+1}")
        k(f"v_lshlrev_b32 v{G+2*i}, 16, v2"); k(f"v_and_b32 v{G+2*i+1}, 0xffff0000, v2")
        silu_bf16(k, G+2*i, 2); silu_bf16(k, G+2*i+1, 3)
        k(f"v_cvt_pk_bf16_f32 v2, v{G+2*i}, v{G+2*i+1}")
        k(f"v_lshlrev_b32 v{G+2*i}, 16, v2"); k(f"v_and_b32 v{G+2*i+1}, 0xffff0000, v2")
    def treads(i):
        return [Ins(f"ds_read_b64_tr_b16 {q2('v', AF + (i&1)*16 + T*4 + u*2)}, v{aT+T} offset:{(i%8)*4096 + u*2048}") for T in range(4) for u in range(2)]
    k.wait(vm="D0")
    for x in treads(0): k(x)
    sc = Sched(k)
    for i in range(32):
        g0 = len(sc.mf)
        sc.before(g0, Wait(vm=f"D{i+1}" if i < 31 else "O31", lgkm=0))
        for T in range(4):
            for qb in range(4):
                a = ACC + (T*4+qb)*4
                sc.mfma(f"{MF} {q4('v', a)}, {q4('v', AF + (i&1)*16 + T*4)}, {q4('a', (i%8)*16 + qb*4)}, {q4('v', a) if i else '0'}")
        if i < 31:
            for n, x in enumerate(treads(i+1)): sc.at(g0 + n, x)
        if i + depth < 32:
            for n, g in enumerate(loads(i + depth)):
                for x in g: sc.at(g0 + 2*n + 1, x)
    sc.emit()
    k("v_and_b32 v2, 15, v1"); k("v_lshrrev_b32 v3, 4, v1")
    k("v_mul_u32_u24 v2, 272, v2"); k("v_lshl_add_u32 v2, v3, 4, v2"); k(f"v_add_u32 v2, s{sM0}, v2")
    for T in range(4):
        for qb in range(4):
            k(f"ds_write_b128 v2, {q4('v', ACC + (T*4+qb)*4)} offset:{qb*16*272 + T*64}")
    k("v_lshrrev_b32 v13, 3, v0"); k("v_and_b32 v14, 7, v0")
    k("v_mul_u32_u24 v3, 272, v13"); k("v_lshl_add_u32 v3, v14, 5, v3"); k("v_add_u32 v13, 0x10000, v3")
    k("s_waitcnt lgkmcnt(0)"); k("s_barrier")
    R = ACC
    for e in range(2):
        for w in range(4):
            for hlf in range(2):
                k(f"ds_read_b128 {q4('v', R + e*32 + w*8 + hlf*4)}, v{3 if w < 2 else 13} offset:{(w&1)*32768 + e*32*272 + hlf*16}", tag=f"R{e}")
    for e in range(2):
        k.wait(lgkm=f"R{e}")
        b = R + e * 32
        for j in range(8):
            k(f"v_add_f32 v{b+j}, v{b+j}, v{b+8+j}"); k(f"v_add_f32 v{b+16+j}, v{b+16+j}, v{b+24+j}")
        for j in range(8): k(f"v_add_f32 v{b+j}, v{b+j}, v{b+16+j}")
        for j in range(4):
            k(f"v_cvt_pk_bf16_f32 v{b+8+j}, v{b+2*j}, v{b+2*j+1}")
            k(f"v_lshlrev_b32 v{b+2*j}, 16, v{b+8+j}"); k(f"v_and_b32 v{b+2*j+1}, 0xffff0000, v{b+8+j}")
            k(f"v_mul_f32 v{b+2*j}, v{b+2*j}, v{G+8*e+2*j}"); k(f"v_mul_f32 v{b+2*j+1}, v{b+2*j+1}, v{G+8*e+2*j+1}")
            k(f"v_cvt_pk_bf16_f32 v{b+8+j}, v{b+2*j}, v{b+2*j+1}")
            k(f"v_lshlrev_b32 v{b+2*j}, 16, v{b+8+j}"); k(f"v_and_b32 v{b+2*j+1}, 0xffff0000, v{b+8+j}")
            k(f"v_lshlrev_b32 v{b+16}, 16, v{XR+4*e+j}"); k(f"v_and_b32 v{b+17}, 0xffff0000, v{XR+4*e+j}")
            k(f"v_add_f32 v{b+2*j}, v{b+2*j}, v{b+16}"); k(f"v_add_f32 v{b+2*j+1}, v{b+2*j+1}, v{b+17}")
            k(f"v_cvt_pk_bf16_f32 v{b+12+j}, v{b+2*j}, v{b+2*j+1}")
        if e: k("v_add_u32 v15, 32768, v15")
        k(f"global_store_dwordx4 v15, {q4('v', b+12)}, s[46:47]")
    k(f"{end}:")
    k("s_endpgm")
    return k, 160 + 128, 160
```

```python
from asmlib import *
from common import *
from k2 import silu_bf16, MF, q4, q2

def top2(k, sWS, vb, vlane16, s1, s2):
    for i in range(8):
        k(f"s_mov_b32 s{s1}, {WS_KEY + (i//4)*4096:#x}")
        k(f"buffer_load_dwordx4 {q4('v', vb+4*i)}, v{vlane16}, s[{sWS}:{sWS+3}], s{s1} offen" + (f" offset:{(i%4)*1024}" if i % 4 else ""), tag="KEYS")

def top2_reduce(k, vb, s1, s2):
    m1, m2 = vb + 32, vb + 33
    k(f"v_max_u32 v{m1}, v{vb}, v{vb+1}"); k(f"v_min_u32 v{m2}, v{vb}, v{vb+1}")
    for i in range(2, 32):
        k(f"v_med3_u32 v{m2}, v{m1}, v{m2}, v{vb+i}"); k(f"v_max_u32 v{m1}, v{m1}, v{vb+i}")
    k(f"v_mov_b32 v{vb}, v{m1}")
    wave_umax_dpp(k, vb)
    k("s_nop 0"); k(f"v_readlane_b32 s{s1}, v{vb}, 63"); k("s_nop 1")
    k(f"v_cmp_eq_u32 vcc, s{s1}, v{m1}"); k("s_nop 1"); k(f"v_cndmask_b32 v{vb}, v{m1}, v{m2}, vcc")
    wave_umax_dpp(k, vb)
    k("s_nop 0"); k(f"v_readlane_b32 s{s2}, v{vb}, 63"); k("s_nop 1")

def gen_m1(name="moe1_kernel"):
    k = Kern(name); end = k.label("end")
    sWS, sG, sU = 8, 12, 16
    k("s_cmp_ge_u32 s2, 86"); k(f"s_cbranch_scc1 {end}")
    k(f"s_load_dwordx4 s[40:43], s[0:1], {KA['wg']}")
    k(f"s_load_dwordx2 s[44:45], s[0:1], {KA['ws']}")
    k("v_and_b32 v1, 63, v0"); k("v_lshrrev_b32 v2, 6, v0"); k("s_nop 0"); k("v_readfirstlane_b32 s24, v2")
    k("v_lshlrev_b32 v4, 4, v1")
    k("v_lshrrev_b32 v2, 1, v1"); k("v_mul_u32_u24 v5, 2752, v2"); k("v_and_b32 v2, 1, v1"); k("v_lshl_add_u32 v5, v2, 4, v5")
    k("s_waitcnt lgkmcnt(0)")
    srd(k, sG, 40, SZ['wg']); srd(k, sU, 42, SZ['wu']); srd(k, sWS, 44, SZ['ws'])
    top2(k, sWS, 16, 4, 26, 27)
    k(f"s_mul_i32 s25, s24, {128*2752}"); k("s_lshl_b32 s3, s2, 5"); k("s_add_u32 s25, s25, s3")
    k("s_lshl_b32 s28, s24, 13")
    for i in range(4):
        for mat in range(2):
            k(f"s_add_u32 m0, s28, {(mat*4+i)*1024}"); k("s_nop 0")
            k(f"buffer_load_dwordx4 v5, s[{(sG, sU)[mat]}:{(sG, sU)[mat]+3}], s25 offen lds", tag="W")
        k(f"s_add_u32 s25, s25, {32*2752}")
    k("v_lshrrev_b32 v2, 4, v1"); k("v_bfe_u32 v3, v1, 2, 2"); k("v_lshl_add_u32 v3, v2, 3, v3"); k("v_lshlrev_b32 v3, 5, v3")
    k("v_and_b32 v6, 3, v1"); k("v_lshl_add_u32 v6, v6, 3, v3"); k("v_add_u32 v6, s28, v6")
    k.wait(vm="KEYS")
    top2_reduce(k, 16, 26, 27)
    k("s_and_b32 s30, s26, 0xffff"); k("s_sub_u32 s30, 0xffff, s30"); k("s_and_b32 s31, s27, 0xffff"); k("s_sub_u32 s31, 0xffff, s31")
    k("v_and_b32 v3, 1, v1"); k("v_mov_b32 v7, s30"); k("v_mov_b32 v8, s31"); k("v_cmp_eq_u32 vcc, 1, v3"); k("s_nop 1"); k("v_cndmask_b32 v7, v7, v8, vcc")
    k("v_lshrrev_b32 v8, 6, v7"); k("v_lshlrev_b32 v8, 16, v8")
    k("v_bfe_u32 v9, v7, 4, 2"); k("v_lshl_add_u32 v8, v9, 10, v8")
    k("v_lshl_add_u32 v8, v2, 8, v8")
    k("v_and_b32 v9, 15, v7"); k("v_lshl_add_u32 v8, v9, 4, v8")
    k("s_lshl_b32 s29, s24, 14"); k(f"s_add_u32 s29, s29, {WS_XN:#x}")
    for i in range(4):
        k(f"buffer_load_dwordx4 {q4('v', 16+4*i)}, v8, s[{sWS}:{sWS+3}], s29 offen", tag="XS")
        k("s_add_u32 s29, s29, 4096")
    lab = k.label("nk")
    k("s_or_b32 s3, s2, s24"); k("s_cmp_lg_u32 s3, 0"); k(f"s_cbranch_scc1 {lab}")
    k("v_mov_b32 v10, s26"); k("v_mov_b32 v11, s27"); k("v_mov_b32 v9, 0"); k(f"s_mov_b32 s3, {WS_IDX:#x}")
    k(f"buffer_store_dwordx2 v[10:11], v9, s[{sWS}:{sWS+3}], s3 offen")
    k(f"{lab}:")
    k("s_waitcnt vmcnt(0)")
    for mat in range(2):
        for i in range(4):
            for u in range(2):
                k(f"ds_read_b64_tr_b16 {q2('v', 32 + (mat*4+i)*4 + 2*u)}, v6 offset:{(mat*4+i)*1024 + u*128}")
    k("s_waitcnt lgkmcnt(0)")
    for i in range(4):
        for mat in range(2):
            k(f"{MF} {q4('v', 64+4*mat)}, {q4('v', 32 + (mat*4+i)*4)}, {q4('v', 16+4*i)}, {q4('v', 64+4*mat) if i else '0'}")
    k("s_lshl_b32 s3, s24, 11"); k("v_add_u32 v9, s3, v4")
    k(f"ds_write_b128 v9, {q4('v', 64)} offset:32768"); k(f"ds_write_b128 v9, {q4('v', 68)} offset:33792")
    k("s_waitcnt lgkmcnt(0)"); k("s_barrier")
    k("s_cmp_lg_u32 s24, 0"); k(f"s_cbranch_scc1 {end}")
    for w in range(4):
        for mat in range(2): k(f"ds_read_b128 {q4('v', 16 + (w*2+mat)*4)}, v4 offset:{32768 + w*2048 + mat*1024}")
    k("s_waitcnt lgkmcnt(0)")
    for j in range(8):
        k(f"v_add_f32 v{16+j}, v{16+j}, v{24+j}"); k(f"v_add_f32 v{32+j}, v{32+j}, v{40+j}"); k(f"v_add_f32 v{16+j}, v{16+j}, v{32+j}")
    def rnd(a, b, t):
        k(f"v_cvt_pk_bf16_f32 v{t}, v{a}, v{b}"); k(f"v_lshlrev_b32 v{a}, 16, v{t}"); k(f"v_and_b32 v{b}, 0xffff0000, v{t}")
    for j in range(0, 8, 2): rnd(16+j, 17+j, 24)
    for j in range(4): silu_bf16(k, 16+j, 24)
    rnd(16, 17, 24); rnd(18, 19, 24)
    for j in range(4): k(f"v_mul_f32 v{16+j}, v{16+j}, v{20+j}")
    k("v_cvt_pk_bf16_f32 v24, v16, v17"); k("v_cvt_pk_bf16_f32 v25, v18, v19")
    k("v_and_b32 v3, 15, v1"); k("v_mul_u32_u24 v9, 2816, v3"); k("v_lshl_add_u32 v9, v2, 3, v9")
    k("s_lshl_b32 s3, s2, 5"); k(f"s_add_u32 s3, s3, {WS_H:#x}")
    k("v_cmp_gt_u32 vcc, 2, v3"); k("s_and_saveexec_b64 s[32:33], vcc")
    k(f"buffer_store_dwordx2 v[24:25], v9, s[{sWS}:{sWS+3}], s3 offen")
    k(f"{end}:")
    k("s_endpgm")
    return k, 72, 72

def gen_m2(name="moe2_kernel"):
    k = Kern(name); end = k.label("end")
    sWS, sD = 8, 12
    k("s_cmp_ge_u32 s2, 32"); k(f"s_cbranch_scc1 {end}")
    k(f"s_load_dwordx2 s[40:41], s[0:1], {KA['wd']}")
    k(f"s_load_dwordx2 s[44:45], s[0:1], {KA['ws']}")
    k("v_and_b32 v1, 63, v0"); k("v_lshrrev_b32 v2, 6, v0"); k("s_nop 0"); k("v_readfirstlane_b32 s24, v2")
    k("v_lshlrev_b32 v4, 4, v1")
    k("v_lshrrev_b32 v2, 1, v1"); k("v_lshlrev_b32 v5, 10, v2"); k("v_and_b32 v2, 1, v1"); k("v_lshl_add_u32 v5, v2, 4, v5")
    k("s_waitcnt lgkmcnt(0)")
    srd(k, sD, 40, SZ['wd']); srd(k, sWS, 44, SZ['ws'])
    k(f"s_load_dwordx2 s[26:27], s[44:45], {WS_IDX:#x}")
    k(f"s_mul_i32 s25, s24, {11*32*1024}"); k("s_lshl_b32 s3, s2, 5"); k("s_add_u32 s25, s25, s3")
    k(f"s_mul_i32 s28, s24, {11*1024}")
    for i in range(11):
        k(f"s_add_u32 m0, s28, {i*1024}"); k("s_nop 0")
        k(f"buffer_load_dwordx4 v5, s[{sD}:{sD+3}], s25 offen lds")
        k(f"s_add_u32 s25, s25, {32*1024}")
    k("v_lshrrev_b32 v2, 4, v1"); k("v_and_b32 v3, 1, v1"); k("v_mul_u32_u24 v8, 2816, v3"); k("v_lshl_add_u32 v8, v2, 4, v8")
    k("s_mul_i32 s29, s24, 11")
    for i in range(11):
        k(f"s_add_u32 s3, s29, {i}"); k("s_min_u32 s3, s3, 42"); k("s_lshl_b32 s3, s3, 6"); k(f"s_add_u32 s3, s3, {WS_H:#x}")
        k(f"buffer_load_dwordx4 {q4('v', 16+4*i)}, v8, s[{sWS}:{sWS+3}], s3 offen")
    k("v_bfe_u32 v3, v1, 2, 2"); k("v_lshl_add_u32 v3, v2, 3, v3"); k("v_lshlrev_b32 v3, 5, v3")
    k("v_and_b32 v6, 3, v1"); k("v_lshl_add_u32 v6, v6, 3, v3"); k("v_add_u32 v6, s28, v6")
    k("s_waitcnt vmcnt(0) lgkmcnt(0)")
    for i in range(11):
        for u in range(2): k(f"ds_read_b64_tr_b16 {q2('v', 64 + i*4 + 2*u)}, v6 offset:{i*1024 + u*128}")
        if i == 6: k("s_waitcnt lgkmcnt(0)")
    k("s_waitcnt lgkmcnt(0)")
    for i in range(11): k(f"{MF} {q4('v', 12)}, {q4('v', 64+4*i)}, {q4('v', 16+4*i)}, {q4('v', 12) if i else '0'}")
    k("s_lshl_b32 s3, s24, 10"); k("v_add_u32 v9, s3, v4")
    k(f"ds_write_b128 v9, {q4('v', 12)} offset:49152")
    k("s_waitcnt lgkmcnt(0)"); k("s_barrier")
    k("s_cmp_lg_u32 s24, 0"); k(f"s_cbranch_scc1 {end}")
    for w in range(4): k(f"ds_read_b128 {q4('v', 16 + w*4)}, v4 offset:{49152 + w*1024}")
    k("v_and_b32 v3, 1, v1"); k("v_mov_b32 v7, s26"); k("v_mov_b32 v8, s27"); k("v_cmp_eq_u32 vcc, 1, v3"); k("s_nop 1"); k("v_cndmask_b32 v7, v7, v8, vcc")
    k("v_ashrrev_i32 v8, 31, v7")
    k("v_not_b32 v8, v8"); k("v_or_b32 v8, 0x80000000, v8")
    k("v_xor_b32 v7, v7, v8"); k("v_and_b32 v7, 0xffff0000, v7")
    k("v_mul_f32 v7, 0xbfb8aa3b, v7"); k("v_exp_f32 v7, v7"); k("v_add_f32 v7, 1.0, v7"); k("v_rcp_f32 v7, v7")
    k("v_cvt_pk_bf16_f32 v7, v7, v7"); k("v_lshlrev_b32 v7, 16, v7")
    k("s_waitcnt lgkmcnt(0)")
    for j in range(4):
        k(f"v_add_f32 v{16+j}, v{16+j}, v{20+j}"); k(f"v_add_f32 v{24+j}, v{24+j}, v{28+j}"); k(f"v_add_f32 v{16+j}, v{16+j}, v{24+j}")
    for j in (0, 2):
        k(f"v_cvt_pk_bf16_f32 v24, v{16+j}, v{17+j}"); k(f"v_lshlrev_b32 v{16+j}, 16, v24"); k(f"v_and_b32 v{17+j}, 0xffff0000, v24")
    for j in range(4): k(f"v_mul_f32 v{16+j}, v{16+j}, v7")
    k("v_cvt_pk_bf16_f32 v24, v16, v17"); k("v_cvt_pk_bf16_f32 v25, v18, v19")
    k("v_and_b32 v3, 15, v1"); k("v_lshlrev_b32 v9, 10, v3"); k("v_lshl_add_u32 v9, v2, 3, v9")
    k("s_lshl_b32 s3, s2, 5"); k(f"s_add_u32 s3, s3, {WS_Y:#x}")
    k("v_cmp_gt_u32 vcc, 2, v3"); k("s_and_saveexec_b64 s[32:33], vcc")
    k(f"buffer_store_dwordx2 v[24:25], v9, s[{sWS}:{sWS+3}], s3 offen")
    k(f"{end}:")
    k("s_endpgm")
    return k, 112, 112
```

```python
import sys
from asmlib import *
from common import *
import k0, k1
def assemble(kernels, launches, path):
    hdr = open(f"cdna_kernels/{NAME}.s.ref").read().split("; Override launch")[0]
    out = [hdr.rstrip("\n")]
    for (kn, g, b, lds) in launches:
        out.append(f"; @launch kernel={kn} grid=({g},1,1) block=({b},1,1) lds={lds}")
    out.append('.amdgcn_target "amdgcn-amd-amdhsa--gfx950"')
    out.append(".text")
    ok = True
    for (k, nfv, accum) in kernels:
        fix_hazards(k)
        k.resolve()
        errs = k.check()
        for e in errs[:20]: print(e)
        if errs: ok = False
        print(f"[{k.name}] {len(k.ins)} instrs ~{k.nbytes_est()} bytes, {len(errs)} errors, nops={sum(1 for i in k.ins if i.op=='s_nop')}")
        out.append(kernel_text(k, nfv, accum))
    out.append('.section .rodata,"a"')
    for (k, nfv, accum) in kernels: out.append(desc_text(k.name, nfv, accum))
    open(path, "w").write("\n".join(out))
    return ok
if __name__ == "__main__":
    import k2, moe
    ks = [k0.gen_k0(), moe.gen_m1(), moe.gen_m2(), k1.gen_k1(), k2.gen_k2()]
    assemble(ks, [("ln_kernel", 256, 512, 0), ("moe1_kernel", 86, 256, 40960), ("moe2_kernel", 32, 256, 53248),
                  ("attn_kernel", 256, 256, 131072), ("oproj_kernel", 256, 256, 131072)], "t2.s")
```

```python
from build import *
import k2, moe
def empty(name):
    k = Kern(name); k("s_endpgm"); return k, 8, 8
ks = [k0.gen_k0(), moe.gen_m1(), moe.gen_m2(), k1.gen_k1(), k2.gen_k2(), empty("nop_kernel")]
base = [("ln_kernel", 256, 512, 0), ("moe1_kernel", 86, 256, 40960), ("moe2_kernel", 32, 256, 53248),
              ("attn_kernel", 256, 256, 131072), ("oproj_kernel", 256, 256, 131072)]
assemble(ks, base + [("nop_kernel", 1, 64, 0)] * 3, "t2_p3.s")
ks = [k0.gen_k0(), moe.gen_m1(), moe.gen_m2(), k1.gen_k1(), k2.gen_k2(), empty("nop_kernel")]
assemble(ks, [("nop_kernel", 256, 64, 0)] * 6 + base, "t2_p6.s")
```

```python
import re

REG_RE = re.compile(r'\b([vas])\[(\d+):(\d+)\]|\b([vas])(\d+)\b|\b(vcc|exec|m0|scc)\b')

def regs_of(tok):
    out = []
    for m in REG_RE.finditer(tok):
        if m.group(1):
            out += [(m.group(1), i) for i in range(int(m.group(2)), int(m.group(3)) + 1)]
        elif m.group(4):
            out.append((m.group(4), int(m.group(5))))
        else:
            out.append((m.group(6), 0))
    return out

TRANS = ("v_exp_f32", "v_log_f32", "v_rcp_f32", "v_rsq_f32", "v_sqrt_f32", "v_sin_f32", "v_cos_f32")

class Ins:
    __slots__ = ("text", "op", "defs", "uses", "kind", "tag", "wait", "srcc", "comment")
    def __init__(self, text, tag=None):
        self.text = text; self.tag = tag; self.wait = None; self.srcc = []
        t = text.split(";")[0].strip()
        if t.endswith(":") or t.startswith("."):
            self.op = "label" if t.endswith(":") else "dir"; self.kind = "label"; self.defs = []; self.uses = []; return
        sp = t.split(None, 1)
        op = sp[0]; self.op = op
        rest = sp[1] if len(sp) > 1 else ""
        ops = [o.strip() for o in re.split(r',(?![^\[]*\])', rest)] if rest else []
        R = [regs_of(o) for o in ops]
        flat = lambda l: [x for y in l for x in y]
        d, u = [], []
        if op.startswith("v_mfma"):
            self.kind = "mfma"; d = R[0]; u = flat(R[1:]); self.srcc = R[3]
        elif op.startswith("ds_read") or op.startswith("ds_bpermute") or op.startswith("ds_swizzle") or op.startswith("ds_permute"):
            self.kind = "ds"; d = R[0]; u = flat(R[1:])
        elif op.startswith("ds_"):
            self.kind = "ds"; u = flat(R)
        elif op.startswith("buffer_load") or op.startswith("global_load"):
            self.kind = "vmem"
            if re.search(r'\blds\b', rest) or "_lds_" in op:
                u = flat(R) + [("m0", 0)]
            else:
                d = R[0]; u = flat(R[1:])
        elif op.startswith("buffer_store") or op.startswith("global_store"):
            self.kind = "vmem"; u = flat(R)
        elif op.startswith("buffer_atomic") or op.startswith("global_atomic"):
            self.kind = "vmem"; u = flat(R)
            if re.search(r'\bsc0\b', rest): d = R[0]
        elif op.startswith("buffer_inv") or op.startswith("buffer_wbl2"):
            self.kind = "vmem"
        elif op.startswith("s_load") or op.startswith("s_memtime") or op.startswith("s_memrealtime"):
            self.kind = "smem"; d = R[0]; u = flat(R[1:])
        elif op in ("s_waitcnt", "s_barrier", "s_nop", "s_endpgm", "s_sleep", "s_setprio") or op.startswith("s_branch") or op.startswith("s_cbranch"):
            self.kind = "ctl"
            if "scc" in op: u = [("scc", 0)]
            if "vcc" in op: u = [("vcc", 0)]
            if "exec" in op: u = [("exec", 0)]
        elif op.startswith("s_cmp") or op.startswith("s_bitcmp"):
            self.kind = "salu"; d = [("scc", 0)]; u = flat(R)
        elif op.startswith("s_"):
            self.kind = "salu"; d = R[0] + [("scc", 0)]; u = flat(R[1:])
            if "saveexec" in op: d = d + [("exec", 0)]; u = u + [("exec", 0)]
            if op.startswith("s_addc") or op.startswith("s_subb") or op.startswith("s_cselect"): u = u + [("scc", 0)]
            if op.startswith("s_mov") or op.startswith("s_getpc") or op.startswith("s_cselect") or op.startswith("s_mul") or op.startswith("s_getreg"): d = R[0]
        elif op.startswith("v_"):
            self.kind = "valu"
            if op.startswith("v_permlane") and "swap" in op:
                d = R[0] + R[1]; u = R[0] + R[1]
            elif op.startswith("v_add_co") or op.startswith("v_sub_co") or op.startswith("v_addc_co") or op.startswith("v_subb_co"):
                d = R[0] + R[1]; u = flat(R[2:])
            else:
                d = R[0]; u = flat(R[1:])
                if op.startswith("v_fmac") or op.startswith("v_dot2c") or op.startswith("v_writelane") or "_dpp" in op or "dpp" in rest or "row_" in rest or "quad_perm" in rest:
                    u = u + R[0]
        else:
            raise ValueError("unknown op " + text)
        self.defs = d; self.uses = u

    def is_dpp(self):
        return "_dpp" in self.op or "row_" in self.text or "quad_perm" in self.text
    def is_trans(self):
        return any(self.op.startswith(t) for t in TRANS)
    def states(self):
        if self.kind == "label": return 0
        if self.op == "s_nop": return int(self.text.split()[1], 0) + 1
        return 1
    def passes(self):
        if "16x16x32" in self.op: return 4
        if "32x32x16" in self.op: return 8
        raise ValueError(self.op)

class Wait(Ins):
    def __init__(self, vm=None, lgkm=None):
        Ins.__init__(self, "s_waitcnt vmcnt(0)")
        self.wait = (vm, lgkm)

class Kern:
    def __init__(self, name):
        self.name = name; self.ins = []; self._lab = 0
    def I(self, text, tag=None):
        if isinstance(text, Ins): self.ins.append(text); return text
        if isinstance(text, (list, tuple)):
            for t in text: self.I(t)
            return
        i = Ins(text, tag); self.ins.append(i); return i
    __call__ = I
    def label(self, base="L"):
        self._lab += 1; return f"{self.name}_{base}{self._lab}"
    def wait(self, vm=None, lgkm=None): self.ins.append(Wait(vm, lgkm))

    def resolve(self):
        vm = []; lg = []; waited = set()
        for i in self.ins:
            if i.kind in ("vmem", "ds", "smem") and i.tag is not None:
                assert i.tag not in waited, f"op tagged {i.tag} issued after a wait on that tag: {i.text}"
            if isinstance(i, Wait):
                v, l = i.wait
                if v: waited.add(v)
                if l: waited.add(l)
                parts = []
                if v is not None:
                    if v == 0: n = 0
                    else:
                        idx = [k for k, t in enumerate(vm) if t == v]
                        assert idx, f"vm tag {v} not issued before wait in {self.name}"
                        n = len(vm) - 1 - idx[-1]
                    n = min(n, 52)
                    parts.append(f"vmcnt({n})")
                if l is not None:
                    if l == 0: n = 0
                    else:
                        idx = [k for k, t in enumerate(lg) if t == l]
                        assert idx, f"lgkm tag {l} not issued"
                        n = len(lg) - 1 - idx[-1]
                    n = min(n, 15)
                    parts.append(f"lgkmcnt({n})")
                i.text = "s_waitcnt " + " ".join(parts)
            elif i.kind == "vmem": vm.append(i.tag)
            elif i.kind == "ds": lg.append(i.tag)

    def check(self, verbose=True):
        errs = []
        ins = self.ins
        pos = []; p = 0
        for i in ins:
            pos.append(p); p += i.states()
        lastw = {}
        lastc = {}
        laststore = {}
        pend_vm = []; pend_lg = []
        def dist(a, b):
            return pos[b] - pos[a] - ins[a].states() + (ins[a].states() - 1 if ins[a].op == "s_nop" else 0)
        for k, i in enumerate(ins):
            if i.kind == "label": continue
            if i.op == "s_waitcnt":
                m = re.search(r'vmcnt\((\d+)\)', i.text)
                if m:
                    n = int(m.group(1)); pend_vm = pend_vm[len(pend_vm) - n:] if n < len(pend_vm) else pend_vm
                    if n == 0: pend_vm = []
                m = re.search(r'lgkmcnt\((\d+)\)', i.text)
                if m:
                    n = int(m.group(1))
                    if n == 0: pend_lg = []
                    else:
                        sm = [e for e in pend_lg if ins[e[0]].kind == "smem"]; dsl = [e for e in pend_lg if ins[e[0]].kind != "smem"]
                        pend_lg = sm + (dsl[len(dsl) - n:] if n < len(dsl) else dsl)
                continue
            touched = set(i.defs) | set(i.uses)
            for (j, ds) in pend_vm + pend_lg:
                if ds & touched:
                    errs.append(f"[wait] {self.name}#{k} '{i.text}' touches pending dst of #{j} '{ins[j].text}'")
            def need(j, n, why):
                d = pos[k] - pos[j] - ins[j].states()
                if d < n: errs.append(f"[haz {why}] {self.name}#{k} '{i.text}' needs {n} states after #{j} '{ins[j].text}', has {d}")
            for r in set(i.uses):
                j = lastw.get(r)
                if j is None: continue
                w = ins[j]
                if w.kind == "valu" and r[0] in "va":
                    if i.kind == "mfma": need(j, 2, "valu->mfma")
                    if i.kind == "valu":
                        if w.is_trans() and not i.is_trans(): need(j, 1, "trans")
                        if i.op.startswith("v_permlane"): need(j, 2, "permlane")
                        if i.is_dpp(): need(j, 2, "dpp")
                        if i.op.startswith("v_readlane") or i.op.startswith("v_readfirstlane"): need(j, 1, "readlane")
                    if w.is_trans() and i.kind in ("vmem", "ds"): need(j, 1, "trans->mem")
                if w.kind == "valu" and (r[0] == "s" or r[0] == "vcc"):
                    if i.kind == "valu": need(j, 4 if i.op.startswith("v_readlane") or i.op.startswith("v_writelane") else 2, "valu sgpr->valu")
                    if i.kind == "vmem": need(j, 5, "valu sgpr->vmem")
                    if i.kind in ("salu", "ctl", "smem"): need(j, 1, "valu sgpr->salu(pad)")
                if w.kind == "salu" and r == ("m0", 0) and i.kind == "vmem": need(j, 1, "m0")
                if w.kind == "mfma":
                    ps = w.passes()
                    if i.kind == "mfma":
                        if r in i.srcc and r not in (set(i.uses) - set(i.srcc)):
                            if i.srcc == w.defs and i.passes() == ps: pass
                            else: need(j, {4: 6, 8: 10}[ps], "mfma D->C overlap")
                        else: need(j, {4: 8, 8: 12}[ps], "mfma D->AB")
                    else: need(j, {4: 8, 8: 12}[ps], "mfma D->read")
            for r in set(i.defs):
                j = lastw.get(r)
                if j is not None and ins[j].kind == "mfma" and i.kind != "mfma":
                    need(j, {4: 8, 8: 12}[ins[j].passes()], "mfma D WAW")
                if j is not None and ins[j].kind == "mfma" and i.kind == "mfma" and r not in i.srcc:
                    need(j, {4: 6, 8: 10}[ins[j].passes()], "mfma D WAW mfma")
                j = lastc.get(r)
                if j is not None and i.kind == "valu": need(j, {4: 3, 8: 7}[ins[j].passes()], "srcC WAR")
                j = laststore.get(r)
                if j is not None: need(j, 2 if i.kind == "valu" else 1, "store WAR")
            for r in i.defs: lastw[r] = k
            if i.kind == "mfma":
                for r in i.srcc: lastc[r] = k
            if i.kind == "vmem" and ("store_dwordx4" in i.op or "store_dwordx3" in i.op):
                for r in i.uses:
                    if r[0] in "va": laststore[r] = k
            if i.kind == "vmem":
                pend_vm.append((k, set(i.defs)))
                if len(pend_vm) > 63: errs.append(f"[vmcnt>63] {self.name}#{k} {i.text}")
            if i.kind in ("ds", "smem"): pend_lg.append((k, set(i.defs)))
        return errs

    def text(self):
        out = []
        for i in self.ins:
            out.append(i.text if i.kind == "label" else "  " + i.text)
        return "\n".join(out)

    def nbytes_est(self):
        return sum(0 if i.kind == "label" else (4 if i.kind in ("ctl", "salu") else 8) for i in self.ins)

def weave(k, mfmas, gaps):
    for i, m in enumerate(mfmas):
        if m is not None: k.I(m)
        g = gaps.get(i, []) if isinstance(gaps, dict) else gaps[i]
        for x in g: k.I(x)

def kernel_text(k, vgprs, accum, sgprs=96):
    n = k.name
    return (f".globl {n}\n.p2align 8\n.type {n},@function\n{n}:\n" + k.text() + "\n")

def desc_text(name, nfv, accum, sgprs=102):
    return (f".p2align 6\n.amdhsa_kernel {name}\n  .amdhsa_next_free_vgpr {nfv}\n  .amdhsa_next_free_sgpr {sgprs}\n"
            f"  .amdhsa_accum_offset {accum}\n  .amdhsa_group_segment_fixed_size 0\n  .amdhsa_kernarg_size 104\n"
            f"  .amdhsa_user_sgpr_count 2\n  .amdhsa_user_sgpr_kernarg_segment_ptr 1\n  .amdhsa_system_sgpr_workgroup_id_x 1\n"
            f"  .amdhsa_float_denorm_mode_32 3\n"
            f".end_amdhsa_kernel\n")

def fix_hazards(k, maxit=50):
    for _ in range(maxit):
        errs = [e for e in k.check() if e.startswith("[haz")]
        if not errs: return
        need = {}
        for e in errs:
            m = re.match(r"\[haz [^\]]*\] \S+?#(\d+) .* needs (\d+) states after #\d+ .*, has (-?\d+)$", e)
            idx, n, d = int(m.group(1)), int(m.group(2)), int(m.group(3))
            need[idx] = max(need.get(idx, 0), n - d)
        for idx in sorted(need, reverse=True):
            n = need[idx]
            while n > 0:
                c = min(n, 16)
                k.ins.insert(idx, Ins(f"s_nop {c-1}"))
                n -= c
    raise RuntimeError("hazard fixing did not converge")

class Sched:
    def __init__(self, k, budget=8):
        self.k = k; self.mf = []; self.vq = []; self.other = {}; self.budget = budget; self.pre = {}
    def mfma(self, text, needs=()):
        self.mf.append((text, set(needs))); return len(self.mf) - 1
    def valu(self, text, ready=-1, cost=None):
        if cost is None: cost = 8 if any(text.startswith(t) for t in TRANS) else 4
        self.vq.append((text, ready, cost)); return len(self.vq) - 1
    def at(self, gap, item):
        self.other.setdefault(gap, []).append(item)
    def before(self, idx, item):
        self.pre.setdefault(idx, []).append(item)
    def emit(self):
        k = self.k; head = 0; stats = []
        for i, (m, needs) in enumerate(self.mf):
            forced = 0
            if needs:
                mx = max(needs)
                while head <= mx:
                    assert self.vq[head][1] < i, f"valu '{self.vq[head][0]}' ready {self.vq[head][1]} but needed before mfma {i}"
                    k.I(self.vq[head][0]); forced += self.vq[head][2]; head += 1
            for x in self.pre.get(i, []): k.I(x)
            k.I(m)
            for x in self.other.get(i, []): k.I(x)
            b = self.budget
            while head < len(self.vq) and self.vq[head][1] <= i and self.vq[head][2] <= b:
                k.I(self.vq[head][0]); b -= self.vq[head][2]; head += 1
            stats.append(forced)
        rest = 0
        while head < len(self.vq):
            k.I(self.vq[head][0]); rest += self.vq[head][2]; head += 1
        extra = [g for g in self.other if g >= len(self.mf) or g < 0]
        assert not extra, extra
        return sum(stats), rest

class Plan:
    def __init__(self, k):
        self.k = k; self.mf = []; self.g = {}; self.mslots = set()
    def mfma(self, text):
        self.mf.append(text); return len(self.mf) - 1
    def _g(self, i):
        return self.g.setdefault(i, {"s": [], "m": [], "v": []})
    @staticmethod
    def mk(x): return x if isinstance(x, Ins) else Ins(x)
    @staticmethod
    def cls(x):
        if x.kind in ("ds", "vmem"): return "m"
        if x.kind == "valu": return "v"
        return "s"
    @staticmethod
    def cost(x):
        if x.kind == "valu": return 8 if x.is_trans() else 4
        if x.kind == "label": return 0
        return 4
    def load(self, i):
        g = self._g(i)
        return sum(self.cost(x) for x in g["m"]) + sum(self.cost(x) for x in g["v"]) + 4 * max(0, len(g["s"]) - 1)
    def put(self, i, x, cls=None):
        x = self.mk(x); self._g(i)[cls or self.cls(x)].append(x); return i
    def fit(self, x, lo, hi, strict_after=None):
        x = self.mk(x); c = self.cls(x)
        hi = max(hi, lo)
        best = None
        for i in range(lo, hi + 1):
            g = self._g(i)
            if c == "s":
                add = 0 if not g["s"] else 4
                if add == 0 and not (g["m"] and self.load(i) >= 8 and False): return self.put(i, x)
                l = self.load(i) + add
            else:
                l = self.load(i) + self.cost(x)
                if c == "m" and g["m"]: l += 2
            if l <= 8: return self.put(i, x)
            if best is None or l < best[0]: best = (l, i)
        return self.put(best[1], x)
    def stream(self, items, lo, hi, spread=False, win=None):
        order = {"s": 0, "m": 1, "v": 2}
        cur = lo; pc = -1; n = len(items); prev = None
        for idx, x in enumerate(items):
            x = self.mk(x); c = order[self.cls(x)]
            start = cur if c >= pc else cur + 1
            if prev is not None and ("m0", 0) in prev.defs and ("m0", 0) in x.uses: start = cur + 1
            if spread: start = max(start, lo + (idx * (hi - lo + 1)) // n)
            g, cc = self.fit_inorder(x, start, hi, win)
            cur = g; pc = order[cc]; prev = x
        return cur
    def fit_inorder(self, x, start, hi, win=None):
        c = self.cls(x)
        if start > hi:
            return self.put(hi, x, cls="v"), "v"
        top = hi if win is None else min(hi, start + win)
        for i in range(start, top + 1):
            g = self._g(i)
            if c == "s":
                if not g["s"]: return self.put(i, x), c
            else:
                l = self.load(i) + self.cost(x)
                if c == "m" and g["m"]: continue
                if c == "v" and i in self.mslots and not g["m"]: l += 4
                if l <= (12 if c == "m" and i in self.mslots else 8): return self.put(i, x), c
        if win is None: return self.put(hi, x, cls="v"), "v"
        best = min(range(start, top + 1), key=lambda i: (self.load(i) + (4 if c == "m" and self._g(i)["m"] else 0), i))
        return self.put(best, x), c
    def emit(self):
        k = self.k; over = 0
        keys = sorted(self.g)
        assert keys[0] >= -1 and keys[-1] <= len(self.mf) - 1, (keys[0], keys[-1], len(self.mf))
        for i in range(-1, len(self.mf)):
            if i >= 0: k.I(self.mf[i])
            g = self.g.get(i)
            if g:
                for c in "smv":
                    for x in g[c]: k.I(x)
                if 0 <= i < len(self.mf) - 1: over += max(0, self.load(i) - 8)
        return over
```

```python
import sys
from asmlib import *
from common import *
import k0, k1
def assemble(kernels, launches, path):
    hdr = open(f"cdna_kernels/{NAME}.s.ref").read().split("; Override launch")[0]
    out = [hdr.rstrip("\n")]
    for (kn, g, b, lds) in launches:
        out.append(f"; @launch kernel={kn} grid=({g},1,1) block=({b},1,1) lds={lds}")
    out.append('.amdgcn_target "amdgcn-amd-amdhsa--gfx950"')
    out.append(".text")
    ok = True
    for (k, nfv, accum) in kernels:
        fix_hazards(k)
        k.resolve()
        errs = k.check()
        for e in errs[:5]: print(e)
        if errs: ok = False
        print(f"[{k.name}] {len(k.ins)} instrs ~{k.nbytes_est()} bytes, {len(errs)} errors, nops={sum(1 for i in k.ins if i.op=='s_nop')}")
        out.append(kernel_text(k, nfv, accum))
    out.append('.section .rodata,"a"')
    for (k, nfv, accum) in kernels: out.append(desc_text(k.name, nfv, accum))
    open(path, "w").write("\n".join(out))
    return ok
if __name__ == "__main__":
    import k2, moe
    prof = "prof" in sys.argv
    ks = [k0.gen_k0(), moe.gen_m1(), moe.gen_m2(), k1.gen_k1(prof=prof), k2.gen_k2(prof=prof)]
    assemble(ks, [("ln_kernel", 256, 512, 0), ("moe1_kernel", 86, 256, 40960), ("moe2_kernel", 32, 256, 53248),
                  ("attn_kernel", 256, 256, 131072), ("oproj_kernel", 256, 256, 131072)], "t2p.s" if prof else "t2.s")
```

```python
NAME = "recurrent_scan__sliding_block_cached__moe_arch_mod__prompt"
KA = dict(x=0, k=8, v=16, wq=24, wo=32, bx=40, wr=48, wg=56, wu=64, wd=72, out=80, dbg=88, ws=96)
SZ = dict(x=2048*512*2, k=32*2048*128*2, v=32*2048*128*2, wq=512*4096*2, wo=4096*512*2, wr=1024,
          wg=512*1376*2, wu=512*1376*2, wd=1376*512*2, out=2048*512*2, dbg=256, ws=1 << 28)
WS_XN = 1 << 20
WS_KEY = 0
WS_H = WS_KEY + 8192
WS_Y = WS_H + 8192
WS_IDX = WS_Y + 4096
WS_FLAG = WS_IDX + 4096
WS_XF = 64 << 10
WS_XB = 24 << 20
WS_O = 4 << 20

def srd(k, d, plo, size):
    k(f"s_mov_b32 s{d}, s{plo}")
    k(f"s_mov_b32 s{d+1}, s{plo+1}")
    k(f"s_mov_b32 s{d+2}, {size:#x}")
    k(f"s_mov_b32 s{d+3}, 0x00020000")

def wave_sum_dpp(k, v):
    for mod in ("quad_perm:[1,0,3,2] row_mask:0xf bank_mask:0xf", "quad_perm:[2,3,0,1] row_mask:0xf bank_mask:0xf",
                "row_half_mirror row_mask:0xf bank_mask:0xf", "row_mirror row_mask:0xf bank_mask:0xf",
                "row_bcast:15 row_mask:0xa bank_mask:0xf", "row_bcast:31 row_mask:0xc bank_mask:0xf"):
        k("s_nop 1")
        k(f"v_add_f32_dpp v{v}, v{v}, v{v} {mod}")

def wave_umax_dpp(k, v):
    for mod in ("quad_perm:[1,0,3,2] row_mask:0xf bank_mask:0xf", "quad_perm:[2,3,0,1] row_mask:0xf bank_mask:0xf",
                "row_half_mirror row_mask:0xf bank_mask:0xf", "row_mirror row_mask:0xf bank_mask:0xf",
                "row_bcast:15 row_mask:0xa bank_mask:0xf", "row_bcast:31 row_mask:0xc bank_mask:0xf"):
        k("s_nop 1")
        k(f"v_max_u32_dpp v{v}, v{v}, v{v} {mod}")

WS_DBG = 48 << 20
def stamp_ins(i):
    return [f"s_memrealtime s[{60+4*i}:{61+4*i}]", f"s_memtime s[{62+4*i}:{63+4*i}]"]
def stamp(k, i):
    for x in stamp_ins(i): k(x)
def stamp_dump(k, n, sWS, swave, region):
    k("s_waitcnt lgkmcnt(0)")
    k("s_mov_b64 exec, -1")
    k(f"s_lshl_b32 s3, s2, 3"); k(f"s_add_u32 s3, s3, s{swave}"); k("s_lshl_b32 s3, s3, 6"); k(f"s_add_u32 s3, s3, {WS_DBG + region*(1<<20):#x}")
    k("v_mov_b32 v1, 0")
    for i in range(n):
        k(f"v_mov_b32 v2, s{60+4*i}"); k(f"v_mov_b32 v3, s{62+4*i}")
        k(f"buffer_store_dwordx2 v[2:3], v1, s[{sWS}:{sWS+3}], s3 offen offset:{8*i}")
        k("s_nop 1")
```

```python
from asmlib import *
from common import *

def gen_k0(name="ln_kernel"):
    k = Kern(name)
    end = k.label("end")
    k("s_cmp_ge_u32 s2, 256"); k(f"s_cbranch_scc1 {end}")
    k(f"s_load_dwordx2 s[4:5], s[0:1], {KA['x']}")
    k(f"s_load_dwordx2 s[6:7], s[0:1], {KA['wr']}")
    k(f"s_load_dwordx2 s[8:9], s[0:1], {KA['ws']}")
    k("v_and_b32 v1, 63, v0")
    k("v_lshrrev_b32 v2, 6, v0")
    k("s_lshl_b32 s3, s2, 13")
    k("v_lshlrev_b32 v3, 4, v0")
    k("v_add_u32 v3, s3, v3")
    k("v_lshlrev_b32 v20, 4, v1")
    k("s_lshl_b32 s10, s2, 3")
    k("v_add_u32 v2, s10, v2")
    k("s_waitcnt lgkmcnt(0)")
    k("global_load_dwordx4 v[4:7], v3, s[4:5]", tag="x")
    k("global_load_dwordx4 v[8:11], v20, s[6:7]", tag="w")
    k("v_lshrrev_b32 v21, 6, v2")
    k("v_lshlrev_b32 v21, 16, v21")
    k("v_lshrrev_b32 v22, 2, v1")
    k("v_lshl_add_u32 v21, v22, 12, v21")
    k("v_bfe_u32 v22, v2, 4, 2")
    k("v_lshl_add_u32 v21, v22, 10, v21")
    k("v_and_b32 v22, 3, v1")
    k("v_lshl_add_u32 v21, v22, 8, v21")
    k("v_and_b32 v22, 15, v2")
    k("v_lshl_add_u32 v21, v22, 4, v21")
    k(f"v_add_u32 v21, {WS_XN:#x}, v21")
    k("v_lshlrev_b32 v23, 2, v2")
    k(f"v_add_u32 v23, {WS_KEY:#x}, v23")
    k("v_sub_u32 v24, 0xffff, v2")
    k("v_and_b32 v25, 15, v0"); k("v_lshlrev_b32 v25, 2, v25"); k("s_lshl_b32 s3, s2, 6"); k(f"s_add_u32 s3, s3, {WS_XF:#x}"); k("v_add_u32 v25, s3, v25"); k("v_mov_b32 v26, 0")
    k("s_lshl_b32 s3, s2, 2"); k(f"s_add_u32 s3, s3, {WS_FLAG:#x}"); k("v_mov_b32 v27, s3")
    k("global_store_dword v25, v26, s[8:9]")
    k("global_store_dword v27, v26, s[8:9]")
    k("s_waitcnt vmcnt(3)")
    for i in range(4):
        k(f"v_lshlrev_b32 v{12+2*i}, 16, v{4+i}")
        k(f"v_and_b32 v{13+2*i}, 0xffff0000, v{4+i}")
    k("v_add_f32 v25, v12, v13"); k("v_add_f32 v26, v14, v15"); k("v_add_f32 v27, v16, v17"); k("v_add_f32 v28, v18, v19")
    k("v_add_f32 v25, v25, v26"); k("v_add_f32 v27, v27, v28"); k("v_add_f32 v25, v25, v27")
    wave_sum_dpp(k, 25)
    k("s_nop 0")
    k("v_readlane_b32 s12, v25, 63")
    k("s_nop 1")
    k("v_mov_b32 v26, 0x3b000000")
    k("v_mul_f32 v26, s12, v26")
    for i in range(8): k(f"v_sub_f32 v{32+i}, v{12+i}, v26")
    k("v_mul_f32 v27, v32, v32"); k("v_mul_f32 v28, v33, v33")
    for i in range(2, 8, 2):
        k(f"v_fmac_f32 v27, v{32+i}, v{32+i}"); k(f"v_fmac_f32 v28, v{33+i}, v{33+i}")
    k("v_add_f32 v27, v27, v28")
    wave_sum_dpp(k, 27)
    k("s_nop 0")
    k("v_readlane_b32 s13, v27, 63")
    k("s_nop 1")
    k("v_mov_b32 v27, 0x3b000000")
    k("v_mul_f32 v27, s13, v27")
    k("v_cvt_pk_bf16_f32 v28, v26, v27")
    k("v_lshlrev_b32 v26, 16, v28")
    k("v_and_b32 v27, 0xffff0000, v28")
    k("v_add_f32 v27, 0x3727c5ac, v27")
    k("v_cvt_pk_bf16_f32 v27, v27, v27")
    k("v_lshlrev_b32 v27, 16, v27")
    k("v_sqrt_f32 v27, v27")
    for i in range(8): k(f"v_sub_f32 v{32+i}, v{12+i}, v26")
    k("v_cvt_pk_bf16_f32 v27, v27, v27")
    k("v_lshlrev_b32 v27, 16, v27")
    k("v_rcp_f32 v27, v27")
    for i in range(4): k(f"v_cvt_pk_bf16_f32 v{40+i}, v{32+2*i}, v{33+2*i}")
    for i in range(4):
        k(f"v_lshlrev_b32 v{32+2*i}, 16, v{40+i}")
        k(f"v_and_b32 v{33+2*i}, 0xffff0000, v{40+i}")
    for i in range(8): k(f"v_mul_f32 v{32+i}, v{32+i}, v27")
    for i in range(4): k(f"v_cvt_pk_bf16_f32 v{40+i}, v{32+2*i}, v{33+2*i}")
    k("global_store_dwordx4 v21, v[40:43], s[8:9]")
    k("s_waitcnt vmcnt(1)")
    k("v_mov_b32 v25, 0")
    for i in range(4): k(f"v_dot2c_f32_bf16 v25, v{40+i}, v{8+i}")
    k("s_nop 2")
    wave_sum_dpp(k, 25)
    k("v_cvt_pk_bf16_f32 v25, v25, v25")
    k("v_bfe_i32 v26, v25, 15, 1")
    k("v_and_b32 v26, 0x7fff, v26")
    k("v_or_b32 v26, 0x8000, v26")
    k("v_xor_b32 v25, v25, v26")
    k("v_lshl_or_b32 v25, v25, 16, v24")
    k("s_mov_b32 exec_lo, 0"); k("s_mov_b32 exec_hi, 0x80000000")
    k("global_store_dword v23, v25, s[8:9]")
    k(f"{end}:")
    k("s_endpgm")
    return k, 48, 48
```

```python
from asmlib import *
from common import *
import struct

MF = "v_mfma_f32_16x16x32_bf16"
def q4(f, r): return f"{f}[{r}:{r+3}]"
def q2(f, r): return f"{f}[{r}:{r+1}]"

aW, aK, aV, oK, oV, oW, oL = 4, 8, 12, 20, 24, 26, 28
AF = 32; S = 32; P = 64; NM = 80; LS = 96; TMP = 104; ACC = 128
QF, KF, VF = 0, 64, 128
def acc(T, qb): return ACC + (T * 4 + qb) * 4
sWS, sWQ, sK, sV = 8, 12, 16, 20
sWAVE, sH, sQT, sKS, sBW, sBX, sOW, sOX, sM0W, sM0K, sBKV, sOKV, sSC, sROT, sOO = 24, 25, 26, 27, 28, 29, 30, 31, 32, 33, 34, 35, 36, 37, 38
QSCALE = struct.unpack("<I", struct.pack("<f", 1.4426950408889634 * 128 ** -0.5))[0]
LTHRESH = 0x4b800000

def gen_k1(name="attn_kernel", upfront=32, vpace=4, prof=False):
    k = Kern(name)
    end = k.label("end")
    k("s_cmp_ge_u32 s2, 256"); k(f"s_cbranch_scc1 {end}")
    if prof: stamp(k, 0)
    k(f"s_load_dwordx4 s[40:43], s[0:1], {KA['k']}")
    k(f"s_load_dwordx2 s[44:45], s[0:1], {KA['wq']}")
    k(f"s_load_dwordx2 s[46:47], s[0:1], {KA['ws']}")
    k("v_and_b32 v1, 63, v0")
    k("v_lshrrev_b32 v2, 6, v0")
    k("s_and_b32 s3, s2, 7"); k("s_lshr_b32 s4, s2, 3")
    k(f"v_readfirstlane_b32 s{sWAVE}, v2")
    k("s_lshl_b32 s3, s3, 2"); k("s_and_b32 s5, s4, 3"); k(f"s_add_u32 s{sH}, s3, s5")
    k(f"s_lshr_b32 s{sQT}, s4, 2")
    k("v_lshrrev_b32 v2, 4, v1")
    k("v_and_b32 v3, 15, v1")
    k(f"v_lshlrev_b32 v{oL}, 4, v1")
    k("v_lshlrev_b32 v29, 2, v2"); k("v_xor_b32 v29, v29, v3"); k("v_lshlrev_b32 v29, 4, v29")
    k(f"v_lshl_add_u32 v{oW}, v2, 13, v29")
    k(f"v_add_u32 v{oW+1}, {4*8192-1024}, v{oW}")
    k(f"s_lshl_b32 s{sBW}, s{sH}, 8"); k(f"s_lshl_b32 s3, s{sWAVE}, 16"); k(f"s_add_u32 s{sBW}, s{sBW}, s3")
    k(f"s_lshl_b32 s3, s{sQT}, 2"); k(f"s_add_u32 s3, s3, s{sWAVE}")
    k(f"s_lshl_b32 s{sBX}, s3, 16"); k(f"s_add_u32 s{sBX}, s{sBX}, {WS_XN:#x}")
    k(f"s_lshl_b32 s{sOO}, s3, 19"); k(f"s_lshl_b32 s4, s{sH}, 14"); k(f"s_add_u32 s{sOO}, s{sOO}, s4"); k(f"s_add_u32 s{sOO}, s{sOO}, {WS_O:#x}")
    k(f"s_lshl_b32 s{sM0W}, s{sWAVE}, 11")
    k(f"s_lshl_b32 s{sM0K}, s{sWAVE}, 12")
    k(f"s_lshl_b32 s{sBKV}, s{sH}, 19"); k(f"s_add_u32 s{sBKV}, s{sBKV}, {1536*256}"); k(f"s_add_u32 s{sBKV}, s{sBKV}, s{sM0K}")
    k(f"s_lshl_b32 s{sROT}, s{sQT}, 1")
    k(f"s_mov_b32 s{sSC}, {QSCALE:#x}")
    k("s_waitcnt lgkmcnt(0)")
    srd(k, sWQ, 44, SZ['wq']); srd(k, sWS, 46, SZ['ws'])

    def D(ks):
        return [[f"s_add_u32 s{sKS}, s{sROT}, {ks}", f"s_and_b32 s{sKS}, s{sKS}, 15", f"s_lshl_b32 s{sOW}, s{sKS}, 18", f"s_add_u32 s{sOW}, s{sOW}, s{sBW}",
                 f"s_add_u32 m0, s{sM0W}, {ks*8192}", "s_nop 0",
                 Ins(f"buffer_load_dwordx4 v{oW}, s[{sWQ}:{sWQ+3}], s{sOW} offen lds", tag=f"D{ks}")],
                [Ins(f"buffer_load_dwordx4 v{oW+1}, s[{sWQ}:{sWQ+3}], s{sOW} offen offset:1024 lds", tag=f"D{ks}")]]
    def X(ks):
        g = []
        for qb in range(4):
            pre = [f"s_add_u32 s{sKS}, s{sROT}, {ks}", f"s_and_b32 s{sKS}, s{sKS}, 15", f"s_lshl_b32 s{sOX}, s{sKS}, 12", f"s_add_u32 s{sOX}, s{sOX}, s{sBX}"] if qb == 0 else []
            g.append(pre + [Ins(f"buffer_load_dwordx4 {q4('a', (ks*4+qb)*4)}, v{oL}, s[{sWS}:{sWS+3}], s{sOX} offen" + (f" offset:{qb*1024}" if qb else ""), tag=f"X{ks}")])
        return g
    def KV(j):
        base = (j % 4) * 32768
        g = []
        for i in range(4):
            pre = [f"s_add_u32 s{sKS}, s{sQT}, {j}", f"s_and_b32 s{sKS}, s{sKS}, 7", f"s_lshl_b32 s{sOKV}, s{sKS}, 14", f"s_add_u32 s{sOKV}, s{sOKV}, s{sBKV}",
                   f"s_add_u32 m0, s{sM0K}, {base}", "s_nop 0"] if i == 0 else []
            g.append(pre + [Ins(f"buffer_load_dwordx4 v{oK+i}, s[{sK}:{sK+3}], s{sOKV} offen" + (f" offset:{i*1024}" if i else "") + " lds", tag=f"KV{j}")])
        for i in range(4):
            pre = [f"s_add_u32 m0, s{sM0K}, {base+16384}", "s_nop 0"] if i == 0 else []
            g.append(pre + [Ins(f"buffer_load_dwordx4 v{oV+(i&1)}, s[{sV}:{sV+3}], s{sOKV} offen" + (f" offset:{i*1024}" if i else "") + " lds", tag=f"KV{j}")])
        return g
    queue = D(0) + D(1) + X(0)
    for p in range(1, 6):
        queue += D(2*p) + D(2*p+1) + X(2*p-1) + (X(2*p) if p < 5 else [])
    queue += X(10) + D(12) + D(13) + D(14) + D(15) + X(11) + X(12) + X(13) + X(14) + X(15)
    assert len(queue) == 96
    for g in queue[:6]:
        for x in g: k(x)
    srd(k, sK, 40, SZ['k']); srd(k, sV, 42, SZ['v'])
    k("v_bfe_u32 v29, v1, 2, 2")
    k("v_and_b32 v30, 3, v1")
    k("v_lshl_add_u32 v31, v2, 3, v29"); k("v_lshlrev_b32 v31, 8, v31"); k("v_lshl_add_u32 v31, v30, 4, v31")
    for s in range(4):
        k(f"v_xor_b32 v{aW+s}, {s}, v29"); k(f"v_lshl_add_u32 v{aW+s}, v{aW+s}, 6, v31")
    for g in queue[6:upfront]:
        for x in g: k(x)
    for s in range(4):
        k(f"v_add_u32 v31, {4*s}, v2"); k("v_xor_b32 v31, v31, v3"); k("v_lshlrev_b32 v31, 4, v31"); k(f"v_lshl_add_u32 v{aK+s}, v3, 8, v31")
    k("v_lshl_add_u32 v31, v2, 2, v29")
    k(f"v_and_b32 v{TMP}, 7, v31"); k(f"v_lshlrev_b32 v{TMP}, 1, v{TMP}")
    k(f"v_lshrrev_b32 v{TMP+1}, 1, v30"); k(f"v_xor_b32 v{TMP}, v{TMP}, v{TMP+1}")
    k(f"v_and_b32 v{TMP+1}, 1, v30"); k(f"v_lshlrev_b32 v{TMP+1}, 3, v{TMP+1}"); k(f"v_lshl_add_u32 v{TMP+1}, v31, 8, v{TMP+1}")
    k(f"v_add_u32 v{TMP+1}, 16384, v{TMP+1}")
    for T in range(8):
        k(f"v_xor_b32 v{aV+T}, {2*T}, v{TMP}"); k(f"v_lshl_add_u32 v{aV+T}, v{aV+T}, 4, v{TMP+1}")
    for i in range(4):
        k(f"v_add_u32 v31, {4*i}, v2"); k("v_xor_b32 v31, v31, v3"); k("v_lshlrev_b32 v31, 4, v31"); k(f"v_lshl_add_u32 v{oK+i}, v2, 8, v31")
    for i in range(2):
        k(f"v_add_u32 v31, {4*i}, v2"); k("v_lshlrev_b32 v31, 1, v31"); k("v_xor_b32 v31, v31, v3"); k("v_lshlrev_b32 v31, 4, v31"); k(f"v_lshl_add_u32 v{oV+i}, v2, 8, v31")
    for i in range(8): k(f"v_mov_b32 v{LS+i}, 0")

    steps = [[(ks, T) for T in range(8)] for ks in range(12)]
    steps += [[(ks, 2*s+t) for ks in range(12, 16) for t in range(2)] for s in range(4)]
    def wreads(st):
        out = []
        for f, (ks, T) in enumerate(steps[st]):
            s, t = T >> 1, T & 1
            for u in range(2):
                off = (ks % 8) * 8192 + u * 1024 + t * 8
                out.append(Ins(f"ds_read_b64_tr_b16 {q2('v', AF + (st&1)*32 + f*4 + u*2)}, v{aW+s} offset:{off}", tag=f"W{st}"))
        return out
    if prof: stamp(k, 1)
    k.wait(vm="D1"); k("s_barrier")
    if prof: stamp(k, 2)
    for x in wreads(0): k(x)

    sc = Sched(k)
    qfin = {}
    rest = queue[upfront:]
    firstuse = set()
    for st in range(16):
        g0 = len(sc.mf)
        need_x = max(ks for ks, _ in steps[st])
        pre = [Wait(vm=f"X{need_x}" if st <= 12 else None, lgkm=0)]
        bar = None
        if st % 2 == 1 and st <= 9: bar = f"D{st+2}"
        if st == 11: bar = "D15"
        if st == 15: bar = "KV0"
        sc.before(g0, pre[0])
        if bar:
            sc.at(g0, Wait(vm=bar)); sc.at(g0, "s_barrier")
        for f, (ks, T) in enumerate(steps[st]):
            for qb in range(4):
                a = acc(T, qb)
                c = q4('v', a) if (T, qb) in firstuse else "0"
                firstuse.add((T, qb))
                sc.mfma(f"{MF} {q4('v', a)}, {q4('v', AF + (st&1)*32 + f*4)}, {q4('a', (ks*4+qb)*4)}, {c}")
        if st < 15:
            rd = wreads(st + 1)
            if st + 1 == 8:
                for s in range(4): sc.valu(f"v_add_u32 v{aW+s}, 0x10000, v{aW+s}", ready=g0 - 1)
                sc.mf[g0] = (sc.mf[g0][0], {len(sc.vq) - 1})
            for n, x in enumerate(rd): sc.at(g0 + 1 + (n * 3) // 2, x)
        if st >= 13 or True:
            pass
        if st >= 12:
            s = st - 12
            last = len(sc.mf) - 1
            for qb in range(4):
                a0, a1 = acc(2*s, qb), acc(2*s+1, qb)
                rdy = last + 2
                for i in range(4): sc.valu(f"v_mul_f32 v{a0+i}, s{sSC}, v{a0+i}", ready=rdy)
                for i in range(4): sc.valu(f"v_mul_f32 v{a1+i}, s{sSC}, v{a1+i}", ready=rdy)
                sc.valu(f"v_cvt_pk_bf16_f32 v{a0}, v{a0}, v{a0+1}", ready=rdy); sc.valu(f"v_cvt_pk_bf16_f32 v{a0+1}, v{a0+2}, v{a0+3}", ready=rdy)
                sc.valu(f"v_cvt_pk_bf16_f32 v{a0+2}, v{a1}, v{a1+1}", ready=rdy); sc.valu(f"v_cvt_pk_bf16_f32 v{a0+3}, v{a1+2}, v{a1+3}", ready=rdy)
                for i in range(4): idv = sc.valu(f"v_accvgpr_write_b32 a{QF + (qb*4+s)*4 + i}, v{a0+i}", ready=rdy)
                qfin[(qb, s)] = idv
    nq = len(sc.mf)
    g = 2
    for grp in rest:
        for x in grp: sc.at(g, x)
        g += vpace
    for j, freeg in ((0, 3*32 + 1), (1, 7*32 + 1), (2, 11*32 + 1)):
        g = max(g, freeg + 1)
        for grp in KV(j):
            for x in grp: sc.at(g, x)
            g += vpace
    assert g < 15 * 32, g
    for i, (t, r, c) in enumerate(sc.vq):
        if r >= nq: sc.vq[i] = (t, nq - 1, c)

    def kreads(p):
        slot = (p // 2) % 4
        out = []
        for kb2 in range(2):
            for s in range(4):
                off = (slot & 1) * 32768 + (p & 1) * 8192 + kb2 * 4096
                out.append(Ins(f"ds_read_b128 {q4('a', KF + (p&1)*32 + (kb2*4+s)*4)}, v{aK+s} offset:{off}", tag=f"K{p}"))
        return out
    def vreads(p):
        slot = (p // 2) % 4
        out = []
        for T in range(8):
            for u in range(2):
                off = (slot & 1) * 32768 + (p & 1) * 8192 + u * 4096
                out.append(Ins(f"ds_read_b64_tr_b16 {q2('a', VF + (p&1)*32 + T*4 + u*2)}, v{aV+T} offset:{off}", tag=f"V{p}"))
        return out
    for n, x in enumerate(kreads(0)): sc.at(15*32 + 2 + 2*n, x)
    for n, grp in enumerate(KV(3)):
        for x in grp: sc.at(15*32 + 3 + 3*n + (n % 2), x)

    pdone = {}
    nmdone = {}
    def Sblk(p, qb):
        first = len(sc.mf)
        for kb2 in range(2):
            d = S + qb * 8 + kb2 * 4
            for s in range(4):
                c = q4('v', d) if s else ("0" if p == 0 else q4('v', NM + 4*qb))
                needs = set()
                if p == 0: needs.add(qfin[(qb, 3)])
                if p == 1 and s == 0: needs.add(nmdone[qb])
                sc.mfma(f"{MF} {q4('v', d)}, {q4('a', KF + (p&1)*32 + (kb2*4+s)*4)}, {q4('a', QF + (qb*4+s)*4)}, {c}", needs)
        last = len(sc.mf) - 1
        b = S + qb * 8
        rdy = last + 3
        if p == 0:
            t = TMP + 2 * qb
            sc.valu(f"v_max3_f32 v{t}, v{b}, v{b+1}, v{b+2}", ready=rdy); sc.valu(f"v_max3_f32 v{t+1}, v{b+3}, v{b+4}, v{b+5}", ready=rdy)
            sc.valu(f"v_max3_f32 v{t}, v{t}, v{b+6}, v{b+7}", ready=rdy); sc.valu(f"v_max_f32 v{t}, v{t}, v{t+1}", ready=rdy)
            for sw in ("v_permlane32_swap_b32", "v_permlane16_swap_b32"):
                sc.valu(f"v_mov_b32 v{t+1}, v{t}", ready=rdy, cost=8)
                sc.valu(f"{sw} v{t}, v{t+1}", ready=rdy)
                sc.valu(f"v_max_f32 v{t}, v{t}, v{t+1}", ready=rdy)
            for i in range(4): idv = sc.valu(f"v_sub_f32 v{NM+4*qb+i}, 0, v{t}", ready=rdy)
            nmdone[qb] = idv
            for i in range(8): sc.valu(f"v_sub_f32 v{b+i}, v{b+i}, v{t}", ready=rdy)
        E = lambda i: sc.valu(f"v_exp_f32 v{b+i}, v{b+i}", ready=rdy)
        A = lambda i: sc.valu(f"v_add_f32 v{LS+2*qb+(i&1)}, v{LS+2*qb+(i&1)}, v{b+i}", ready=rdy)
        C = lambda i: sc.valu(f"v_cvt_pk_bf16_f32 v{P+4*qb+i}, v{b+2*i}, v{b+2*i+1}", ready=rdy)
        E(0); E(1); E(2); A(0); A(1); E(3); C(0); A(2); E(4); E(5); A(3); C(1); E(6); A(4); A(5); E(7); C(2); A(6); A(7)
        pdone[(p, qb)] = C(3)
        return first
    def PVblk(p, qb):
        first = len(sc.mf)
        for T in range(8):
            a = acc(T, qb)
            c = q4('v', a) if p else "0"
            sc.mfma(f"{MF} {q4('v', a)}, {q4('a', VF + (p&1)*32 + T*4)}, {q4('v', P + 4*qb)}, {c}", {pdone[(p, qb)]} if T == 0 else ())
        return first
    ofin = []
    def Ofin(qb, rdy):
        t = TMP + 8 + 2 * qb
        l0 = LS + 2 * qb
        sc.valu(f"v_add_f32 v{t}, v{l0}, v{l0+1}", ready=rdy)
        for sw in ("v_permlane32_swap_b32", "v_permlane16_swap_b32"):
            sc.valu(f"v_mov_b32 v{t+1}, v{t}", ready=rdy)
            sc.valu(f"{sw} v{t}, v{t+1}", ready=rdy)
            sc.valu(f"v_add_f32 v{t}, v{t}, v{t+1}", ready=rdy)
        sc.valu(f"v_mov_b32 v{l0}, v{t}", ready=rdy)
        sc.valu(f"v_rcp_f32 v{t}, v{t}", ready=rdy)
        for s in range(4):
            a0, a1 = acc(2*s, qb), acc(2*s+1, qb)
            for i in range(4): sc.valu(f"v_mul_f32 v{a0+i}, v{a0+i}, v{t}", ready=rdy)
            for i in range(4): sc.valu(f"v_mul_f32 v{a1+i}, v{a1+i}, v{t}", ready=rdy)
            sc.valu(f"v_cvt_pk_bf16_f32 v{a0}, v{a0}, v{a0+1}", ready=rdy); sc.valu(f"v_cvt_pk_bf16_f32 v{a0+1}, v{a0+2}, v{a0+3}", ready=rdy)
            sc.valu(f"v_cvt_pk_bf16_f32 v{a0+2}, v{a1}, v{a1+1}", ready=rdy); sc.valu(f"v_cvt_pk_bf16_f32 v{a0+3}, v{a1+2}, v{a1+3}", ready=rdy)
            sc.valu(f"s_add_u32 s3, s{sOO}, {s*4096}", ready=rdy, cost=0)
            sc.valu(f"buffer_store_dwordx4 {q4('v', a0)}, v{oL}, s[{sWS}:{sWS+3}], s3 offen" + (f" offset:{qb*1024}" if qb else ""), ready=rdy, cost=0)

    for p in range(16):
        g0 = len(sc.mf)
        sc.before(g0, Wait(lgkm=0))
        Sblk(p, 0)
        if p: PVblk(p-1, 2)
        Sblk(p, 1)
        if p: PVblk(p-1, 3)
        mid = len(sc.mf)
        Sblk(p, 2)
        PVblk(p, 0)
        if p == 15: o0 = len(sc.mf)
        Sblk(p, 3)
        PVblk(p, 1)
        gend = len(sc.mf)
        nh = mid - g0
        vr = vreads(p)
        if p % 4 == 0 and p > 0:
            for T in range(8): sc.before(g0, f"v_xor_b32 v{aV+T}, 0x10000, v{aV+T}")
        for n, x in enumerate(vr): sc.at(g0 + (n * (nh - 6)) // 16, x)
        sc.before(mid, Wait(lgkm=0))
        if p < 15:
            if p % 2 == 1:
                j = (p + 1) // 2
                sc.at(mid, Wait(vm=f"KV{j}")); sc.at(mid, "s_barrier")
                if j + 3 <= 7:
                    for n, grp in enumerate(KV(j + 3)):
                        for x in grp: sc.at(mid + 2 + 6 * n, x)
            if (p + 1) % 4 == 0:
                for s in range(4): sc.before(mid, f"v_xor_b32 v{aK+s}, 0x10000, v{aK+s}")
            for n, x in enumerate(kreads(p + 1)): sc.at(mid + 1 + 3 * n, x)
    PVblk(15, 2)
    Ofin(0, len(sc.mf) - 1)
    PVblk(15, 3)
    nm = len(sc.mf)
    Ofin(1, nm - 1); Ofin(2, nm - 1); Ofin(3, nm - 1)
    if prof:
        for x in stamp_ins(3): sc.at(255, x)
        for x in stamp_ins(4): sc.at(nq - 1, x)
        for x in stamp_ins(5): sc.at(nm - 1, x)
    forced, restv = sc.emit()
    if prof:
        stamp(k, 6); k("s_waitcnt vmcnt(0)"); stamp(k, 7); stamp_dump(k, 8, sWS, sWAVE, 0)
    print(f"[k1] mfma={nm} forced_valu_cycles={forced} tail_valu_cycles={restv}")
    k(f"{end}:")
    k("s_endpgm")
    return k, 512, 256
```

```python
from asmlib import *
from common import *
MF = "v_mfma_f32_16x16x32_bf16"
def q4(f, r): return f"{f}[{r}:{r+3}]"
def q2(f, r): return f"{f}[{r}:{r+1}]"
LOG2E = 0x3fb8aa3b

def silu_bf16(k, z, t):
    k(f"v_mul_f32 v{t}, 0xbfb8aa3b, v{z}")
    k(f"v_exp_f32 v{t}, v{t}")
    k(f"v_add_f32 v{t}, 1.0, v{t}")
    k(f"v_rcp_f32 v{t}, v{t}")
    k(f"v_mul_f32 v{z}, v{z}, v{t}")

def gen_k2(name="oproj_kernel", depth=7, prof=False):
    k = Kern(name)
    end = k.label("end")
    sWS, sWO, sY = 8, 12, 16
    sWAVE, sQ64, sNT, sOW, sOO, sM0 = 24, 25, 26, 27, 28, 29
    aT, oWO, oL = 4, 8, 12
    XR, XNR, YR, G = 16, 24, 32, 40
    AF = 56
    ACC = 88
    assert ACC + 64 <= 160
    k("s_cmp_ge_u32 s2, 256"); k(f"s_cbranch_scc1 {end}")
    if prof: stamp(k, 0)
    k(f"s_load_dwordx2 s[40:41], s[0:1], {KA['wo']}")
    k(f"s_load_dwordx2 s[42:43], s[0:1], {KA['ws']}")
    k(f"s_load_dwordx2 s[44:45], s[0:1], {KA['x']}")
    k(f"s_load_dwordx2 s[46:47], s[0:1], {KA['out']}")
    k("v_and_b32 v1, 63, v0"); k("v_lshrrev_b32 v2, 6, v0")
    k("s_and_b32 s3, s2, 7"); k("s_lshr_b32 s4, s2, 3")
    k(f"v_readfirstlane_b32 s{sWAVE}, v2")
    k("s_lshl_b32 s3, s3, 2"); k("s_and_b32 s5, s4, 3"); k(f"s_add_u32 s{sQ64}, s3, s5"); k(f"s_lshr_b32 s{sNT}, s4, 2")
    k(f"v_lshlrev_b32 v{oL}, 4, v1")
    k("v_lshrrev_b32 v2, 4, v1"); k("v_lshlrev_b32 v3, 1, v2"); k("v_and_b32 v13, 7, v1"); k("v_xor_b32 v3, v3, v13"); k("v_lshlrev_b32 v3, 4, v3")
    k("v_lshrrev_b32 v13, 3, v1"); k(f"v_lshl_add_u32 v{oWO}, v13, 10, v3")
    for i in range(1, 4): k(f"v_add_u32 v{oWO+i}, {i*7168}, v{oWO}")
    k(f"s_lshl_b32 s{sOW}, s{sNT}, 7"); k(f"s_lshl_b32 s3, s{sWAVE}, 20"); k(f"s_add_u32 s{sOW}, s{sOW}, s3")
    k(f"s_lshl_b32 s{sOO}, s{sQ64}, 19"); k(f"s_lshl_b32 s3, s{sWAVE}, 17"); k(f"s_add_u32 s{sOO}, s{sOO}, s3"); k(f"s_add_u32 s{sOO}, s{sOO}, {WS_O:#x}")
    k(f"s_lshl_b32 s{sM0}, s{sWAVE}, 15")
    k("s_waitcnt lgkmcnt(0)")
    srd(k, sWO, 40, SZ['wo']); srd(k, sWS, 42, SZ['ws'])
    k(f"s_load_dwordx2 s[48:49], s[42:43], {WS_IDX:#x}")
    def loads(i):
        g = []
        for n in range(4):
            pre = [f"s_add_u32 m0, s{sM0}, {(i%8)*4096}", "s_nop 0"] if n == 0 else []
            post = [f"s_add_u32 s{sOW}, s{sOW}, 32768"] if n == 3 else []
            g.append(pre + [Ins(f"buffer_load_dwordx4 v{oWO+n}, s[{sWO}:{sWO+3}], s{sOW} offen" + (f" offset:{n*1024}" if n else "") + " lds", tag=f"D{i}")] + post)
        for qb in range(4):
            post = [f"s_add_u32 s{sOO}, s{sOO}, 4096"] if qb == 3 else []
            g.append([Ins(f"buffer_load_dwordx4 {q4('a', (i%8)*16 + qb*4)}, v{oL}, s[{sWS}:{sWS+3}], s{sOO} offen" + (f" offset:{qb*1024}" if qb else ""), tag=f"O{i}")] + post)
        return g
    for i in range(2):
        for g in loads(i):
            for x in g: k(x)
    k("v_lshrrev_b32 v13, 3, v0"); k("v_and_b32 v14, 7, v0")
    k(f"s_lshl_b32 s3, s{sQ64}, 16"); k(f"s_lshl_b32 s4, s{sNT}, 7"); k("s_add_u32 s5, s3, s4")
    k("v_lshlrev_b32 v15, 10, v13"); k("v_lshl_add_u32 v15, v14, 4, v15"); k("v_add_u32 v15, s5, v15")
    k(f"v_add_u32 v{G+1}, 32768, v15")
    k(f"global_load_dwordx4 {q4('v', XR)}, v15, s[44:45]", tag="E")
    k(f"global_load_dwordx4 {q4('v', XR+4)}, v{G+1}, s[44:45]", tag="E")
    k(f"s_lshl_b32 s4, s{sNT}, 13"); k("s_add_u32 s5, s3, s4"); k(f"s_add_u32 s5, s5, {WS_XN:#x}")
    k(f"v_lshrrev_b32 v{G}, 2, v14"); k(f"v_lshlrev_b32 v{G}, 12, v{G}")
    k(f"v_lshrrev_b32 v{G+1}, 4, v13"); k(f"v_lshl_add_u32 v{G}, v{G+1}, 10, v{G}")
    k(f"v_and_b32 v{G+1}, 3, v14"); k(f"v_lshl_add_u32 v{G}, v{G+1}, 8, v{G}")
    k(f"v_and_b32 v{G+1}, 15, v13"); k(f"v_lshl_add_u32 v{G}, v{G+1}, 4, v{G}")
    k(f"buffer_load_dwordx4 {q4('v', XNR)}, v{G}, s[{sWS}:{sWS+3}], s5 offen", tag="E")
    k(f"buffer_load_dwordx4 {q4('v', XNR+4)}, v{G}, s[{sWS}:{sWS+3}], s5 offen offset:2048", tag="E")
    k(f"s_add_u32 s{sY}, s42, {WS_Y:#x}"); k(f"s_addc_u32 s{sY+1}, s43, 0"); k(f"s_mov_b32 s{sY+2}, 2048"); k(f"s_mov_b32 s{sY+3}, 0x00020000")
    k("s_waitcnt lgkmcnt(0)")
    k("s_and_b32 s48, s48, 0xffff"); k("s_sub_u32 s48, 0xffff, s48"); k("s_and_b32 s49, s49, 0xffff"); k("s_sub_u32 s49, 0xffff, s49")
    k(f"s_lshl_b32 s3, s{sQ64}, 6"); k("s_sub_u32 s48, s48, s3"); k("s_sub_u32 s49, s49, s3")
    k(f"s_lshl_b32 s4, s{sNT}, 7")
    k(f"v_lshl_add_u32 v{G+2}, v14, 4, s4")
    for e in range(2):
        k(f"v_add_u32 v{G+3}, {32*e}, v13")
        k(f"v_mov_b32 v{G+4}, 0x10000")
        k(f"v_cmp_eq_u32 vcc, s48, v{G+3}"); k("s_nop 1"); k(f"v_cndmask_b32 v{G+4}, v{G+4}, 0, vcc")
        k(f"v_mov_b32 v{G+5}, 1024")
        k(f"v_cmp_eq_u32 vcc, s49, v{G+3}"); k("s_nop 1"); k(f"v_cndmask_b32 v{G+4}, v{G+4}, v{G+5}, vcc")
        k(f"v_add_u32 v{G+6+e}, v{G+4}, v{G+2}")
        k(f"buffer_load_dwordx4 {q4('v', YR+4*e)}, v{G+6+e}, s[{sY}:{sY+3}], 0 offen", tag="E")
    for i in range(2, depth - 1):
        for g in loads(i):
            for x in g: k(x)
    k("v_bfe_u32 v13, v1, 2, 2"); k("v_lshl_add_u32 v13, v2, 2, v13")
    k("v_and_b32 v14, 3, v1")
    k("v_bfe_u32 v3, v13, 1, 2"); k("v_lshlrev_b32 v3, 1, v3"); k("v_lshrrev_b32 v2, 1, v14"); k("v_xor_b32 v3, v3, v2")
    k("v_and_b32 v2, 1, v14"); k("v_lshlrev_b32 v2, 3, v2"); k("v_lshl_add_u32 v2, v13, 7, v2"); k(f"v_add_u32 v2, s{sM0}, v2")
    for T in range(4):
        k(f"v_xor_b32 v{aT+T}, {2*T}, v3"); k(f"v_lshl_add_u32 v{aT+T}, v{aT+T}, 4, v2")
    if prof: stamp(k, 1)
    k.wait(vm="E")
    if prof: stamp(k, 2)
    for g in loads(depth - 1):
        for x in g: k(x)
    for i in range(8):
        k(f"v_lshlrev_b32 v{G+2*i}, 16, v{XNR+i}"); k(f"v_and_b32 v{G+2*i+1}, 0xffff0000, v{XNR+i}")
        k(f"v_lshlrev_b32 v2, 16, v{YR+i}"); k(f"v_and_b32 v3, 0xffff0000, v{YR+i}")
        k(f"v_add_f32 v{G+2*i}, v{G+2*i}, v2"); k(f"v_add_f32 v{G+2*i+1}, v{G+2*i+1}, v3")
        k(f"v_cvt_pk_bf16_f32 v2, v{G+2*i}, v{G+2*i+1}")
        k(f"v_lshlrev_b32 v{G+2*i}, 16, v2"); k(f"v_and_b32 v{G+2*i+1}, 0xffff0000, v2")
        silu_bf16(k, G+2*i, 2); silu_bf16(k, G+2*i+1, 3)
        k(f"v_cvt_pk_bf16_f32 v2, v{G+2*i}, v{G+2*i+1}")
        k(f"v_lshlrev_b32 v{G+2*i}, 16, v2"); k(f"v_and_b32 v{G+2*i+1}, 0xffff0000, v2")
    def treads(i):
        return [Ins(f"ds_read_b64_tr_b16 {q2('v', AF + (i&1)*16 + T*4 + u*2)}, v{aT+T} offset:{(i%8)*4096 + u*2048}") for T in range(4) for u in range(2)]
    if prof: stamp(k, 3)
    k.wait(vm="D0")
    for x in treads(0): k(x)
    sc = Sched(k)
    for i in range(32):
        g0 = len(sc.mf)
        sc.before(g0, Wait(vm=f"D{i+1}" if i < 31 else "O31", lgkm=0))
        for T in range(4):
            for qb in range(4):
                a = ACC + (T*4+qb)*4
                sc.mfma(f"{MF} {q4('v', a)}, {q4('v', AF + (i&1)*16 + T*4)}, {q4('a', (i%8)*16 + qb*4)}, {q4('v', a) if i else '0'}")
        if i < 31:
            for n, x in enumerate(treads(i+1)): sc.at(g0 + n, x)
        if i + depth < 32:
            for n, g in enumerate(loads(i + depth)):
                for x in g: sc.at(g0 + 2*n + 1, x)
    if prof:
        for x in stamp_ins(4): sc.at(255, x)
    sc.emit()
    if prof: stamp(k, 5)
    k("v_and_b32 v2, 15, v1"); k("v_lshrrev_b32 v3, 4, v1")
    k("v_mul_u32_u24 v2, 272, v2"); k("v_lshl_add_u32 v2, v3, 4, v2"); k(f"v_add_u32 v2, s{sM0}, v2")
    for T in range(4):
        for qb in range(4):
            k(f"ds_write_b128 v2, {q4('v', ACC + (T*4+qb)*4)} offset:{qb*16*272 + T*64}")
    k("v_lshrrev_b32 v13, 3, v0"); k("v_and_b32 v14, 7, v0")
    k("v_mul_u32_u24 v3, 272, v13"); k("v_lshl_add_u32 v3, v14, 5, v3"); k("v_add_u32 v13, 0x10000, v3")
    k("s_waitcnt lgkmcnt(0)"); k("s_barrier")
    R = ACC
    for e in range(2):
        for w in range(4):
            for hlf in range(2):
                k(f"ds_read_b128 {q4('v', R + e*32 + w*8 + hlf*4)}, v{3 if w < 2 else 13} offset:{(w&1)*32768 + e*32*272 + hlf*16}", tag=f"R{e}")
    for e in range(2):
        k.wait(lgkm=0 if prof else f"R{e}")
        b = R + e * 32
        for j in range(8):
            k(f"v_add_f32 v{b+j}, v{b+j}, v{b+8+j}"); k(f"v_add_f32 v{b+16+j}, v{b+16+j}, v{b+24+j}")
        for j in range(8): k(f"v_add_f32 v{b+j}, v{b+j}, v{b+16+j}")
        for j in range(4):
            k(f"v_cvt_pk_bf16_f32 v{b+8+j}, v{b+2*j}, v{b+2*j+1}")
            k(f"v_lshlrev_b32 v{b+2*j}, 16, v{b+8+j}"); k(f"v_and_b32 v{b+2*j+1}, 0xffff0000, v{b+8+j}")
            k(f"v_mul_f32 v{b+2*j}, v{b+2*j}, v{G+8*e+2*j}"); k(f"v_mul_f32 v{b+2*j+1}, v{b+2*j+1}, v{G+8*e+2*j+1}")
            k(f"v_cvt_pk_bf16_f32 v{b+8+j}, v{b+2*j}, v{b+2*j+1}")
            k(f"v_lshlrev_b32 v{b+2*j}, 16, v{b+8+j}"); k(f"v_and_b32 v{b+2*j+1}, 0xffff0000, v{b+8+j}")
            k(f"v_lshlrev_b32 v{b+16}, 16, v{XR+4*e+j}"); k(f"v_and_b32 v{b+17}, 0xffff0000, v{XR+4*e+j}")
            k(f"v_add_f32 v{b+2*j}, v{b+2*j}, v{b+16}"); k(f"v_add_f32 v{b+2*j+1}, v{b+2*j+1}, v{b+17}")
            k(f"v_cvt_pk_bf16_f32 v{b+12+j}, v{b+2*j}, v{b+2*j+1}")
        if e: k("v_add_u32 v15, 32768, v15")
        k(f"global_store_dwordx4 v15, {q4('v', b+12)}, s[46:47]")
    if prof:
        stamp(k, 6); k("s_waitcnt vmcnt(0)"); stamp(k, 7); stamp_dump(k, 8, sWS, sWAVE, 1)
    k(f"{end}:")
    k("s_endpgm")
    return k, 160 + 128, 160
```

```python
from asmlib import *
from common import *
from k2 import silu_bf16
import struct

MF = "v_mfma_f32_16x16x32_bf16"
def q4(f, r): return f"{f}[{r}:{r+3}]"
def q2(f, r): return f"{f}[{r}:{r+1}]"

aW, aK, aV, oK, oV, oW, oL = 4, 8, 12, 20, 24, 26, 28
AF = 32; S = 32; P = 64; NM = 80; LS = 96; TMP = 104; oWO = 120; ACC = 128
QF = 0
KB = [64, 96, 192]; VB = [128, 160, 224]
def acc(T, qb): return ACC + (T * 4 + qb) * 4
sWS, sWQ, sK, sV, sWO, sY = 8, 12, 16, 20, 48, 52
(sWAVE, sH, sQT, sKS, sBW, sBX, sOW, sOX, sM0W, sM0K, sBKV, sOKV, sSC, sROT, sOO, sKS2, sOWO, sM0O, sRT, sCT, sOOL, sFL, sST) = range(24, 47)
sRW, sBWO, sRO, sBOL, sKSL = 47, 96, 97, 98, 99
QSCALE = struct.unpack("<I", struct.pack("<f", 1.4426950408889634 * 128 ** -0.5))[0]
WREG = [4, 0, 1, 2, 3]
def zslot(z): return WREG[z >> 1] * 32768 + (z & 1) * 4096
def wslot(g): return zslot(g % 8)

def gen_k4(name="main_kernel", upfront=24, prof=False, tailq=2, codepf=0, wopf=(1, 3, 5), pk=True, kvpf=False, exp=(), n1=3, pollat=14, xrot=4, opre=6, xdelay=50, xpoll=20):
    k = Kern(name)
    if prof is True: prof = ["start", "issued", "qend", "aend", "pub", "go", "oend"]
    if not prof: prof = []
    def st_(k, nm):
        if nm in prof: stamp(k, prof.index(nm))
    end = k.label("end")
    k("s_cmp_ge_u32 s2, 256"); k(f"s_cbranch_scc1 {end}")
    st_(k, 'start')
    k(f"s_load_dwordx4 s[56:59], s[0:1], {KA['k']}")
    k(f"s_load_dwordx4 s[4:7], s[0:1], {KA['wq']}")
    k(f"s_load_dwordx2 s[92:93], s[0:1], {KA['ws']}")
    k("v_and_b32 v1, 63, v0")
    k("v_lshrrev_b32 v2, 6, v0")
    k("s_and_b32 s3, s2, 7"); k(f"s_lshr_b32 s{sKS}, s2, 3")
    k(f"v_readfirstlane_b32 s{sWAVE}, v2")
    k(f"s_lshr_b32 s{sKSL}, s3, 1"); k(f"s_and_b32 s{sRT}, s3, 1"); k(f"s_lshl_b32 s{sRT}, s{sRT}, 3"); k(f"s_and_b32 s{sKS2}, s{sKS}, 7"); k(f"s_add_u32 s{sRT}, s{sRT}, s{sKS2}")
    k(f"s_lshr_b32 s{sCT}, s{sKS}, 3")
    k("s_lshl_b32 s3, s3, 2"); k(f"s_and_b32 s{sKS2}, s{sKS}, 3"); k(f"s_add_u32 s{sH}, s3, s{sKS2}")
    k(f"s_lshr_b32 s{sQT}, s{sKS}, 2")
    k("v_lshrrev_b32 v2, 4, v1")
    k("v_and_b32 v3, 15, v1")
    k(f"v_lshlrev_b32 v{oL}, 4, v1")
    k("v_lshlrev_b32 v29, 2, v2"); k("v_xor_b32 v29, v29, v3"); k("v_lshlrev_b32 v29, 4, v29")
    k(f"v_lshl_add_u32 v{oW}, v2, 13, v29")
    k(f"v_add_u32 v{oW+1}, {4*8192-1024}, v{oW}")
    k(f"s_lshl_b32 s{sBW}, s{sH}, 8"); k(f"s_lshl_b32 s3, s{sWAVE}, 16"); k(f"s_add_u32 s{sBW}, s{sBW}, s3")
    k(f"s_lshl_b32 s3, s{sQT}, 2"); k(f"s_add_u32 s3, s3, s{sWAVE}")
    k(f"s_lshl_b32 s{sBX}, s3, 16"); k(f"s_add_u32 s{sBX}, s{sBX}, {WS_XN:#x}")
    k(f"s_lshl_b32 s{sOO}, s3, 19"); k(f"s_lshl_b32 s3, s{sH}, 14"); k(f"s_add_u32 s{sOO}, s{sOO}, s3"); k(f"s_add_u32 s{sOO}, s{sOO}, {WS_O:#x}")
    k(f"s_lshl_b32 s{sM0W}, s{sWAVE}, 11")
    k(f"s_lshl_b32 s{sM0K}, s{sWAVE}, 12")
    k(f"s_lshl_b32 s{sROT}, s{sQT}, 1"); k(f"s_mul_i32 s3, s{sKS2}, {xrot}"); k(f"s_add_u32 s{sROT}, s{sROT}, s3")
    k("s_waitcnt lgkmcnt(0)")
    srd(k, sWQ, 4, SZ['wq']); srd(k, sWS, 92, SZ['ws'])

    def D(ks):
        return [f"s_add_u32 s{sKS}, s{sROT}, {ks}", f"s_and_b32 s{sKS}, s{sKS}, 15", f"s_lshl_b32 s{sOW}, s{sKS}, 18", f"s_add_u32 s{sOW}, s{sOW}, s{sBW}",
                f"s_add_u32 m0, s{sM0W}, {ks*8192}",
                Ins(f"buffer_load_dwordx4 v{oW}, s[{sWQ}:{sWQ+3}], s{sOW} offen lds", tag=f"D{ks}"),
                Ins(f"buffer_load_dwordx4 v{oW+1}, s[{sWQ}:{sWQ+3}], s{sOW} offen offset:1024 lds", tag=f"D{ks}")]
    def X(ks):
        g = [f"s_add_u32 s{sKS}, s{sROT}, {ks}", f"s_and_b32 s{sKS}, s{sKS}, 15", f"s_lshl_b32 s{sOX}, s{sKS}, 12", f"s_add_u32 s{sOX}, s{sOX}, s{sBX}"]
        for qb in range(4):
            g.append(Ins(f"buffer_load_dwordx4 {q4('a', (ks*4+qb)*4)}, v{oL}, s[{sWS}:{sWS+3}], s{sOX} offen" + (f" offset:{qb*1024}" if qb else ""), tag=f"X{ks}"))
        return g
    def KV(j):
        base = (j % 4) * 32768
        g = [f"s_add_u32 s{sKS}, s{sQT}, {j}", f"s_and_b32 s{sKS}, s{sKS}, 7", f"s_lshl_b32 s{sOKV}, s{sKS}, 14", f"s_add_u32 s{sOKV}, s{sOKV}, s{sBKV}",
             f"s_add_u32 m0, s{sM0K}, {base}"]
        for i in range(4):
            g.append(Ins(f"buffer_load_dwordx4 v{oK+i}, s[{sK}:{sK+3}], s{sOKV} offen" + (f" offset:{i*1024}" if i else "") + " lds", tag=f"KV{j}"))
        g2 = [f"s_add_u32 m0, s{sM0K}, {base+16384}"]
        for i in range(4):
            g2.append(Ins(f"buffer_load_dwordx4 v{oV+(i&1)}, s[{sV}:{sV+3}], s{sOKV} offen" + (f" offset:{i*1024}" if i else "") + " lds", tag=f"KV{j}"))
        return g, g2
    def WO(gi, nop=False):
        g = [f"s_add_u32 m0, s{sM0O}, {wslot(gi)}"] + (["s_nop 0"] if nop else [])
        for n in range(4):
            g.append(Ins(f"buffer_load_dwordx4 v{oWO+n}, s[{sWO}:{sWO+3}], s{sOWO} offen" + (f" offset:{n*1024}" if n else "") + " lds", tag=f"WO{gi}"))
        g += [f"s_add_u32 s{sRW}, s{sRW}, 65536", f"s_and_b32 s{sRW}, s{sRW}, 0xf0000", f"s_or_b32 s{sOWO}, s{sRW}, s{sBWO}"]
        return g
    groups = [D(0), D(1), X(0)]
    for p in range(1, 6):
        groups += [D(2*p), D(2*p+1), X(2*p-1)] + ([X(2*p)] if p < 5 else [])
    groups += [X(10), D(12), D(13), D(14), D(15), X(11), X(12), X(13), X(14), X(15)]
    def nv(g): return sum(1 for x in g if isinstance(x, Ins))
    cnt = 0; up = []
    while cnt < upfront:
        g = groups.pop(0); up.append(g); cnt += nv(g)
    for g in up[:3]:
        for x in g: k(x)
    if codepf:
        pcl = k.label("pc")
        k("s_getpc_b64 s[94:95]"); k(f"{pcl}:")
        k(f"s_lshr_b32 s3, s2, 3"); k(f"s_lshl_b32 s3, s3, 2"); k(f"s_add_u32 s3, s3, s{sWAVE}"); k("s_lshl_b32 s3, s3, 9")
        k(f"s_min_u32 s3, s3, {end}-{pcl}-512")
        k("v_lshl_add_u32 v29, v1, 3, s3")
        k(f"global_load_dwordx2 v[{TMP+12}:{TMP+13}], v29, s[94:95]")
    k("v_bfe_u32 v29, v1, 2, 2")
    k("v_and_b32 v30, 3, v1")
    k("v_lshl_add_u32 v31, v2, 3, v29"); k("v_lshlrev_b32 v31, 8, v31"); k("v_lshl_add_u32 v31, v30, 4, v31")
    for s in range(4):
        k(f"v_xor_b32 v{aW+s}, {s}, v29"); k(f"v_lshl_add_u32 v{aW+s}, v{aW+s}, 6, v31")
    for g in up[3:]:
        for x in g: k(x)
    if kvpf:
        k(f"s_lshl_b32 s3, s{sH}, 19"); k(f"s_add_u32 s3, s3, {1536*256}"); k(f"s_lshl_b32 s{sKS2}, s{sQT}, 14"); k(f"s_add_u32 s3, s3, s{sKS2}")
        k(f"s_and_b32 s{sKS2}, s{sWAVE}, 1"); k(f"s_lshl_b32 s{sKS2}, s{sKS2}, 13"); k(f"s_add_u32 s3, s3, s{sKS2}")
        k(f"s_cmp_ge_u32 s{sWAVE}, 2"); k("s_cselect_b32 s94, s58, s56"); k("s_cselect_b32 s95, s59, s57")
        k("v_lshl_add_u32 v31, v1, 7, s3")
        k(f"global_load_dword v{TMP+14}, v31, s[94:95]")
    su = []
    A = su.append
    for (d, pl, sz) in ((sK, 56, SZ['k']), (sV, 58, SZ['v']), (sWO, 6, SZ['wo'])):
        A(f"s_mov_b32 s{d}, s{pl}"); A(f"s_mov_b32 s{d+1}, s{pl+1}"); A(f"s_mov_b32 s{d+2}, {sz:#x}"); A(f"s_mov_b32 s{d+3}, 0x00020000")
    A(f"s_lshl_b32 s{sBKV}, s{sH}, 19"); A(f"s_add_u32 s{sBKV}, s{sBKV}, {1536*256}"); A(f"s_add_u32 s{sBKV}, s{sBKV}, s{sM0K}")
    A(f"s_mov_b32 s{sSC}, {QSCALE:#x}")
    A(f"s_lshl_b32 s{sM0O}, s{sWAVE}, 13")
    A(f"s_lshl_b32 s{sBWO}, s{sKSL}, 20"); A(f"s_lshl_b32 s3, s{sCT}, 8"); A(f"s_add_u32 s{sBWO}, s{sBWO}, s3"); A(f"s_lshl_b32 s3, s{sWAVE}, 6"); A(f"s_add_u32 s{sBWO}, s{sBWO}, s3")
    A(f"s_lshl_b32 s3, s{sCT}, 1"); A(f"s_add_u32 s3, s3, s{sRT}"); A(f"s_and_b32 s3, s3, 7")
    A(f"s_lshl_b32 s{sRW}, s3, 17"); A(f"s_or_b32 s{sOWO}, s{sRW}, s{sBWO}")
    A(f"s_lshl_b32 s{sRO}, s3, 14"); A(f"s_lshl_b32 s3, s{sWAVE}, 13"); A(f"s_add_u32 s{sRO}, s{sRO}, s3"); A(f"s_and_b32 s{sRO}, s{sRO}, 0x1ffff")
    A(f"s_lshr_b32 s{sFL}, s{sRT}, 1"); A(f"s_lshl_b32 s{sFL}, s{sFL}, 7"); A(f"s_lshl_b32 s3, s{sKSL}, 5"); A(f"s_add_u32 s{sFL}, s{sFL}, s3"); A(f"s_add_u32 s{sFL}, s{sFL}, {WS_FLAG:#x}")
    sv = []
    A = sv.append
    for s in range(4):
        A(f"v_add_u32 v31, {4*s}, v2"); A("v_xor_b32 v31, v31, v3"); A("v_lshlrev_b32 v31, 4, v31"); A(f"v_lshl_add_u32 v{aK+s}, v3, 8, v31")
    A("v_lshl_add_u32 v31, v2, 2, v29")
    A(f"v_and_b32 v{TMP}, 7, v31"); A(f"v_lshlrev_b32 v{TMP}, 1, v{TMP}")
    A(f"v_lshrrev_b32 v{TMP+1}, 1, v30"); A(f"v_xor_b32 v{TMP}, v{TMP}, v{TMP+1}")
    A(f"v_and_b32 v{TMP+1}, 1, v30"); A(f"v_lshlrev_b32 v{TMP+1}, 3, v{TMP+1}"); A(f"v_lshl_add_u32 v{TMP+1}, v31, 8, v{TMP+1}")
    A(f"v_add_u32 v{TMP+1}, 16384, v{TMP+1}")
    for T in range(8):
        A(f"v_xor_b32 v{aV+T}, {2*T}, v{TMP}"); A(f"v_lshl_add_u32 v{aV+T}, v{aV+T}, 4, v{TMP+1}")
    for i in range(4):
        A(f"v_add_u32 v31, {4*i}, v2"); A("v_xor_b32 v31, v31, v3"); A("v_lshlrev_b32 v31, 4, v31"); A(f"v_lshl_add_u32 v{oK+i}, v2, 8, v31")
    for i in range(2):
        A(f"v_add_u32 v31, {4*i}, v2"); A("v_lshlrev_b32 v31, 1, v31"); A("v_xor_b32 v31, v31, v3"); A("v_lshlrev_b32 v31, 4, v31"); A(f"v_lshl_add_u32 v{oV+i}, v2, 8, v31")
    for i in range(8): A(f"v_mov_b32 v{LS+i}, 0")
    A(f"v_lshrrev_b32 v31, 2, v1"); A(f"v_lshlrev_b32 v31, 10, v31"); A(f"v_lshl_add_u32 v{oWO}, v30, 4, v31")
    for i in range(1, 4): A(f"v_add_u32 v{oWO+i}, {i*15360}, v{oWO}")

    steps = [[(ks, T) for T in range(8)] for ks in range(12)]
    steps += [[(ks, 2*s+t) for ks in range(12, 16) for t in range(2)] for s in range(4)]
    def wreads(st):
        out = []
        for f, (ks, T) in enumerate(steps[st]):
            s, t = T >> 1, T & 1
            for u in range(2):
                off = (ks % 8) * 8192 + u * 1024 + t * 8
                out.append(Ins(f"ds_read_b64_tr_b16 {q2('v', AF + (st&1)*32 + f*4 + u*2)}, v{aW+s} offset:{off}", tag=f"W{st}"))
        return out
    st_(k, 'issued')
    k.wait(vm="D1"); k("s_barrier")
    for x in wreads(0): k(x)
    k.wait(vm="X0", lgkm=0)

    pl = Plan(k)
    seen = set()
    for st in range(16):
        for f, (ks, T) in enumerate(steps[st]):
            for qb in range(4):
                a = acc(T, qb)
                pl.mfma(f"{MF} {q4('v', a)}, {q4('v', AF + (st&1)*32 + f*4)}, {q4('a', (ks*4+qb)*4)}, {q4('v', a) if (T, qb) in seen else '0'}")
                seen.add((T, qb))
    NQ = 512
    units = [(p, qb) for p in range(16 - tailq) for qb in range(4)] + [(p, qb) for qb in range(4) for p in range(16 - tailq, 16)]
    def buf(p): return 2 if (tailq >= 2 and p == 15) else p & 1
    Spos = {}; PVpos = {}
    seenO = set()
    def Sblk(i):
        p, qb = units[i]
        Spos[i] = len(pl.mf)
        for kb2 in range(2):
            d = S + (i % 4) * 8 + kb2 * 4
            for s in range(4):
                c = q4('v', d) if s else ("0" if p == 0 else q4('v', NM + 4*qb))
                pl.mfma(f"{MF} {q4('v', d)}, {q4('a', KB[buf(p)] + (kb2*4+s)*4)}, {q4('a', QF + (qb*4+s)*4)}, {c}")
    def PVblk(i):
        p, qb = units[i]
        PVpos[i] = len(pl.mf)
        for T in range(8):
            a = acc(T, qb)
            pl.mfma(f"{MF} {q4('v', a)}, {q4('a', VB[buf(p)] + T*4)}, {q4('v', P + 4*(i%4))}, {q4('v', a) if qb in seenO else '0'}")
        seenO.add(qb)
    for i in range(64):
        Sblk(i)
        if i >= 2: PVblk(i - 2)
    PVblk(62); PVblk(63)
    NMF = len(pl.mf)
    LAST = NMF - 1

    for st in range(16):
        g0 = st * 32
        if st > 0:
            need_x = max(ks for ks, _ in steps[st])
            pl.put(g0 - 1, Wait(vm=f"X{need_x}" if st <= 12 else None, lgkm=0))
        bar = None
        if st % 2 == 1 and st <= 9: bar = f"D{st+2}"
        if st == 11: bar = "D15"
        if st == 15: bar = "KV0"
        r0 = g0
        if bar:
            pl.put(g0, Wait(vm=bar)); pl.put(g0 + 1, "s_barrier"); r0 = g0 + 1
        if st == 7:
            for s in range(4): pl.put(g0 - 2 + s // 2, f"v_add_u32 v{aW+s}, 0x10000, v{aW+s}")
        if st < 15: pl.stream(wreads(st + 1), r0, g0 + 25, spread=True, win=1)
    pl.stream(su, 0, 60)
    pl.stream(sv, 0, 90)
    flat = [x for g in groups for x in g]
    gq = pl.stream(flat, 2, 2 + 4 * sum(nv(g) for g in groups), spread=True, win=3)
    for j, freeg in ((0, 3*32 + 2), (1, 7*32 + 2), (2, 11*32 + 2), (3, 15*32 + 2)):
        a, b = KV(j)
        lo = max(gq + 1, freeg, 92)
        gq = pl.stream(a + b, lo, lo + 30, spread=True, win=3)
    assert gq < NQ + 8, gq
    qf_gap = {}
    cur = 0
    for s in range(4):
        for qb in range(4):
            a0, a1 = acc(2*s, qb), acc(2*s+1, qb)
            ops = [f"v_mul_f32 v{a0+i}, s{sSC}, v{a0+i}" for i in range(4)] + [f"v_mul_f32 v{a1+i}, s{sSC}, v{a1+i}" for i in range(4)]
            ops += [f"v_cvt_pk_bf16_f32 v{a0}, v{a0}, v{a0+1}", f"v_cvt_pk_bf16_f32 v{a0+1}, v{a0+2}, v{a0+3}",
                    f"v_cvt_pk_bf16_f32 v{a0+2}, v{a1}, v{a1+1}", f"v_cvt_pk_bf16_f32 v{a0+3}, v{a1+2}, v{a1+3}"]
            ops += [f"v_accvgpr_write_b32 a{QF + (qb*4+s)*4 + i}, v{a0+i}" for i in range(4)]
            lo = max(cur, (13 + s) * 32 + (2 if s < 3 else -1))
            hi = Spos[qb] + 2 if s == 3 else NQ - 1
            cur = pl.stream(ops, lo, hi)
    def kreads(p):
        slot = (p // 2) % 4
        return [Ins(f"ds_read_b128 {q4('a', KB[buf(p)] + (kb2*4+s)*4)}, v{aK+s} offset:{(slot & 1) * 32768 + (p & 1) * 8192 + kb2 * 4096}", tag=f"K{p}")
                for kb2 in range(2) for s in range(4)]
    def vreads(p):
        slot = (p // 2) % 4
        return [Ins(f"ds_read_b64_tr_b16 {q2('a', VB[buf(p)] + T*4 + u*2)}, v{aV+T} offset:{(slot & 1) * 32768 + (p & 1) * 8192 + u * 4096}", tag=f"V{p}")
                for T in range(8) for u in range(2)]
    firstS = {}; firstPV = {}; lastS = {}; lastPV = {}
    for i, (p, qb) in enumerate(units):
        firstS.setdefault(p, Spos[i]); firstPV.setdefault(p, PVpos[i]); lastS[p] = Spos[i] + 7; lastPV[p] = PVpos[i] + 7
    vcur = cur
    PAT = [("E",0,0),("E",1,1),("A",0,2),("E",2,3),("A",1,4),("C",0,4),("E",3,5),("A",2,6),("E",4,7),("A",3,8),("C",1,8),("E",5,9),("A",4,10),
           ("E",6,11),("A",5,12),("C",2,12),("E",7,13),("A",6,14),("A",7,15),("C",3,15)]
    lastunit = {qb: max(i for i, u in enumerate(units) if u[1] == qb) for qb in range(4)}
    for i, (p, qb) in enumerate(units):
        b = S + (i % 4) * 8
        w0 = Spos[i] + 7 + 3
        dead = PVpos[i] - 1
        def op(kind, n):
            if kind == "E": return f"v_exp_f32 v{b+n}, v{b+n}"
            if kind == "A": return f"v_add_f32 v{LS+2*qb+(n&1)}, v{LS+2*qb+(n&1)}, v{b+n}"
            return f"v_cvt_pk_bf16_f32 v{P+4*(i%4)+n}, v{b+2*n}, v{b+2*n+1}"
        if p == 0:
            t = TMP + 2 * qb
            ops = [f"v_max3_f32 v{t}, v{b}, v{b+1}, v{b+2}", f"v_max3_f32 v{t+1}, v{b+3}, v{b+4}, v{b+5}", f"v_max3_f32 v{t}, v{t}, v{b+6}, v{b+7}", f"v_max_f32 v{t}, v{t}, v{t+1}"]
            for sw in ("v_permlane32_swap_b32", "v_permlane16_swap_b32"):
                ops += [f"v_mov_b32 v{t+1}, v{t}", f"{sw} v{t}, v{t+1}", f"v_max_f32 v{t}, v{t}, v{t+1}"]
            ops += [f"v_sub_f32 v{b+n}, v{b+n}, v{t}" for n in range(8)]
            ops += [f"v_sub_f32 v{NM+4*qb+n}, 0, v{t}" for n in range(4)]
            ops += [op(kd, n) for kd, n, _ in PAT]
            vcur = pl.stream(ops, max(w0, vcur), dead, spread=True, win=0)
        elif w0 + 15 <= dead and w0 > vcur:
            for kd, n, pos in PAT: pl.put(w0 + pos, op(kd, n))
            pl.mslots |= {w0 + j for j in (2, 4, 6, 8, 10, 12, 14)}
            vcur = w0 + 15
        else:
            lo = max(min(w0, dead), vcur)
            vcur = pl.stream([op(kd, n) for kd, n, _ in PAT], lo, min(dead, max(w0 + 15, lo + 12)), spread=True, win=0)
    Bgap = {0: 15*32 + 1}
    for j in range(1, 8):
        p = 2*j - 1
        Bgap[j] = firstPV[p] - 1
        pl.put(Bgap[j] - 1, Wait(vm=f"KV{j}" if "novm" not in exp else None, lgkm=f"V{p}"))
        if "nobar" not in exp: pl.put(Bgap[j], "s_barrier")
    rd = []
    cur = Bgap[0]
    order = []
    for p in range(16):
        order.append(("K", p))
        if not (tailq >= 2 and p == 14): order.append(("V", p))
        if tailq >= 2 and p == 15: order.insert(len(order) - 1, ("V", 14))
    for kind, p in order:
        j = p // 2
        lo = max(cur, Bgap[j])
        if kind == "K":
            prevuser = [pp for pp in range(p) if buf(pp) == buf(p)]
            if prevuser: lo = max(lo, lastS[prevuser[-1]])
            hi = firstS[p] - 5
            pre = [f"v_xor_b32 v{aK+s}, 0x10000, v{aK+s}" for s in range(4)] if p % 4 == 0 and p else []
            if pre: pl.stream(pre, max(cur_k + 1, lo - 12), lo - 1, spread=True, win=1)
            n_av = hi - lo + 1
            cur = pl.stream(kreads(p), lo, hi, win=(None if n_av >= 20 else 1), spread=(n_av < 20))
            cur_k = cur
            pl.put(firstS[p] - 1, Wait(lgkm=f"K{p}"))
        else:
            prevuser = [pp for pp in range(p) if buf(pp) == buf(p)]
            if prevuser: lo = max(lo, lastPV[prevuser[-1]])
            hi = firstPV[p] - 7
            pre = [f"v_xor_b32 v{aV+T}, 0x10000, v{aV+T}" for T in range(8)] if p % 4 == 0 and p else []
            if pre: pl.stream(pre, max(cur_v + 1, lo - 24), lo - 1, spread=True, win=1)
            n_av = hi - lo + 1
            cur = pl.stream(vreads(p), lo, hi, win=(None if n_av >= 36 else 1), spread=(n_av < 36))
            cur_v = cur
            if p % 2 == 0 or p == 15: pl.put(firstPV[p] - 1, Wait(lgkm=f"V{p}"))
    dcur = gq + 1
    dm = [(WO(0) + WO(1), NQ + 8, Bgap[1])]
    for j in range(1, 5):
        a, b = KV(j + 3); dm.append((a + b, Bgap[j] + 1, Bgap[j+1] - 2))
    dm.append((WO(2) + WO(3), Bgap[5] + 1, Bgap[6] - 2)); dm.append((WO(4) + WO(5), Bgap[6] + 1, Bgap[7] - 2)); dm.append((WO(6) + WO(7), Bgap[7] + 60, LAST - 40))
    for items, lo, hi in dm:
        dcur = pl.stream(items, max(lo, dcur + 1), hi)
    ocur = 0
    for qb in range(4):
        i = lastunit[qb]
        t = TMP + 8 + 2 * qb
        l0 = LS + 2 * qb
        ops = [f"v_add_f32 v{t}, v{l0}, v{l0+1}"]
        for sw in ("v_permlane32_swap_b32", "v_permlane16_swap_b32"):
            ops += [f"v_mov_b32 v{t+1}, v{t}", f"{sw} v{t}, v{t+1}", f"v_add_f32 v{t}, v{t}, v{t+1}"]
        ops += [f"v_mov_b32 v{l0}, v{t}", f"v_rcp_f32 v{t}, v{t}"]
        usepk = pk and qb == 3
        if usepk: ops += [f"v_mov_b32 v{t+1}, v{t}"]
        pl.stream(ops, PVpos[i] - 1, min(LAST, PVpos[i] + 7), spread=True, win=0)
        ops = []
        for s in range(4):
            a0, a1 = acc(2*s, qb), acc(2*s+1, qb)
            if usepk:
                ops += [f"v_pk_mul_f32 {q2('v', a)}, {q2('v', a)}, {q2('v', t)}" for a in (a0, a0+2, a1, a1+2)]
            else:
                ops += [f"v_mul_f32 v{a0+n}, v{a0+n}, v{t}" for n in range(4)] + [f"v_mul_f32 v{a1+n}, v{a1+n}, v{t}" for n in range(4)]
            ops += [f"v_cvt_pk_bf16_f32 v{a0}, v{a0}, v{a0+1}", f"v_cvt_pk_bf16_f32 v{a0+1}, v{a0+2}, v{a0+3}",
                    f"v_cvt_pk_bf16_f32 v{a0+2}, v{a1}, v{a1+1}", f"v_cvt_pk_bf16_f32 v{a0+3}, v{a1+2}, v{a1+3}"]
            ops += [f"s_add_u32 s{sST}, s{sOO}, {s*4096}",
                    Ins(f"buffer_store_dwordx4 {q4('v', a0)}, v{oL}, s[{sWS}:{sWS+3}], s{sST} offen" + (f" offset:{qb*1024}" if qb else "") + ("" if "plainst" in exp else " sc1"), tag="OST")]
        lo = min(LAST, max(ocur, PVpos[i] + 7 + 3))
        hi = min(LAST, lo + 16 * tailq - 4)
        ocur = pl.stream(ops, lo, hi, spread=True, win=0)
    for nm, gp in (("q1", 0), ("qhalf", 255), ("qend", NQ - 1), ("ahalf", NQ + 512), ("aend", LAST - 1)) + tuple((f"a{n}", NQ + 128*n) for n in range(1, 8)):
        if nm in prof:
            for x in stamp_ins(prof.index(nm)): pl.put(gp, x)
    over = pl.emit()
    print("[k4] overflow per 64 gaps:", [sum(max(0, pl.load(i)-8) for i in range(b, min(b+64, LAST))) for b in range(0, NMF, 64)])
    print("[k4] underfill per 64 gaps:", [sum(max(0, 8-pl.load(i)) for i in range(b, min(b+64, LAST))) for b in range(0, NMF, 64)])
    print(f"[k4] QA mfma={NMF} overflow_cycles={over} (Q: {sum(max(0, pl.load(i)-8) for i in range(NQ))}) tail={pl.load(LAST)}")

    aT = 4
    aB = 7
    oL2 = 10
    k("v_lshl_add_u32 v16, v2, 2, v29")
    k("v_lshlrev_b32 v16, 6, v16"); k("v_lshl_add_u32 v16, v30, 4, v16"); k(f"v_add_u32 v{aT}, s{sM0O}, v16")
    k(f"v_add_u32 v{aT+1}, 0x10000, v{aT}"); k(f"v_add_u32 v{aT+2}, 0x20000, v{aT}")
    def treads(gi):
        a = wslot(gi)
        return [Ins(f"ds_read_b64_tr_b16 {q2('a', (gi*2+e)*8 + t*4 + u*2)}, v{aT + (a >> 16)} offset:{(a & 0xffff) + e*2048 + u*1024 + t*8}", tag=f"T{gi}")
                for e in range(2) for t in range(2) for u in range(2)]
    st_(k, 'tail')
    k.wait(vm="WO7")
    nxt = 8
    for gi in range(8):
        for x in treads(gi): k(x)
        if gi >= 1 and nxt < 8 + n1:
            k.wait(lgkm=f"T{gi-1}")
            for x in WO(nxt, nop=True): k(x)
            nxt += 1
    k(f"v_mov_b32 v{aB}, v{oL}"); k(f"v_add_u32 v{aB+1}, 0x10000, v{oL}"); k(f"v_add_u32 v{aB+2}, 0x20000, v{oL}"); k(f"v_add_u32 v{oL2}, 2048, v{oL}")
    k("v_and_b32 v21, 7, v1"); k("v_lshlrev_b32 v21, 2, v21")
    k(f"s_lshl_b32 s3, s{sQT}, 7"); k(f"s_lshl_b32 s{sKS}, s{sH}, 2"); k(f"s_add_u32 s3, s3, s{sKS}"); k(f"s_add_u32 s3, s3, {WS_FLAG:#x}")
    k("v_mov_b32 v22, 0"); k("v_mov_b32 v23, 1"); k("v_mov_b32 v20, 0")
    st_(k, 'w2iss')
    k.wait(vm="OST", lgkm=0)
    st_(k, 'ost')
    k("s_barrier")
    nf = k.label("nf")
    k(f"s_cmp_lg_u32 s{sWAVE}, 0"); k(f"s_cbranch_scc1 {nf}")
    k("s_mov_b64 exec, 1")
    k.ins.append(Ins(f"buffer_store_dword v23, v22, s[{sWS}:{sWS+3}], s3 offen sc1")); k.ins[-1].kind = "vmem_uncounted"
    k("s_mov_b64 exec, -1")
    k(f"{nf}:")
    st_(k, 'pub')
    k(f"s_load_dwordx2 s[56:57], s[0:1], {KA['x']}")
    k(f"s_load_dwordx2 s[58:59], s[0:1], {KA['out']}")
    k(f"s_load_dwordx2 s[4:5], s[92:93], {WS_IDX:#x}")
    while nxt < 16:
        if nxt == pollat: k(f"buffer_load_dword v22, v21, s[{sWS}:{sWS+3}], s{sFL} offen sc1", tag="POLL")
        for x in WO(nxt, nop=True): k(x)
        nxt += 1
    if pollat >= 16: k(f"buffer_load_dword v22, v21, s[{sWS}:{sWS+3}], s{sFL} offen sc1", tag="POLL")
    sQX, sXB, sXF = sBW, sBX, sOX
    def quarter(j):
        return [f"s_add_u32 s{sQX}, s{sKSL}, {j+1}", f"s_and_b32 s{sQX}, s{sQX}, 3", f"s_lshr_b32 s{sBOL}, s{sQX}, 1", f"s_lshl_b32 s{sBOL}, s{sBOL}, 19",
                f"s_and_b32 s{sQX}, s{sQX}, 1", f"s_lshl_b32 s{sQX}, s{sQX}, 11", f"s_add_u32 s{sBOL}, s{sBOL}, s{sQX}", f"s_add_u32 s{sBOL}, s{sBOL}, s{sOW}"]
    k(f"s_lshl_b32 s{sOW}, s{sRT}, 20"); k(f"s_lshl_b32 s3, s{sKSL}, 17"); k(f"s_add_u32 s{sOW}, s{sOW}, s3"); k(f"s_add_u32 s{sOW}, s{sOW}, {WS_O:#x}")
    def OC(c, nop=False):
        g = (quarter(c >> 2) if c % 4 == 0 else []) + [f"s_add_u32 s{sOOL}, s{sRO}, s{sBOL}", f"s_add_u32 m0, s{sM0O}, {zslot((c + 8) % 10)}"] + (["s_nop 0"] if nop else [])
        for a in range(2):
            for b in range(2):
                off = a * 2048 + b * 1024
                g.append(Ins(f"buffer_load_dwordx4 v{(oL, oL2)[a]}, s[{sWS}:{sWS+3}], s{sOOL} offen" + (f" offset:{off}" if off else "") + " sc1 lds", tag=f"OC{c}"))
        g += [f"s_add_u32 s{sRO}, s{sRO}, 32768", f"s_and_b32 s{sRO}, s{sRO}, 0x1ffff"]
        return g
    st_(k, 'w3iss')
    k.wait(vm="POLL", lgkm=0)
    st_(k, 'poll1')
    def spinwait(vreg, voff, soff, cmpins):
        go = k.label("go"); spin = k.label("spin")
        k("s_mov_b32 s3, 0")
        k(f"{spin}:")
        k(cmpins)
        k("s_nop 1")
        k(f"s_cbranch_vccz {go}")
        k("s_add_u32 s3, s3, 1"); k("s_cmp_gt_u32 s3, 0x40000"); k(f"s_cbranch_scc1 {go}")
        k.ins.append(Ins(f"buffer_load_dword v{vreg}, v{voff}, s[{sWS}:{sWS+3}], s{soff} offen sc1")); k.ins[-1].kind = "vmem_uncounted"
        k.ins.append(Ins("s_waitcnt vmcnt(0)")); k.ins[-1].op = "s_waitcnt_loop"
        k(f"s_branch {spin}")
        k(f"{go}:")
    spinwait(22, 21, sFL, "v_cmp_ne_u32 vcc, 1, v22")
    st_(k, 'go')
    for x in OC(0, True) + OC(1, True): k(x)
    for gi in range(8, 16):
        k.wait(vm=f"WO{gi}")
        for x in treads(gi): k(x)
        if gi >= 9 and gi - 9 + 2 < opre:
            k.wait(lgkm=f"T{gi-1}")
            for x in OC(gi - 9 + 2, True): k(x)
    st_(k, 'oiss')
    ACO = 32; BF = 64; NB = 12
    def bread(f):
        c, e, b = f >> 4, (f >> 1) & 7, f & 1
        a = zslot((c + 8) % 10) + (e >> 1) * 8192 + (e & 1) * 2048 + b * 1024
        return Ins(f"ds_read_b128 {q4('v', BF + (f % NB)*4)}, v{aB + (a >> 16)} offset:{a & 0xffff}", tag=f"B{f}")
    k.wait(vm="OC0", lgkm=0); k("s_barrier")
    st_(k, 'o0')
    AH = 8
    for f in range(AH): k(bread(f))
    k.wait(lgkm="B1")
    po = Plan(k)
    for f in range(256):
        j = f >> 6; kk = (f >> 1) & 31; b = f & 1
        for t in range(2):
            a = ACO + (j & 1) * 16 + (b*2 + t) * 4
            po.mfma(f"{MF} {q4('v', a)}, {q4('a', kk*8 + t*4)}, {q4('v', BF + (f % NB)*4)}, {q4('v', a) if kk else '0'}")
    bars = [1, 2, 4, 6, 8, 10, 12, 14]
    cover = {1: 1, 2: 3, 4: 5, 6: 7, 8: 9, 10: 11, 12: 13, 14: 15}
    bgap = {}
    for f in range(AH, 256):
        gp = 2 * (f - AH)
        if f % 16 == 0 and (f >> 4) in cover:
            c = f >> 4
            po.put(gp - 1, Wait(vm=f"OC{cover[c]}")); po.put(gp, "s_barrier"); bgap[c] = gp
        po.put(gp, bread(f))
    for f in range(2, 256, 2):
        po.put(2 * f - 1, Wait(lgkm=f"B{f+1}"))
    cur = 0
    for c in range(opre, 16):
        lo = cur + 1
        if c >= 10:
            need = 2 * 16 * (c - 9)
            lo = max(lo, min(g for g in bgap.values() if g >= need) + 1)
        cur = po.stream(OC(c), lo, lo + 40, win=3)
    k_tile = [f"s_lshl_b32 s{sXB}, s{sRT}, 2", f"s_add_u32 s{sXB}, s{sXB}, s{sCT}", f"s_lshl_b32 s{sXB}, s{sXB}, 2"]
    c0 = po.stream(k_tile, 0, 40)
    for j in range(3):
        g0 = (j + 1) * 128
        its = [f"s_add_u32 s{sKS}, s{sKSL}, {j+1}", f"s_and_b32 s{sKS}, s{sKS}, 3", f"s_add_u32 s{sKS}, s{sKS}, s{sXB}",
               f"s_lshl_b32 s{sKS2}, s{sKS}, 16", f"s_add_u32 s{sKS2}, s{sKS2}, s{sM0K}", f"s_add_u32 s{sKS2}, s{sKS2}, {WS_XB + j*16384:#x}",
               f"s_lshl_b32 s{sXF}, s{sKS}, 6", f"s_lshl_b32 s{sKS}, s{sWAVE}, 4", f"s_add_u32 s{sXF}, s{sXF}, s{sKS}", f"s_add_u32 s{sXF}, s{sXF}, {WS_XF + j*4:#x}"]
        po.stream(its, g0 - 40, g0)
        sts = [Ins(f"buffer_store_dwordx4 {q4('v', ACO + (j&1)*16 + n*4)}, v{oL}, s[{sWS}:{sWS+3}], s{sKS2} offen" + (f" offset:{n*1024}" if n else "") + " sc1", tag=f"XS{j}") for n in range(4)]
        c = po.stream(sts, g0 + 5, g0 + 24, win=2)
        po.stream([Wait(vm=f"XS{j}"), Ins(f"buffer_store_dword v23, v20, s[{sWS}:{sWS+3}], s{sXF} offen sc1")], c + xdelay, c + xdelay + 8, win=2)
    XNR, YR, XR, GF, XF, PR = 128, 136, 144, 152, 168, 192
    es = [f"s_lshr_b32 s3, s{sKSL}, 1", f"s_lshl_b32 s6, s{sRT}, 1", "s_add_u32 s3, s3, s6",
          f"s_and_b32 s6, s{sKSL}, 1", "s_lshl_b32 s6, s6, 1",
          "s_lshl_b32 s7, s3, 2", "s_add_u32 s7, s7, s6", "s_lshl_b32 s7, s7, 4",
          "s_and_b32 s4, s4, 0xffff", "s_sub_u32 s4, 0xffff, s4", "s_and_b32 s5, s5, 0xffff", "s_sub_u32 s5, 0xffff, s5", "s_sub_u32 s4, s4, s7", "s_sub_u32 s5, s5, s7",
          f"s_lshl_b32 s{sST}, s3, 16", "s_lshl_b32 s6, s6, 10", f"s_add_u32 s{sST}, s{sST}, s6", f"s_lshl_b32 s6, s{sCT}, 14", f"s_add_u32 s{sST}, s{sST}, s6",
          f"s_add_u32 s{sST}, s{sST}, s{sM0K}", f"s_add_u32 s{sST}, s{sST}, {WS_XN:#x}",
          f"s_and_b32 s6, s{sBWO}, 0x3ff",
          "s_lshl_b32 s7, s7, 10", "s_add_u32 s7, s7, s6",
          f"s_add_u32 s{sY}, s92, {WS_Y:#x}", f"s_addc_u32 s{sY+1}, s93, 0", f"s_mov_b32 s{sY+2}, 2048", f"s_mov_b32 s{sY+3}, 0x00020000",
          f"s_add_u32 s{sFL}, s{sXB}, s{sKSL}", f"s_lshl_b32 s{sOKV}, s{sFL}, 16", f"s_add_u32 s{sOKV}, s{sOKV}, s{sM0K}", f"s_add_u32 s{sOKV}, s{sOKV}, {WS_XB:#x}",
          f"s_lshl_b32 s{sFL}, s{sFL}, 6", f"s_lshl_b32 s3, s{sWAVE}, 4", f"s_add_u32 s{sFL}, s{sFL}, s3", f"s_add_u32 s{sFL}, s{sFL}, {WS_XF:#x}"]
    c = c0
    for x in es:
        if x.startswith("s_addc"): po.put(c, x, cls="s")
        else:
            c += 1
            while po._g(c)["s"]: c += 1
            po.put(c, x)
    ev = ["v_lshlrev_b32 v24, 10, v3", "v_lshl_add_u32 v24, v2, 4, v24", "v_add_u32 v24, s7, v24", "v_add_u32 v25, 16384, v24",
          "v_lshl_add_u32 v27, v2, 4, s6", "v_mov_b32 v21, 1024"]
    for b in range(2):
        ev += [f"v_add_u32 v26, {16*b}, v3", "v_mov_b32 v31, 0x10000", "v_cmp_eq_u32 vcc, s4, v26", "v_cndmask_b32 v31, v31, 0, vcc",
               "v_cmp_eq_u32 vcc, s5, v26", "v_cndmask_b32 v31, v31, v21, vcc", f"v_add_u32 v{18+b}, v31, v27"]
    ev += ["v_and_b32 v21, 3, v1", "v_min_u32 v21, 2, v21", "v_lshlrev_b32 v21, 2, v21"]
    c = po.stream(ev, c + 1, c + 60)
    el = [Ins(f"buffer_load_dwordx4 {q4('v', XNR)}, v{oL}, s[{sWS}:{sWS+3}], s{sST} offen", tag="E"), Ins(f"buffer_load_dwordx4 {q4('v', XNR+4)}, v{oL}, s[{sWS}:{sWS+3}], s{sST} offen offset:1024", tag="E"),
          Ins(f"buffer_load_dwordx4 {q4('v', YR)}, v18, s[{sY}:{sY+3}], 0 offen", tag="E"), Ins(f"buffer_load_dwordx4 {q4('v', YR+4)}, v19, s[{sY}:{sY+3}], 0 offen", tag="E"),
          Ins(f"global_load_dwordx4 {q4('v', XR)}, v24, s[56:57]", tag="E"), Ins(f"global_load_dwordx4 {q4('v', XR+4)}, v25, s[56:57]", tag="E")]
    c = po.stream(el, max(c + 1, 200), 250, spread=True, win=2)
    gops = [Wait(vm="E")]
    for i in range(8):
        a, b, t, u = GF + 2*i, GF + 2*i + 1, 29, 30
        gops += [f"v_lshlrev_b32 v{a}, 16, v{XNR+i}", f"v_and_b32 v{b}, 0xffff0000, v{XNR+i}", f"v_lshlrev_b32 v{t}, 16, v{YR+i}", f"v_and_b32 v{u}, 0xffff0000, v{YR+i}",
                 f"v_add_f32 v{a}, v{a}, v{t}", f"v_add_f32 v{b}, v{b}, v{u}", f"v_cvt_pk_bf16_f32 v{t}, v{a}, v{b}",
                 f"v_lshlrev_b32 v{a}, 16, v{t}", f"v_and_b32 v{b}, 0xffff0000, v{t}",
                 f"v_mul_f32 v{t}, 0xbfb8aa3b, v{a}", f"v_mul_f32 v{u}, 0xbfb8aa3b, v{b}", f"v_exp_f32 v{t}, v{t}", f"v_exp_f32 v{u}, v{u}",
                 f"v_add_f32 v{t}, 1.0, v{t}", f"v_add_f32 v{u}, 1.0, v{u}", f"v_rcp_f32 v{t}, v{t}", f"v_rcp_f32 v{u}, v{u}",
                 f"v_mul_f32 v{a}, v{a}, v{t}", f"v_mul_f32 v{b}, v{b}, v{u}", f"v_cvt_pk_bf16_f32 v{t}, v{a}, v{b}",
                 f"v_lshlrev_b32 v{a}, 16, v{t}", f"v_and_b32 v{b}, 0xffff0000, v{t}",
                 f"v_lshlrev_b32 v{XF+2*i}, 16, v{XR+i}", f"v_and_b32 v{XF+2*i+1}, 0xffff0000, v{XR+i}"]
    c = po.stream(gops, 320, 500)
    po.put(511 - xpoll, Ins(f"buffer_load_dword v22, v21, s[{sWS}:{sWS+3}], s{sFL} offen sc1", tag="XPOLL"))
    for nm, gp in (("o4", 64), ("o8", 128), ("o16", 256), ("o24", 384)):
        if nm in prof:
            for x in stamp_ins(prof.index(nm)): po.put(gp, x)
    ov = po.emit()
    print("[k4] phase O overflow", ov)
    st_(k, 'oend')
    k.wait(vm="XPOLL")
    spinwait(22, 21, sFL, "v_cmp_ne_u32 vcc, 1, v22")
    st_(k, 'xgo')
    for n in range(4):
        for j in range(3):
            k(f"s_add_u32 s3, s{sOKV}, {j*16384}")
            k(f"buffer_load_dwordx4 {q4('v', PR + (n*3+j)*4)}, v{oL}, s[{sWS}:{sWS+3}], s3 offen" + (f" offset:{n*1024}" if n else "") + " sc1", tag=f"P{n}")
    for b in range(2):
        for t in range(2):
            n = b*2 + t
            k.wait(vm=f"P{n}")
            a = ACO + 16 + n*4; r = PR + n*12
            for m in range(4): k(f"v_add_f32 v{a+m}, v{a+m}, v{r+m}"); k(f"v_add_f32 v{r+4+m}, v{r+4+m}, v{r+8+m}")
            for m in range(4): k(f"v_add_f32 v{a+m}, v{a+m}, v{r+4+m}")
            for h in range(2):
                e = b*8 + t*4 + h*2
                x0, x1 = a + 2*h, a + 2*h + 1
                k(f"v_cvt_pk_bf16_f32 v{r}, v{x0}, v{x1}")
                k(f"v_lshlrev_b32 v{x0}, 16, v{r}"); k(f"v_and_b32 v{x1}, 0xffff0000, v{r}")
                k(f"v_mul_f32 v{x0}, v{x0}, v{GF+e}"); k(f"v_mul_f32 v{x1}, v{x1}, v{GF+e+1}")
                k(f"v_cvt_pk_bf16_f32 v{r}, v{x0}, v{x1}")
                k(f"v_lshlrev_b32 v{x0}, 16, v{r}"); k(f"v_and_b32 v{x1}, 0xffff0000, v{r}")
                k(f"v_add_f32 v{x0}, v{x0}, v{XF+e}"); k(f"v_add_f32 v{x1}, v{x1}, v{XF+e+1}")
                k(f"v_cvt_pk_bf16_f32 v{YR + b*4 + t*2 + h}, v{x0}, v{x1}")
        k(f"global_store_dwordx4 v{24+b}, {q4('v', YR + b*4)}, s[58:59]")
    if prof:
        k("s_waitcnt vmcnt(0)"); stamp(k, 7); stamp_dump(k, 8, sWS, sWAVE, 0)
    k(f"{end}:")
    k("s_endpgm")
    return k, 512, 256
```

```python
from build import *
import k4, moe
def build(path, **kw):
    ks = [k0.gen_k0(), moe.gen_m1(), moe.gen_m2(), k4.gen_k4(**kw)]
    return assemble(ks, [("ln_kernel", 256, 512, 0), ("moe1_kernel", 86, 256, 40960), ("moe2_kernel", 32, 256, 53248),
                  ("main_kernel", 256, 256, 163840)], path)
if __name__ == "__main__":
    B = dict(codepf=1)
    build("t4.s", **B)
    build("v4a.s", prof=["aend", "ost", "w3iss", "go", "o0", "oend", "xgo"], **B)
    build("v4b.s", prof=["o0", "o4", "o8", "o16", "o24", "oend", "xgo"], **B)
```

```python
import sys
from asmlib import *
from common import *
import k6
def build(path, **kw):
    kn = NAME + "_kernel"
    k, nfv, accum = k6.gen_k6(kn, **kw)
    hdr = open(f"cdna_kernels/{NAME}.s.ref").read().split("; Override launch")[0]
    out = [hdr.rstrip("\n"), "; @launch grid=(256,1,1) block=(256,1,1) lds=163840", '.amdgcn_target "amdgcn-amd-amdhsa--gfx950"', ".text"]
    fix_hazards(k); k.resolve()
    errs = k.check()
    for e in errs[:8]: print(e)
    print(f"[{path.split('/')[-1]}] {len(k.ins)} instrs, {len(errs)} errors, nops={sum(1 for i in k.ins if i.op=='s_nop')}")
    out.append(kernel_text(k, nfv, accum)); out.append('.section .rodata,"a"'); out.append(desc_text(k.name, nfv, accum))
    txt = "\n".join(out).replace(kn + "_", "L_")
    open(path, "w").write(txt)
    return not errs
if __name__ == "__main__":
    build("t6.s")
    build("t6s.s", force_slow=True)
    build("v6a.s", prof=["start", "ln", "q1", "qend", "aend", "go", "oend"])
```

```python
NAME = "recurrent_scan__sliding_block_cached__moe_arch_mod__prompt"
KA = dict(x=0, k=8, v=16, wq=24, wo=32, bx=40, wr=48, wg=56, wu=64, wd=72, out=80, dbg=88, ws=96)
SZ = dict(x=2048*512*2, k=32*2048*128*2, v=32*2048*128*2, wq=512*4096*2, wo=4096*512*2, wr=1024,
          wg=512*1376*2, wu=512*1376*2, wd=1376*512*2, out=2048*512*2, dbg=256, ws=1 << 28)
WS_XN = 1 << 20
WS_KEY = 0
WS_H = WS_KEY + 8192
WS_Y = WS_H + 8192
WS_IDX = WS_Y + 4096
WS_FLAG = WS_IDX + 4096
WS_STAT = 96 << 10
WS_HFLAG = WS_FLAG + 1024
WS_YACC = WS_FLAG + 4096
WS_XF = 64 << 10
WS_XB = 24 << 20
WS_O = 4 << 20

def srd(k, d, plo, size):
    k(f"s_mov_b32 s{d}, s{plo}")
    k(f"s_mov_b32 s{d+1}, s{plo+1}")
    k(f"s_mov_b32 s{d+2}, {size:#x}")
    k(f"s_mov_b32 s{d+3}, 0x00020000")

def wave_sum_dpp(k, v):
    for mod in ("quad_perm:[1,0,3,2] row_mask:0xf bank_mask:0xf", "quad_perm:[2,3,0,1] row_mask:0xf bank_mask:0xf",
                "row_half_mirror row_mask:0xf bank_mask:0xf", "row_mirror row_mask:0xf bank_mask:0xf",
                "row_bcast:15 row_mask:0xa bank_mask:0xf", "row_bcast:31 row_mask:0xc bank_mask:0xf"):
        k("s_nop 1")
        k(f"v_add_f32_dpp v{v}, v{v}, v{v} {mod}")

def wave_umax_dpp(k, v):
    for mod in ("quad_perm:[1,0,3,2] row_mask:0xf bank_mask:0xf", "quad_perm:[2,3,0,1] row_mask:0xf bank_mask:0xf",
                "row_half_mirror row_mask:0xf bank_mask:0xf", "row_mirror row_mask:0xf bank_mask:0xf",
                "row_bcast:15 row_mask:0xa bank_mask:0xf", "row_bcast:31 row_mask:0xc bank_mask:0xf"):
        k("s_nop 1")
        k(f"v_max_u32_dpp v{v}, v{v}, v{v} {mod}")

WS_DBG = 48 << 20
SB = 70
def stamp_ins(i):
    return [f"s_memrealtime s[{SB+4*i}:{SB+1+4*i}]", f"s_memtime s[{SB+2+4*i}:{SB+3+4*i}]"]
def stamp(k, i):
    for x in stamp_ins(i): k(x)
def stamp_dump(k, n, sWS, swave, region):
    k("s_waitcnt lgkmcnt(0)")
    k("s_mov_b64 exec, -1")
    k(f"s_lshl_b32 s3, s2, 3"); k(f"s_add_u32 s3, s3, s{swave}"); k("s_lshl_b32 s3, s3, 6"); k(f"s_add_u32 s3, s3, {WS_DBG + region*(1<<20):#x}")
    k("v_mov_b32 v1, 0")
    for i in range(n):
        k(f"v_mov_b32 v2, s{SB+4*i}"); k(f"v_mov_b32 v3, s{SB+2+4*i}")
        k(f"buffer_store_dwordx2 v[2:3], v1, s[{sWS}:{sWS+3}], s3 offen offset:{8*i}")
        k("s_nop 1")

W6_KEY = 0
W6_STAT = 32 << 10
W6_OF = 64 << 10
W6_H = 96 << 10
W6_YP = 128 << 10
W6_XF = 256 << 10
W6_YT = 144 << 10
W8_OF = 384 << 10
```

```python
from asmlib import *
from common import *
import struct

MF = "v_mfma_f32_16x16x32_bf16"
def q4(f, r): return f"{f}[{r}:{r+3}]"
def q2(f, r): return f"{f}[{r}:{r+1}]"
def off(o): return f" offset:{o}" if o else ""

aW, aK, aV, oK, oV, oW, oL = 4, 8, 12, 20, 24, 26, 28
AF = 32; S = 32; P = 64; NM = 80; LS = 96; CS0 = 96; CSX = 104; STAT = 112; aX = 112; oX = 120; oWO = 120; ONES = 124; ACC = 128
MT = 104
QF = 0
KB = [64, 96, 192]; VB = [128, 160, 224]
MA = 192
def acc(T, qb): return ACC + (T * 4 + qb) * 4
sX, sWS, sWQ, sK, sV, sWO = 4, 8, 12, 16, 20, 24
pWG, pWU, pWD, pOUT = 28, 30, 32, 34
sDBG = 36
sBAD = 40; sCMP = 42
(sWAVE, sH, sQT, sKSL, sRT, sCT, sM0K, sM0O, sROT, sBW, sOW, sBX, sOX, sM0W, sM0X, sT, sBKV, sOKV, sRW, sBWO, sOWO, sOO, sST, sK1, sK2, sM1) = range(44, 70)
sTAG = 43
sC2 = 38
sTS = sWQ
def f32(x): return struct.unpack("<I", struct.pack("<f", x))[0]
QSCALE = f32(1.4426950408889634 * 128 ** -0.5)
OOB = 0x40000000
WREG = [2, 3, 4, 0, 1]
def zslot(z): return WREG[z >> 1] * 32768 + (z & 1) * 4096
def wslot(g): return zslot(g % 8)
R4 = 131072
DPP4 = ("quad_perm:[1,0,3,2] row_mask:0xf bank_mask:0xf", "quad_perm:[2,3,0,1] row_mask:0xf bank_mask:0xf",
        "row_half_mirror row_mask:0xf bank_mask:0xf", "row_mirror row_mask:0xf bank_mask:0xf")

def gen_k6(name, prof=False, tailq=2, codepf=1, pk=True, kvpf=7, n1=1, pollat=16, xrot=4, opre=6, xdelay=50, xpoll=20, force_slow=False, early_p=True):
    k = Kern(name)
    if not prof: prof = []
    def st_(nm):
        if nm in prof: stamp(k, prof.index(nm))
    end = k.label("end")
    ool = []
    def unc(text):
        i = Ins(text); i.kind = "vmem_uncounted"; return i
    def loopwait():
        i = Ins("s_waitcnt vmcnt(0)"); i.op = "s_waitcnt_loop"; return i
    def check_items(tag, load_text, cmp_ops):
        sp = k.label("spin"); lp = k.label("splp"); bk = k.label("back")
        ool.extend([Ins(f"{sp}:"), Ins(f"s_mov_b32 s{sCMP}, 0"), Ins(f"{lp}:")] + [unc(t) for t in ([load_text] if isinstance(load_text, str) else load_text)] + [loopwait()] + [Ins(c) for c in cmp_ops] +
                   [Ins("s_nop 1"), Ins(f"s_cbranch_vccz {bk}"), Ins(f"s_add_u32 s{sCMP}, s{sCMP}, 1"), Ins(f"s_cmp_lt_u32 s{sCMP}, 0x40000"), Ins(f"s_cbranch_scc1 {lp}"), Ins(f"s_branch {bk}")])
        return [Wait(vm=tag)] + list(cmp_ops) + [("br", f"s_cbranch_vccnz {sp}", f"{bk}:")]
    def pstream(pl, items, lo, hi, **kw):
        cur = lo; buf = []
        def flush():
            nonlocal cur, buf
            if buf: cur = pl.stream(buf, cur, hi, **kw); buf = []
        for x in items:
            if isinstance(x, tuple):
                flush()
                cur += 1
                while pl._g(cur)["s"]: cur += 1
                pl.put(cur, x[1]); pl.put(cur, x[2], cls="s")
            else: buf.append(x)
        flush()
        return cur

    k("s_cmp_ge_u32 s2, 256"); k(f"s_cbranch_scc1 {end}")
    st_('start')
    k(f"s_memrealtime s[{sK1 & ~1}:{(sK1 & ~1) + 1}]")
    k(f"s_load_dwordx2 s[{sX}:{sX+1}], s[0:1], {KA['x']}")
    k(f"s_load_dwordx2 s[{sWQ}:{sWQ+1}], s[0:1], {KA['wq']}")
    k(f"s_load_dwordx2 s[{sBAD}:{sBAD+1}], s[0:1], {KA['wr']}")
    k(f"s_load_dwordx2 s[{sWS}:{sWS+1}], s[0:1], {KA['ws']}")
    k(f"s_load_dwordx2 s[{sK}:{sK+1}], s[0:1], {KA['k']}")
    k(f"s_load_dwordx2 s[{sV}:{sV+1}], s[0:1], {KA['v']}")
    k(f"s_load_dwordx2 s[{sWO}:{sWO+1}], s[0:1], {KA['wo']}")
    k(f"s_load_dwordx8 s[{pWG}:{pWG+7}], s[0:1], {KA['wg']}")
    k(f"s_load_dwordx2 s[{sDBG}:{sDBG+1}], s[0:1], {KA['dbg']}")
    k("v_and_b32 v1, 63, v0"); k("v_lshrrev_b32 v2, 6, v0")
    k("s_and_b32 s3, s2, 7"); k(f"s_lshr_b32 s{sT}, s2, 3")
    k(f"v_readfirstlane_b32 s{sWAVE}, v2")
    k(f"s_lshr_b32 s{sKSL}, s3, 1"); k(f"s_and_b32 s{sRT}, s3, 1"); k(f"s_lshl_b32 s{sRT}, s{sRT}, 3"); k(f"s_and_b32 s{sM1}, s{sT}, 7"); k(f"s_add_u32 s{sRT}, s{sRT}, s{sM1}")
    k(f"s_lshr_b32 s{sCT}, s{sT}, 3")
    k("s_lshl_b32 s3, s3, 2"); k(f"s_and_b32 s{sM1}, s{sT}, 3"); k(f"s_add_u32 s{sH}, s3, s{sM1}")
    k(f"s_lshr_b32 s{sQT}, s{sT}, 2")
    k(f"s_lshl_b32 s{sROT}, s{sQT}, 1"); k(f"s_mul_i32 s3, s{sM1}, {xrot}"); k(f"s_add_u32 s{sROT}, s{sROT}, s3")
    for d, sz in ((sX, SZ['x']), (sWQ, SZ['wq']), (sWS, SZ['ws'])):
        k(f"s_mov_b32 s{d+2}, {sz:#x}"); k(f"s_mov_b32 s{d+3}, 0x00020000")
    k("v_lshrrev_b32 v2, 4, v1")
    k("v_and_b32 v3, 15, v1")
    k(f"v_lshlrev_b32 v{oL}, 4, v1")
    L = ACC
    k(f"s_lshl_b32 s3, s{sQT}, 8"); k(f"s_lshl_b32 s{sT}, s{sH}, 3"); k(f"s_add_u32 s3, s3, s{sT}"); k(f"s_lshl_b32 s{sT}, s{sWAVE}, 1"); k(f"s_add_u32 s3, s3, s{sT}")
    k(f"v_lshrrev_b32 v{L}, 5, v1"); k(f"v_add_u32 v{L}, s3, v{L}")
    k(f"v_and_b32 v{L+1}, 31, v1")
    k(f"v_lshlrev_b32 v{L+2}, 4, v{L+1}")
    k(f"v_lshl_add_u32 v{L+3}, v{L}, 10, v{L+2}")
    k("v_lshlrev_b32 v29, 2, v2"); k("v_xor_b32 v29, v29, v3"); k("v_lshlrev_b32 v29, 4, v29")
    k(f"v_lshl_add_u32 v{oW}, v2, 13, v29"); k(f"v_add_u32 v{oW+1}, {4*8192-1024}, v{oW}")
    k("v_and_b32 v29, 7, v1"); k("v_xor_b32 v29, v29, v2"); k("v_lshrrev_b32 v30, 3, v1"); k("v_lshlrev_b32 v30, 10, v30")
    k(f"v_lshl_add_u32 v{oX}, v29, 4, v30"); k("v_xor_b32 v29, 4, v29"); k(f"v_lshl_add_u32 v{oX+1}, v29, 4, v30"); k(f"v_add_u32 v{oX+1}, 7168, v{oX+1}")
    k(f"v_add_u32 v{oX+2}, {2*7168}, v{oX}"); k(f"v_add_u32 v{oX+3}, {2*7168}, v{oX+1}")
    k(f"s_lshl_b32 s{sBW}, s{sH}, 8"); k(f"s_lshl_b32 s3, s{sWAVE}, 16"); k(f"s_add_u32 s{sBW}, s{sBW}, s3")
    k(f"s_lshl_b32 s{sBX}, s{sQT}, 18"); k(f"s_add_u32 s{sBX}, s{sBX}, s3")
    k(f"s_lshl_b32 s{sM0W}, s{sWAVE}, 11"); k(f"s_lshl_b32 s{sM0K}, s{sWAVE}, 12"); k(f"s_lshl_b32 s{sM0O}, s{sWAVE}, 13")
    k(f"s_mul_i32 s{sM0X}, s{sWAVE}, 24576"); k(f"s_add_u32 s{sM0X}, s{sM0X}, 65536")
    k("s_waitcnt lgkmcnt(0)")

    def D(ks):
        return [f"s_add_u32 s{sT}, s{sROT}, {ks}", f"s_and_b32 s{sT}, s{sT}, 15", f"s_lshl_b32 s{sOW}, s{sT}, 18", f"s_add_u32 s{sOW}, s{sOW}, s{sBW}",
                f"s_add_u32 m0, s{sM0W}, {(ks % 8)*8192}",
                Ins(f"buffer_load_dwordx4 v{oW}, s[{sWQ}:{sWQ+3}], s{sOW} offen lds", tag=f"D{ks}"),
                Ins(f"buffer_load_dwordx4 v{oW+1}, s[{sWQ}:{sWQ+3}], s{sOW} offen offset:1024 lds", tag=f"D{ks}")]
    def XP(p):
        g = [f"s_add_u32 s{sT}, s{sROT}, {2*p}", f"s_and_b32 s{sT}, s{sT}, 15", f"s_lshl_b32 s{sOX}, s{sT}, 6", f"s_add_u32 s{sOX}, s{sOX}, s{sBX}"]
        for hf in range(2):
            if hf: g.append(f"s_add_u32 s{sOX}, s{sOX}, 32768")
            g.append(f"s_add_u32 m0, s{sM0X}, {(p % 3)*8192 + hf*4096}")
            for i in range(4):
                g.append(Ins(f"buffer_load_dwordx4 v{oX+i}, s[{sX}:{sX+3}], s{sOX} offen{off(i*1024)} lds", tag=f"XP{p}"))
        return g
    def XR(p):
        return [Ins(f"ds_read_b128 {q4('a', ((2*p+ksl)*4+qb)*4)}, v{aX+ksl} offset:{(p % 3)*8192 + qb*2048}", tag=f"XR{p}") for ksl in range(2) for qb in range(4)]
    def KV(j):
        base = ((j + 2) % 4) * 32768
        g = [f"s_add_u32 s{sT}, s{sQT}, {j}", f"s_and_b32 s{sT}, s{sT}, 7", f"s_lshl_b32 s{sOKV}, s{sT}, 14", f"s_add_u32 s{sOKV}, s{sOKV}, s{sBKV}",
             f"s_add_u32 m0, s{sM0K}, {base}"]
        g += [Ins(f"buffer_load_dwordx4 v{oK+i}, s[{sK}:{sK+3}], s{sOKV} offen{off(i*1024)} lds", tag=f"KV{j}") for i in range(4)]
        g += [f"s_add_u32 m0, s{sM0K}, {base+16384}"]
        g += [Ins(f"buffer_load_dwordx4 v{oV+(i&1)}, s[{sV}:{sV+3}], s{sOKV} offen{off(i*1024)} lds", tag=f"KV{j}") for i in range(4)]
        return g
    def WO(gi, tag=True):
        g = [f"s_add_u32 m0, s{sM0O}, {wslot(gi)}"]
        for n in range(4):
            t = f"buffer_load_dwordx4 v{oWO+n}, s[{sWO}:{sWO+3}], s{sOWO} offen{off(n*1024)} lds"
            g.append(Ins(t, tag=f"WO{gi}") if tag else unc(t))
        g += [f"s_add_u32 s{sRW}, s{sRW}, 65536", f"s_and_b32 s{sRW}, s{sRW}, 0xf0000", f"s_or_b32 s{sOWO}, s{sRW}, s{sBWO}"]
        return g

    XL, WL = L + 8, L + 16
    k(f"s_mov_b32 s{sDBG+2}, 256"); k(f"s_mov_b32 s{sDBG+3}, 0x00020000")
    k(f"s_or_b32 s{sTAG}, s{sK1 & ~1}, 1"); k(f"v_mov_b32 v{L+24}, s{sTAG}"); k(f"v_mov_b32 v{L+25}, 0")
    k(f"s_or_b32 s3, s2, s{sWAVE}"); k("s_cmp_eq_u32 s3, 0"); k("s_cselect_b32 s3, 0, 0x1000")
    k(f"buffer_store_dword v{L+24}, v{L+25}, s[{sDBG}:{sDBG+3}], s3 offen sc1")
    k(f"buffer_load_dwordx4 {q4('v', XL)}, v{L+3}, s[{sX}:{sX+3}], 0 offen", tag="LX")
    k(f"buffer_load_dwordx4 {q4('v', XL+4)}, v{L+3}, s[{sX}:{sX+3}], 0 offen offset:512", tag="LX")
    for x in D(0) + XP(0) + D(1): k(x)
    k(f"global_load_dwordx4 {q4('v', WL)}, v{L+2}, s[{sBAD}:{sBAD+1}]", tag="LW")
    k(f"global_load_dwordx4 {q4('v', WL+4)}, v{L+2}, s[{sBAD}:{sBAD+1}] offset:512", tag="LW")
    if codepf:
        pcl = k.label("pc")
        k(f"s_getpc_b64 s[{sK1}:{sK2}]" if sK1 % 2 == 0 else f"s_getpc_b64 s[{sK2}:{sM1}]"); k(f"{pcl}:")
        pcp = sK1 if sK1 % 2 == 0 else sK2
        k(f"s_lshr_b32 s3, s2, 3"); k(f"s_lshl_b32 s3, s3, 2"); k(f"s_add_u32 s3, s3, s{sWAVE}"); k("s_lshl_b32 s3, s3, 9")
        k(f"s_min_u32 s3, s3, {end}-{pcl}-512")
        k("v_lshl_add_u32 v29, v1, 3, s3")
        k(f"global_load_dwordx2 {q2('v', CSX)}, v29, s[{pcp}:{pcp+1}]")
    k("v_bfe_u32 v29, v1, 2, 2")
    k("v_and_b32 v30, 3, v1")
    k("v_lshl_add_u32 v31, v2, 3, v29"); k("v_lshlrev_b32 v31, 8, v31"); k("v_lshl_add_u32 v31, v30, 4, v31")
    for i in range(4):
        k(f"s_add_u32 s3, s{sWAVE}, {i}"); k("s_and_b32 s3, s3, 3")
        k(f"v_xor_b32 v{aW+i}, s3, v29"); k(f"v_lshl_add_u32 v{aW+i}, v{aW+i}, 6, v31")
    k("v_lshrrev_b32 v31, 1, v3"); k("v_xor_b32 v31, v31, v2")
    k(f"v_lshlrev_b32 v{aX+1}, 7, v3"); k(f"v_add_u32 v{aX+1}, s{sM0X}, v{aX+1}")
    k(f"v_lshl_add_u32 v{aX}, v31, 4, v{aX+1}"); k("v_xor_b32 v31, 4, v31"); k(f"v_lshl_add_u32 v{aX+1}, v31, 4, v{aX+1}")
    for i in range(4): k(f"v_mov_b32 v{ONES+i}, 0x3f803f80")
    FT = CSX + 2
    A0, A1, A3 = L + 4, L + 5, L + 7
    k(f"v_lshrrev_b32 v{A0}, 6, v{L}"); k(f"v_lshlrev_b32 v{A0}, 16, v{A0}")
    k(f"v_lshrrev_b32 v31, 2, v{L+1}"); k(f"v_lshl_add_u32 v{A0}, v31, 12, v{A0}")
    k(f"v_bfe_u32 v31, v{L}, 4, 2"); k(f"v_lshl_add_u32 v{A0}, v31, 10, v{A0}")
    k(f"v_lshl_add_u32 v{A0}, v30, 8, v{A0}")
    k(f"v_and_b32 v31, 15, v{L}"); k(f"v_lshl_add_u32 v{A0}, v31, 4, v{A0}")
    k(f"v_lshlrev_b32 v{A1}, 4, v{L}"); k(f"v_lshlrev_b32 v{FT+2}, 3, v{L}"); k(f"v_sub_u32 v{A3}, 0xffff, v{L}")
    st_('issued')
    ln = []
    A = ln.append
    F, Dv, T0, T1, T2 = L + 32, L + 48, L + 26, L + 27, L + 30
    def hsum(v, t):
        for m in DPP4: A(f"v_add_f32_dpp v{v}, v{v}, v{v} {m}")
        A(f"v_mov_b32 v{t}, v{v}"); A(f"v_permlane16_swap_b32 v{v}, v{t}"); A(f"v_add_f32 v{v}, v{v}, v{t}")
    polln = f"buffer_load_dword v{L+29}, v{L+25}, s[{sDBG}:{sDBG+3}], 0 offen sc1"
    k.wait(vm="LX")
    k(polln, tag="PN")
    for i in range(8): A(f"v_lshlrev_b32 v{F+2*i}, 16, v{XL+i}"); A(f"v_and_b32 v{F+2*i+1}, 0xffff0000, v{XL+i}")
    for i in range(8): A(f"v_add_f32 v{Dv+i}, v{F+2*i}, v{F+2*i+1}")
    for i in range(4): A(f"v_add_f32 v{Dv+i}, v{Dv+i}, v{Dv+4+i}")
    A(f"v_add_f32 v{Dv}, v{Dv}, v{Dv+2}"); A(f"v_add_f32 v{Dv+1}, v{Dv+1}, v{Dv+3}"); A(f"v_add_f32 v{T0}, v{Dv}, v{Dv+1}")
    hsum(T0, T1)
    A(f"v_mul_f32 v{T0}, 0x3b000000, v{T0}")
    for i in range(16): A(f"v_sub_f32 v{Dv+i}, v{F+i}, v{T0}")
    A(f"v_mul_f32 v{T1}, v{Dv}, v{Dv}"); A(f"v_mul_f32 v{T2}, v{Dv+1}, v{Dv+1}")
    for i in range(2, 16, 2): A(f"v_fmac_f32 v{T1}, v{Dv+i}, v{Dv+i}"); A(f"v_fmac_f32 v{T2}, v{Dv+i+1}, v{Dv+i+1}")
    A(f"v_add_f32 v{T1}, v{T1}, v{T2}")
    hsum(T1, T2)
    A(f"v_mul_f32 v{T1}, 0x3b000000, v{T1}")
    A(f"v_cvt_pk_bf16_f32 v{T2}, v{T0}, v{T1}")
    A(f"v_lshlrev_b32 v{T0}, 16, v{T2}"); A(f"v_and_b32 v{T1}, 0xffff0000, v{T2}")
    A(f"v_add_f32 v{T1}, 0x3727c5ac, v{T1}"); A(f"v_cvt_pk_bf16_f32 v{T1}, v{T1}, v{T1}"); A(f"v_lshlrev_b32 v{T1}, 16, v{T1}")
    A(f"v_sqrt_f32 v{T1}, v{T1}")
    for i in range(16): A(f"v_sub_f32 v{Dv+i}, v{F+i}, v{T0}")
    A(f"v_cvt_pk_bf16_f32 v{L+28}, v{T0}, v{T1}")
    A(f"v_and_b32 v{T1}, 0xffff0000, v{L+28}"); A(f"v_rcp_f32 v{T1}, v{T1}")
    for i in range(8): A(f"v_cvt_pk_bf16_f32 v{XL+i}, v{Dv+2*i}, v{Dv+2*i+1}")
    for i in range(8): A(f"v_lshlrev_b32 v{Dv+2*i}, 16, v{XL+i}"); A(f"v_and_b32 v{Dv+2*i+1}, 0xffff0000, v{XL+i}")
    for i in range(16): A(f"v_mul_f32 v{Dv+i}, v{Dv+i}, v{T1}")
    for i in range(8): A(f"v_cvt_pk_bf16_f32 v{XL+i}, v{Dv+2*i}, v{Dv+2*i+1}")
    trickle = D(2) + D(3) + XP(1)
    nv_ = sum(1 for x in trickle if isinstance(x, Ins)); per = len(ln) // nv_
    ti = 0
    for n, x in enumerate(ln):
        k(x)
        if n % per == per - 1:
            while ti < len(trickle):
                y = trickle[ti]; ti += 1; k(y)
                if isinstance(y, Ins): break
    while ti < len(trickle): k(trickle[ti]); ti += 1
    k(f"s_mov_b32 s3, {WS_XN:#x}"); k(f"s_mov_b32 s{sT}, {WS_XN + 32768:#x}")
    k(f"buffer_store_dwordx4 {q4('v', XL)}, v{A0}, s[{sWS}:{sWS+3}], s3 offen sc1", tag="PUB0")
    k(f"buffer_store_dwordx4 {q4('v', XL+4)}, v{A0}, s[{sWS}:{sWS+3}], s{sT} offen sc1", tag="PUB0")
    for x in check_items("PN", polln, [f"v_cmp_eq_u32 vcc, 0, v{L+29}"]):
        if isinstance(x, tuple): k(x[1]); k(x[2])
        else: k(x)
    k(f"s_mov_b32 s3, {W6_STAT:#x}")
    k(f"buffer_store_dwordx2 {q2('v', L+28)}, v{A1}, s[{sWS}:{sWS+3}], s3 offen sc1")
    k(f"v_readfirstlane_b32 s{sTAG}, v{L+29}"); k(f"v_mov_b32 v{FT+1}, v{L+29}")
    ln = []; A = ln.append
    A(f"v_mov_b32 v{T0}, 0")
    for i in range(8): A(f"v_dot2c_f32_bf16 v{T0}, v{XL+i}, v{WL+i}")
    A("s_nop 2")
    hsum(T0, T1)
    A(f"v_cvt_pk_bf16_f32 v{T0}, v{T0}, v{T0}")
    A(f"v_bfe_i32 v{T1}, v{T0}, 15, 1"); A(f"v_and_b32 v{T1}, 0x7fff, v{T1}"); A(f"v_or_b32 v{T1}, 0x8000, v{T1}")
    A(f"v_xor_b32 v{T0}, v{T0}, v{T1}"); A(f"v_lshl_or_b32 v{FT}, v{T0}, 16, v{A3}")
    ln_tail = ln
    st_('ln')

    steps = [[(ks, T) for T in range(8)] for ks in range(12)]
    steps += [[(ks, 2*i+t) for ks in range(12, 16) for t in range(2)] for i in range(4)]
    def wreads(st):
        out = []
        for f, (ks, T) in enumerate(steps[st]):
            i, t = T >> 1, T & 1
            for u in range(2):
                out.append(Ins(f"ds_read_b64_tr_b16 {q2('v', AF + (st&1)*32 + f*4 + u*2)}, v{aW+i} offset:{(ks % 8) * 8192 + u * 1024 + t * 8}", tag=f"W{st}"))
        return out
    k.wait(vm="D1"); k("s_barrier")
    for x in XR(0)[:4] + wreads(0) + XR(0)[4:]: k(x)
    for x in ln_tail: k(x)
    k.wait(lgkm=0)

    pl = Plan(k)
    seen = set(); G0 = {}
    for st in range(16):
        G0[st] = len(pl.mf)
        for f, (ks, T) in enumerate(steps[st]):
            af = q4('v', AF + (st&1)*32 + f*4)
            for qb in range(4):
                a = acc(T, qb)
                pl.mfma(f"{MF} {q4('v', a)}, {af}, {q4('a', (ks*4+qb)*4)}, {q4('v', a) if (T, qb) in seen else '0'}")
                seen.add((T, qb))
            if T < 2:
                a = CS0 + 4 * T
                pl.mfma(f"{MF} {q4('v', a)}, {af}, {q4('v', ONES)}, {q4('v', a) if ('c', T) in seen else '0'}")
                seen.add(('c', T))
    NQ = len(pl.mf); G0[16] = NQ
    units = [(p, qb) for p in range(16 - tailq) for qb in range(4)] + [(p, qb) for qb in range(4) for p in range(16 - tailq, 16)]
    def buf(p): return 2 if (tailq >= 2 and p == 15) else p & 1
    Spos = {}; PVpos = {}; seenO = set(); Xpos = {}
    def Sblk(i):
        p, qb = units[i]
        Spos[i] = len(pl.mf)
        for kb2 in range(2):
            d = S + (i % 4) * 8 + kb2 * 4
            for s in range(4):
                c = q4('v', d) if s else ("0" if p == 0 else q4('v', NM + 4*qb))
                pl.mfma(f"{MF} {q4('v', d)}, {q4('a', KB[buf(p)] + (kb2*4+s)*4)}, {q4('a', QF + (qb*4+s)*4)}, {c}")
    def PVblk(i):
        p, qb = units[i]
        PVpos[i] = len(pl.mf)
        for T in range(8):
            a = acc(T, qb)
            pl.mfma(f"{MF} {q4('v', a)}, {q4('a', VB[buf(p)] + T*4)}, {q4('v', P + 4*(i%4))}, {q4('v', a) if qb in seenO else '0'}")
        seenO.add(qb)
    U1, U2 = 19, 43
    for i in range(64):
        Sblk(i)
        if i >= 2: PVblk(i - 2)
        if i - 2 == U1 - 2:
            Xpos[1] = len(pl.mf)
            for n in range(4): pl.mfma(f"{MF} {q4('v', ONES)}, {q4('a', MA + 16 + 4*n)}, {q4('a', MA + 4*n)}, {q4('v', ONES) if n else '0'}")
        if i - 2 == U2 - 2:
            Xpos[2] = len(pl.mf)
            for n in range(4): pl.mfma(f"{MF} {q4('v', ONES)}, {q4('a', MA + 16 + 4*n)}, {q4('a', MA + 4*n)}, {q4('v', ONES) if n else '0'}")
    PVblk(62); PVblk(63)
    NMF = len(pl.mf); LAST = NMF - 1

    barg = {}
    for st in range(16):
        g0 = G0[st]
        if st > 0: pl.put(g0 - 1, Wait(lgkm=0))
        bar = None
        if st % 2 == 1 and st <= 9: bar = f"D{st+2}"
        if st == 11: bar = "D15"
        if st == 15: bar = "KV0"
        r0 = g0
        if bar:
            pl.put(g0, Wait(vm=bar)); pl.put(g0 + 1, "s_barrier"); r0 = g0 + 1; barg[st] = g0 + 1
        if st < 15: pl.stream(wreads(st + 1), r0, G0[st+1] - 8, spread=True, win=1)
    xr_step = {1: 0, 2: 2, 3: 3, 4: 5, 5: 6, 6: 8, 7: 9}
    for p, st in xr_step.items():
        lo = G0[st] + 10
        pl.stream([Wait(vm=f"XP{p}")] + XR(p), lo, G0[st+1] - 6, win=2)
    vq = [(D(4) + D(5), 0), (XP(2), 0), (XP(3), 0), (D(6) + D(7), 0), (XP(4), G0[1]), (D(8) + D(9), barg[1] + 1), (XP(5), G0[3]), (D(10) + D(11), barg[3] + 1),
          (XP(6), G0[4]), (D(12) + D(13), barg[5] + 1), (XP(7), G0[6]), (D(14) + D(15), barg[7] + 1),
          (KV(0), barg[11] + 1), (KV(1), 0), (KV(2), 0), (KV(3), barg[15] + 1)]
    gq = 0
    for items, lo in vq:
        n = sum(1 for x in items if isinstance(x, Ins))
        lo = max(lo, gq + 1)
        gq = pl.stream(items, lo, lo + 4 * n - 1, spread=True, win=2)
    su = []
    A = su.append
    for d, sz in ((sK, SZ['k']), (sV, SZ['v']), (sWO, SZ['wo'])):
        A(f"s_mov_b32 s{d+2}, {sz:#x}"); A(f"s_mov_b32 s{d+3}, 0x00020000")
    A(f"s_lshl_b32 s{sBKV}, s{sH}, 19"); A(f"s_add_u32 s{sBKV}, s{sBKV}, {1536*256}"); A(f"s_add_u32 s{sBKV}, s{sBKV}, s{sM0K}")
    A(f"s_lshl_b32 s3, s{sQT}, 2"); A(f"s_add_u32 s3, s3, s{sWAVE}")
    A(f"s_lshl_b32 s{sOO}, s3, 19"); A(f"s_lshl_b32 s3, s{sH}, 14"); A(f"s_add_u32 s{sOO}, s{sOO}, s3"); A(f"s_add_u32 s{sOO}, s{sOO}, {WS_O:#x}")
    A(f"s_lshl_b32 s{sBWO}, s{sKSL}, 20"); A(f"s_lshl_b32 s3, s{sCT}, 8"); A(f"s_add_u32 s{sBWO}, s{sBWO}, s3"); A(f"s_lshl_b32 s3, s{sWAVE}, 6"); A(f"s_add_u32 s{sBWO}, s{sBWO}, s3")
    A(f"s_lshl_b32 s3, s{sCT}, 1"); A(f"s_add_u32 s3, s3, s{sRT}"); A(f"s_and_b32 s3, s3, 7")
    A(f"s_lshl_b32 s{sRW}, s3, 17"); A(f"s_or_b32 s{sOWO}, s{sRW}, s{sBWO}")
    A(f"s_mov_b64 s[{sBAD}:{sBAD+1}], 0")
    csu = pl.stream(su, 0, 90)
    sv = []
    A = sv.append
    for i in range(4):
        A(f"s_add_u32 s3, s{sWAVE}, {i}"); A("s_and_b32 s3, s3, 3"); A("s_lshl_b32 s3, s3, 2")
        A(f"v_add_u32 v31, s3, v2"); A("v_xor_b32 v31, v31, v3"); A("v_lshlrev_b32 v31, 4, v31"); A(f"v_lshl_add_u32 v{aK+i}, v3, 8, v31"); A(f"v_add_u32 v{aK+i}, 0x10000, v{aK+i}")
    t0, t1 = oK, oK + 1
    A("v_lshl_add_u32 v31, v2, 2, v29")
    A(f"v_and_b32 v{t0}, 7, v31"); A(f"v_lshlrev_b32 v{t0}, 1, v{t0}")
    A(f"v_lshrrev_b32 v{t1}, 1, v30"); A(f"v_xor_b32 v{t0}, v{t0}, v{t1}")
    A(f"v_and_b32 v{t1}, 1, v30"); A(f"v_lshlrev_b32 v{t1}, 3, v{t1}"); A(f"v_lshl_add_u32 v{t1}, v31, 8, v{t1}")
    A(f"v_add_u32 v{t1}, {16384 + 65536}, v{t1}")
    for T in range(8):
        A(f"v_xor_b32 v{aV+T}, {2*T}, v{t0}"); A(f"v_lshl_add_u32 v{aV+T}, v{aV+T}, 4, v{t1}")
    for i in range(4):
        A(f"v_add_u32 v31, {4*i}, v2"); A("v_xor_b32 v31, v31, v3"); A("v_lshlrev_b32 v31, 4, v31"); A(f"v_lshl_add_u32 v{oK+i}, v2, 8, v31")
    for i in range(2):
        A(f"v_add_u32 v31, {4*i}, v2"); A("v_lshlrev_b32 v31, 1, v31"); A("v_xor_b32 v31, v31, v3"); A("v_lshlrev_b32 v31, 4, v31"); A(f"v_lshl_add_u32 v{oV+i}, v2, 8, v31")
    csv = pl.stream(sv, csu + 1, G0[6])
    c = pl.stream([Wait(vm="PUB0"), f"buffer_store_dwordx2 {q2('v', FT)}, v{FT+2}, s[{sWS}:{sWS+3}], 0 offen sc1"], barg[3] + 2, barg[3] + 12, win=2)
    if kvpf:
        ms = [f"s_lshl_b32 s{sM1}, s{sQT}, 14", f"s_add_u32 s{sM1}, s{sM1}, s{sBKV}", f"v_lshlrev_b32 v{FT+3}, 6, v1",
              f"buffer_load_dword v{FT+4}, v{FT+3}, s[{sK}:{sK+3}], s{sM1} offen", f"buffer_load_dword v{FT+5}, v{FT+3}, s[{sV}:{sV+3}], s{sM1} offen"]
        c = pl.stream(ms, max(c + 1, csu + 1, G0[kvpf]), G0[kvpf + 1] - 1, win=2)
    stl = [f"buffer_load_dwordx2 {q2('v', STAT + 2*qb)}, v{FT+2}, s[{sWS}:{sWS+3}], s{sM1} offen{off(qb*256)} sc1" for qb in range(4)]
    its = [f"s_lshr_b32 s{sM1}, s{sBX}, 6", f"s_add_u32 s{sM1}, s{sM1}, {W6_STAT:#x}", f"v_lshlrev_b32 v{FT+2}, 4, v3"] + [Ins(t, tag="STAT") for t in stl]
    c = pl.stream(its, max(c + 1, G0[10] - 4), G0[10] + 20, win=2)
    cm = [f"v_xor_b32 v{FT}, s{sTAG}, v{STAT+1}", f"v_xor_b32 v{FT+1}, s{sTAG}, v{STAT+3}", f"v_xor_b32 v{FT+3}, s{sTAG}, v{STAT+5}", f"v_or3_b32 v{FT}, v{FT}, v{FT+1}, v{FT+3}",
          f"v_xor_b32 v{FT+1}, s{sTAG}, v{STAT+7}", f"v_or_b32 v{FT}, v{FT}, v{FT+1}", f"v_cmp_ne_u32 vcc, 0, v{FT}"]
    its = check_items("STAT", stl, cm)
    for qb in range(4):
        a, b = STAT + 2*qb, STAT + 2*qb + 1
        its += [f"v_and_b32 v{b}, 0xffff0000, v{a}", f"v_rcp_f32 v{b}, v{b}", f"v_lshlrev_b32 v{a}, 16, v{a}", f"v_sub_f32 v{a}, 0, v{a}", f"v_mul_f32 v{b}, {QSCALE:#x}, v{b}"]
    c = pstream(pl, its, G0[12] + 2, G0[13] - 1, win=2)
    its = [f"v_lshrrev_b32 v31, 2, v1", f"v_lshlrev_b32 v31, 10, v31", f"v_lshl_add_u32 v{oWO}, v30, 4, v31"] + [f"v_add_u32 v{oWO+i}, {i*15360}, v{oWO}" for i in range(1, 4)]
    its += [f"v_add_u32 v{oW}, s{sM0O}, v{oL}", f"v_add_u32 v{oW}, {R4 + 6144}, v{oW}", f"v_add_u32 v{oW+1}, {R4 + 6144}, v{oL}"]
    pl.stream(its, G0[11] + 2, G0[12] - 1)
    g13 = G0[13]
    pl.stream([f"ds_write_b128 v{oW}, {q4('v', CS0)}", Ins(f"ds_write_b128 v{oW}, {q4('v', CS0+4)} offset:1024", tag="CSW")], g13 + 3, g13 + 8, win=1)
    cb = g13 + 16
    pl.put(cb - 1, Wait(lgkm="CSW")); pl.put(cb, "s_barrier")
    def csread(i, dst, lo, hi):
        c = pl.stream([f"s_add_u32 s3, s{sWAVE}, {i}", "s_and_b32 s3, s3, 3", "s_lshl_b32 s3, s3, 13", f"v_add_u32 v31, s3, v{oW+1}"], lo, hi, win=1)
        return pl.stream([f"ds_read_b128 {q4('v', dst)}, v31", Ins(f"ds_read_b128 {q4('v', dst+4)}, v31 offset:1024", tag=f"CS{i}")], max(c + 1, cb), hi, win=1)
    csreg = {0: CS0, 1: CSX, 2: CS0, 3: CSX}
    cur = 0; fin_end = {}
    for i in range(4):
        lo = max(cur, G0[13 + i] + (3 if i < 3 else -1))
        if i >= 1: pl.put(lo - 1, Wait(lgkm=f"CS{i}"))
        for qb in range(4):
            a0, a1 = acc(2*i, qb), acc(2*i+1, qb)
            cs = csreg[i]
            ops = [f"v_fmac_f32 v{a0+n}, v{cs+n}, v{STAT+2*qb}" for n in range(4)] + [f"v_fmac_f32 v{a1+n}, v{cs+4+n}, v{STAT+2*qb}" for n in range(4)]
            ops += [f"v_mul_f32 v{a0+n}, v{a0+n}, v{STAT+2*qb+1}" for n in range(4)] + [f"v_mul_f32 v{a1+n}, v{a1+n}, v{STAT+2*qb+1}" for n in range(4)]
            ops += [f"v_cvt_pk_bf16_f32 v{a0}, v{a0}, v{a0+1}", f"v_cvt_pk_bf16_f32 v{a0+1}, v{a0+2}, v{a0+3}",
                    f"v_cvt_pk_bf16_f32 v{a0+2}, v{a1}, v{a1+1}", f"v_cvt_pk_bf16_f32 v{a0+3}, v{a1+2}, v{a1+3}"]
            ops += [f"v_accvgpr_write_b32 a{QF + (qb*4+i)*4 + n}, v{a0+n}" for n in range(4)]
            if i < 3:
                span = G0[14 + i] + (2 if i < 2 else -2) - lo
                l2 = lo + (qb * span) // 4; h2 = lo + ((qb + 1) * span) // 4 - 1
                cur = pl.stream(ops, max(cur, l2), h2, spread=True, win=0)
            else:
                cur = pl.stream(ops, max(cur, lo), Spos[qb] + 2, spread=True, win=0)
        fin_end[i] = cur
        if i == 0: csread(1, CSX, cb - 4, cb + 8)
        if i in (0, 1): pass
    csread(2, CS0, fin_end[0] + 1, fin_end[0] + 14); csread(3, CSX, fin_end[1] + 1, fin_end[1] + 14)

    def kreads(p):
        slot = (p // 2) % 4
        return [Ins(f"ds_read_b128 {q4('a', KB[buf(p)] + (kb2*4+s)*4)}, v{aK+s} offset:{(slot & 1) * 32768 + (p & 1) * 8192 + kb2 * 4096}", tag=f"K{p}")
                for kb2 in range(2) for s in range(4)]
    def vreads(p):
        slot = (p // 2) % 4
        return [Ins(f"ds_read_b64_tr_b16 {q2('a', VB[buf(p)] + T*4 + u*2)}, v{aV+T} offset:{(slot & 1) * 32768 + (p & 1) * 8192 + u * 4096}", tag=f"V{p}")
                for T in range(8) for u in range(2)]
    firstS = {}; firstPV = {}; lastS = {}; lastPV = {}
    for i, (p, qb) in enumerate(units):
        firstS.setdefault(p, Spos[i]); firstPV.setdefault(p, PVpos[i]); lastS[p] = Spos[i] + 7; lastPV[p] = PVpos[i] + 7
    vcur = cur
    PAT = [("E",0,0),("E",1,1),("A",0,2),("E",2,3),("A",1,4),("C",0,4),("E",3,5),("A",2,6),("E",4,7),("A",3,8),("C",1,8),("E",5,9),("A",4,10),
           ("E",6,11),("A",5,12),("C",2,12),("E",7,13),("A",6,14),("A",7,15),("C",3,15)]
    lastunit = {qb: max(i for i, u in enumerate(units) if u[1] == qb) for qb in range(4)}
    for i, (p, qb) in enumerate(units):
        b = S + (i % 4) * 8
        w0 = Spos[i] + 7 + 3
        dead = PVpos[i] - 1
        def op(kind, n):
            if kind == "E": return f"v_exp_f32 v{b+n}, v{b+n}"
            if kind == "A":
                if p == 0 and n < 2: return f"v_mov_b32 v{LS+2*qb+n}, v{b+n}"
                return f"v_add_f32 v{LS+2*qb+(n&1)}, v{LS+2*qb+(n&1)}, v{b+n}"
            return f"v_cvt_pk_bf16_f32 v{P+4*(i%4)+n}, v{b+2*n}, v{b+2*n+1}"
        if p == 0:
            t = ONES
            ops = [f"v_max3_f32 v{t}, v{b}, v{b+1}, v{b+2}", f"v_max3_f32 v{t+1}, v{b+3}, v{b+4}, v{b+5}", f"v_max3_f32 v{t}, v{t}, v{b+6}, v{b+7}", f"v_max_f32 v{t}, v{t}, v{t+1}"]
            for sw in ("v_permlane32_swap_b32", "v_permlane16_swap_b32"):
                ops += [f"v_mov_b32 v{t+1}, v{t}", f"{sw} v{t}, v{t+1}", f"v_max_f32 v{t}, v{t}, v{t+1}"]
            ops += [f"v_sub_f32 v{b+n}, v{b+n}, v{t}" for n in range(8)]
            ops += [f"v_sub_f32 v{NM+4*qb+n}, 0, v{t}" for n in range(4)]
            ops += [op(kd, n) for kd, n, _ in PAT]
            vcur = pl.stream(ops, min(dead, max(w0, vcur)), dead, spread=True, win=0)
        elif w0 + 15 <= dead and w0 > vcur:
            for kd, n, pos in PAT: pl.put(w0 + pos, op(kd, n))
            pl.mslots |= {w0 + j for j in (2, 4, 6, 8, 10, 12, 14)}
            vcur = w0 + 15
        else:
            lo = max(min(w0, dead), vcur)
            vcur = pl.stream([op(kd, n) for kd, n, _ in PAT], lo, min(dead, max(w0 + 15, lo + 12)), spread=True, win=0)
    Bgap = {0: barg[15]}
    for j in range(1, 8):
        p = 2*j - 1
        Bgap[j] = firstPV[p] - 1
        pl.put(Bgap[j] - 1, Wait(vm=f"KV{j}", lgkm=0)); pl.put(Bgap[j], "s_barrier")
    cur = Bgap[0]
    order = []
    for p in range(16):
        order.append(("K", p))
        if not (tailq >= 2 and p == 14): order.append(("V", p))
        if tailq >= 2 and p == 15: order.insert(len(order) - 1, ("V", 14))
    cur_k = cur_v = 0
    for kind, p in order:
        lo = max(cur, Bgap[p // 2])
        prevuser = [pp for pp in range(p) if buf(pp) == buf(p)]
        if kind == "K":
            if prevuser: lo = max(lo, lastS[prevuser[-1]])
            hi = firstS[p] - 5
            if p % 4 == 0 and p: pl.stream([f"v_xor_b32 v{aK+s}, 0x10000, v{aK+s}" for s in range(4)], max(cur_k + 1, lo - 12), lo - 1, spread=True, win=1)
            n_av = hi - lo + 1
            cur = cur_k = pl.stream(kreads(p), lo, hi, win=(None if n_av >= 20 and p else 1), spread=(n_av < 20 or p == 0))
            pl.put(firstS[p] - 1, Wait(lgkm=f"K{p}"))
        else:
            if prevuser: lo = max(lo, lastPV[prevuser[-1]])
            hi = firstPV[p] - 7
            if p % 4 == 0 and p: pl.stream([f"v_xor_b32 v{aV+T}, 0x10000, v{aV+T}" for T in range(8)], max(cur_v + 1, lo - 24), lo - 1, spread=True, win=1)
            n_av = hi - lo + 1
            cur = cur_v = pl.stream(vreads(p), lo, hi, win=(None if n_av >= 36 and p > 1 else 1), spread=(n_av < 36 or p <= 1))
            if p % 2 == 0 or p == 15: pl.put(firstPV[p] - 1, Wait(lgkm=f"V{p}"))
    mw = [f"s_and_b32 s{sT}, s2, 7", f"s_mul_i32 s{sT}, s{sT}, 22", f"s_lshr_b32 s{sOW}, s2, 3", f"s_add_u32 s{sT}, s{sT}, s{sOW}",
          ("pair", f"s_cmp_lt_u32 s{sOW}, 22", f"s_cselect_b32 s{sBW}, s{sT}, 172"),
          f"s_lshl_b32 s{sT}, s{sBW}, 4", f"s_mul_i32 s{sOW}, s{sWAVE}, {128*2752}", f"s_add_u32 s{sOW}, s{sOW}, s{sT}",
          ("pair", f"s_cmp_lt_u32 s{sBW}, 172", f"s_cselect_b32 s{sOW}, s{sOW}, {OOB:#x}"),
          f"s_add_u32 s{sOX}, s{sOW}, {64*2752}",
          f"v_mul_u32_u24 v{aW}, 2752, v1"]
    w1 = []
    for mat, ptr in enumerate((pWG, pWU)):
        w1 += [f"s_mov_b32 s{sTS}, s{ptr}", f"s_mov_b32 s{sTS+1}, s{ptr+1}", f"s_mov_b32 s{sTS+2}, {SZ['wg']:#x}", f"s_mov_b32 s{sTS+3}, 0x00020000"]
        for hf in range(2):
            w1 += [f"s_add_u32 m0, s{sM0O}, {R4 + mat*2048 + hf*1024}", Ins(f"buffer_load_dwordx4 v{aW}, s[{sTS}:{sTS+3}], s{(sOW, sOX)[hf]} offen lds", tag="W1")]
    w2 = [f"s_mov_b32 s{sTS}, s{pWD}", f"s_mov_b32 s{sTS+1}, s{pWD+1}", f"s_mov_b32 s{sTS+2}, {SZ['wd']:#x}", f"s_mov_b32 s{sTS+3}, 0x00020000",
          f"s_lshl_b32 s{sM0W}, s{sQT}, 2", f"s_add_u32 s{sM0W}, s{sM0W}, s{sWAVE}",
          f"s_lshl_b32 s{sOW}, s{sM0W}, 17", f"s_lshl_b32 s{sT}, s{sH}, 5", f"s_add_u32 s{sOW}, s{sOW}, s{sT}",
          f"v_lshrrev_b32 v{aW+1}, 1, v1", f"v_lshlrev_b32 v{aW+1}, 10, v{aW+1}", f"v_and_b32 v{aW+3}, 1, v1", f"v_lshl_add_u32 v{aW+1}, v{aW+3}, 4, v{aW+1}"]
    for e in range(4):
        w2 += [f"s_add_u32 m0, s{sM0O}, {R4 + e*1024}", Ins(f"buffer_load_dwordx4 v{aW+1}, s[{sTS}:{sTS+3}], s{sOW} offen lds", tag="W2"), f"s_add_u32 s{sOW}, s{sOW}, 32768"]
    def pairstream(items, lo, hi, **kw):
        cur = lo; b = []
        for x in items:
            if isinstance(x, tuple):
                if b: cur = pl.stream(b, cur, hi, **kw); b = []
                cur += 1
                while pl._g(cur)["s"]: cur += 1
                pl.put(cur, x[1]); pl.put(cur, x[2], cls="s")
            else: b.append(x)
        if b: cur = pl.stream(b, cur, hi, **kw)
        return cur
    dcur = pairstream(mw + w1, max(gq + 1, NQ + 2), Bgap[1] - 2, win=2)
    dm = []
    for j in range(1, 5):
        if j == 3: dm.append((w2, Bgap[3] + 1, Bgap[3] + 50, 2))
        dm.append((KV(j + 3), Bgap[j] + 1, Bgap[j+1] - 2, None))
    dm.append((WO(0) + WO(1), Bgap[5] + 1, Bgap[6] - 2, None)); dm.append((WO(2) + WO(3), Bgap[6] + 1, Bgap[7] - 2, None)); dm.append((WO(4) + WO(5) + WO(6) + WO(7), Bgap[7] + 50, LAST - 30, 3))
    for items, lo, hi, w in dm:
        dcur = pl.stream(items, max(lo, dcur + 1), hi, win=w, spread=bool(w))
    m = MT
    fin3 = fin_end[3]
    keyl = [f"buffer_load_dwordx4 {q4('v', m + 4*n)}, v{oL}, s[{sWS}:{sWS+3}], s{sM0K} offen{off(n*1024)} sc1" for n in range(4)]
    assert W6_KEY == 0
    c = pl.stream([Ins(t, tag="KEYS") for t in keyl], Bgap[1] - 30, Bgap[1] - 6, spread=True, win=1)
    t0_, t1_ = ONES, ONES + 1
    cm = [f"v_min3_u32 v{t0_}, v{m+1}, v{m+3}, v{m+5}", f"v_max3_u32 v{t1_}, v{m+1}, v{m+3}, v{m+5}"]
    for a, b in ((7, 9), (11, 13)): cm += [f"v_min3_u32 v{t0_}, v{t0_}, v{m+a}, v{m+b}", f"v_max3_u32 v{t1_}, v{t1_}, v{m+a}, v{m+b}"]
    cm += [f"v_min3_u32 v{t0_}, v{t0_}, v{m+15}, s{sTAG}", f"v_max3_u32 v{t1_}, v{t1_}, v{m+15}, s{sTAG}", f"v_cmp_ne_u32 vcc, v{t0_}, v{t1_}"]
    c = pstream(pl, check_items("KEYS", keyl, cm), Bgap[1] + 30, Bgap[1] + 50, spread=False, win=1)
    m1, m2, mt = ONES, ONES + 1, ONES + 2
    def top2of8(st=1):
        o = [f"v_max_u32 v{m1}, v{m}, v{m+st}", f"v_min_u32 v{m2}, v{m}, v{m+st}"]
        for i in range(2, 8): o += [f"v_med3_u32 v{m2}, v{m1}, v{m2}, v{m+i*st}", f"v_max_u32 v{m1}, v{m1}, v{m+i*st}"]
        return o
    def wmax(v, t):
        o = [f"v_max_u32_dpp v{v}, v{v}, v{v} {d}" for d in DPP4]
        for sw in ("v_permlane16_swap_b32", "v_permlane32_swap_b32"): o += [f"v_mov_b32 v{t}, v{v}", f"{sw} v{v}, v{t}", f"v_max_u32 v{v}, v{v}, v{t}"]
        return o
    its = top2of8(2) + [f"v_mov_b32 v{m}, v{m1}"] + wmax(m, mt) + [f"v_cmp_eq_u32 vcc, v{m}, v{m1}", f"v_cndmask_b32 v{m+1}, v{m1}, v{m2}, vcc"] + wmax(m + 1, mt)
    its += [f"v_mov_b32 v{mt}, s{sM0O}", f"v_add_u32 v{mt}, {R4 + 6144}, v{mt}", f"ds_write_b64 v{mt}, {q2('v', m)}"]
    c = pl.stream(its, c + 1, Bgap[2] - 6, spread=True, win=0)
    its = [f"v_mov_b32 v{mt}, {R4 + 6144}"] + [Ins(f"ds_read_b64 {q2('v', m + 2*w)}, v{mt} offset:{w*8192}", tag="T2R") for w in range(4)]
    c = pl.stream(its, Bgap[2], Bgap[2] + 8, win=1)
    its = [f"v_lshl_add_u32 v{aW}, v2, 3, v29", f"v_lshlrev_b32 v{aW}, 4, v{aW}", f"v_lshrrev_b32 v{aW+2}, 1, v30", f"v_lshl_add_u32 v{aW}, v{aW+2}, 11, v{aW}",
           f"v_and_b32 v{aW+2}, 1, v30", f"v_lshl_add_u32 v{aW}, v{aW+2}, 3, v{aW}", f"v_add_u32 v{aW}, s{sM0O}, v{aW}", f"v_add_u32 v{aW}, {R4}, v{aW}"]
    its += [Wait(lgkm="T2R")] + top2of8()
    its += [f"v_readfirstlane_b32 s{sK1}, v{m1}", f"v_readfirstlane_b32 s{sK2}, v{m2}",
            f"v_and_b32 v{mt}, 1, v1", f"v_cmp_eq_u32 vcc, 1, v{mt}", f"v_cndmask_b32 v{m}, v{m1}, v{m2}, vcc",
            f"v_and_b32 v{m}, 0xffff, v{m}", f"v_sub_u32 v{m}, 0xffff, v{m}",
            f"v_lshrrev_b32 v{m+1}, 6, v{m}", f"v_lshlrev_b32 v{m+1}, 16, v{m+1}", f"v_bfe_u32 v{mt}, v{m}, 4, 2", f"v_lshl_add_u32 v{m+1}, v{mt}, 10, v{m+1}",
            f"v_lshl_add_u32 v{m+1}, v2, 8, v{m+1}", f"v_and_b32 v{mt}, 15, v{m}", f"v_lshl_add_u32 v{m+1}, v{mt}, 4, v{m+1}",
            f"s_lshl_b32 s{sM1}, s{sWAVE}, 14", f"s_add_u32 s{sM1}, s{sM1}, {WS_XN:#x}"]
    for n in range(4):
        its += [Ins(f"buffer_load_dwordx4 {q4('a', MA + 4*n)}, v{m+1}, s[{sWS}:{sWS+3}], s{sM1} offen sc1", tag="XS"), f"s_add_u32 s{sM1}, s{sM1}, 4096"]
    c = pl.stream(its, c + 1, c + 44, spread=True, win=0)
    its = [Ins(f"ds_read_b64_tr_b16 {q2('a', MA + 16 + 4*n + 2*u)}, v{aW} offset:{n*512 + u*64}", tag="W1R") for n in range(4) for u in range(2)]
    c = pl.stream([Wait(vm="W1")] + its, c + 1, Xpos[1] - 6, spread=True, win=1)
    pl.put(Xpos[1] - 1, Wait(vm="XS", lgkm="W1R"))
    assert Xpos[1] + 12 < Bgap[3] - 4, (Xpos, Bgap)
    pl.stream([f"ds_write_b128 v{oW}, {q4('v', ONES)} offset:1024"], Xpos[1] + 8, Xpos[1] + 12, win=1)
    its = [Ins(f"ds_read_b128 {q4('v', m + 4*w)}, v{oW+1} offset:{w*8192 + 1024}", tag="S1R") for w in range(4)]
    c = pl.stream(its, Bgap[3], Bgap[3] + 8, win=1)
    e0 = ONES
    its = [Wait(lgkm="S1R")]
    for n in range(4): its += [f"v_add_f32 v{m+n}, v{m+n}, v{m+4+n}", f"v_add_f32 v{m+8+n}, v{m+8+n}, v{m+12+n}"]
    for n in range(4): its += [f"v_add_f32 v{m+n}, v{m+n}, v{m+8+n}"]
    its += [f"v_cvt_pk_bf16_f32 v{m+4}, v{m}, v{m+1}", f"v_cvt_pk_bf16_f32 v{m+5}, v{m+2}, v{m+3}", f"v_mov_b32 v{m+6}, v{m+4}", f"v_mov_b32 v{m+7}, v{m+5}",
            f"v_permlane32_swap_b32 v{m+4}, v{m+6}", f"v_permlane32_swap_b32 v{m+5}, v{m+7}"]
    for n in range(2):
        its += [f"v_lshlrev_b32 v{m+2*n}, 16, v{m+4+n}", f"v_and_b32 v{m+2*n+1}, 0xffff0000, v{m+4+n}", f"v_lshlrev_b32 v{m+8+2*n}, 16, v{m+6+n}", f"v_and_b32 v{m+8+2*n+1}, 0xffff0000, v{m+6+n}"]
    its += [f"v_mul_f32 v{m+12+n}, 0xbfb8aa3b, v{m+n}" for n in range(4)] + [f"v_exp_f32 v{m+12+n}, v{m+12+n}" for n in range(4)]
    its += [f"v_add_f32 v{m+12+n}, 1.0, v{m+12+n}" for n in range(4)] + [f"v_rcp_f32 v{m+12+n}, v{m+12+n}" for n in range(4)]
    its += [f"v_mul_f32 v{m+n}, v{m+n}, v{m+12+n}" for n in range(4)]
    its += [f"v_cvt_pk_bf16_f32 v{m+4}, v{m}, v{m+1}", f"v_cvt_pk_bf16_f32 v{m+5}, v{m+2}, v{m+3}"]
    for n in range(2): its += [f"v_lshlrev_b32 v{m+2*n}, 16, v{m+4+n}", f"v_and_b32 v{m+2*n+1}, 0xffff0000, v{m+4+n}"]
    its += [f"v_mul_f32 v{m+n}, v{m+n}, v{m+8+n}" for n in range(4)]
    its += [f"v_cvt_pk_bf16_f32 v{m+4}, v{m}, v{m+1}", f"v_cvt_pk_bf16_f32 v{m+5}, v{m+2}, v{m+3}"]
    its += [f"v_and_b32 v{m+6}, 1, v1", f"v_lshlrev_b32 v{m+6}, 4, v{m+6}", f"v_and_b32 v{m+7}, 1, v2", f"v_lshl_add_u32 v{m+7}, v{m+7}, 3, v{m+6}", f"v_mov_b32 v{m}, s{sTAG}", f"v_mov_b32 v{m+1}, 64"]
    spart = [f"s_lshl_b32 s{sM1}, s{sBW}, 7", f"s_add_u32 s{sM1}, s{sM1}, {W6_H:#x}", ("pair", f"s_cmp_lt_u32 s{sBW}, 172", f"s_cselect_b32 s{sM1}, s{sM1}, {OOB:#x}"),
             ("pair", f"s_cmp_eq_u32 s{sWAVE}, 0", f"s_cselect_b32 s{sM1}, s{sM1}, {OOB:#x}")]
    pairstream(spart, c + 1, c + 30, win=1)
    c = pl.stream(its + [Ins(f"buffer_store_dwordx2 {q2('v', m+4)}, v{m+7}, s[{sWS}:{sWS+3}], s{sM1} offen sc1", tag="HS")], c + 4, Bgap[4] - 50, spread=True, win=0)
    c = pl.stream([Wait(vm="HS"), f"buffer_store_dword v{m}, v{m+1}, s[{sWS}:{sWS+3}], s{sM1} offen sc1"], Bgap[4] + 2, Bgap[4] + 12, win=1)
    pollh = f"buffer_load_dword v{m}, v{m+1}, s[{sWS}:{sWS+3}], s{sM1} offen sc1"
    its = [f"s_lshl_b32 s{sM1}, s{sM0W}, 4", f"v_add_u32 v{m+1}, s{sM1}, v3", f"v_min_u32 v{m+1}, 171, v{m+1}", f"v_lshlrev_b32 v{m+1}, 7, v{m+1}", f"s_mov_b32 s{sM1}, {W6_H + 64:#x}", Ins(pollh, tag="PH")]
    c = pl.stream(its, Bgap[5] - 50, Bgap[5] - 30, win=1)
    its = check_items("PH", pollh, [f"v_cmp_ne_u32 vcc, s{sTAG}, v{m}"])
    its += [f"v_lshl_add_u32 v{m+7}, v2, 7, v{m+6}"]
    for e in range(4):
        its += [f"s_lshl_b32 s{sM1}, s{sM0W}, 2", f"s_add_u32 s{sM1}, s{sM1}, {e}", f"s_min_u32 s{sM1}, s{sM1}, 42", f"s_lshl_b32 s{sM1}, s{sM1}, 9", f"s_add_u32 s{sM1}, s{sM1}, {W6_H:#x}",
                Ins(f"buffer_load_dwordx4 {q4('a', MA + 4*e)}, v{m+7}, s[{sWS}:{sWS+3}], s{sM1} offen sc1", tag="HL")]
    c = pstream(pl, its, Bgap[5] + 2, Bgap[5] + 44, win=1)
    its = [f"v_lshl_add_u32 v{aW}, v2, 3, v29", f"v_lshlrev_b32 v{aW}, 5, v{aW}", f"v_lshl_add_u32 v{aW}, v30, 3, v{aW}", f"v_add_u32 v{aW}, s{sM0O}, v{aW}", f"v_add_u32 v{aW}, {R4}, v{aW}", Wait(vm="W2")]
    its += [Ins(f"ds_read_b64_tr_b16 {q2('a', MA + 16 + 4*e + 2*u)}, v{aW} offset:{e*1024 + u*128}", tag="W2R") for e in range(4) for u in range(2)]
    c = pl.stream(its, c + 1, Xpos[2] - 4, spread=True, win=1)
    pl.put(Xpos[2] - 1, Wait(vm="HL", lgkm="W2R"))
    assert Xpos[2] + 12 < Bgap[6] - 4
    pl.stream([f"ds_write_b128 v{oW}, {q4('v', ONES)}"], Xpos[2] + 8, Xpos[2] + 12, win=1)
    c = pl.stream([Ins(f"ds_read_b128 {q4('v', m + 4*w)}, v{oW+1} offset:{w*8192}", tag="S2R") for w in range(4)], Bgap[6], Bgap[6] + 8, win=1)
    spart = [f"s_lshl_b32 s{sM1}, s{sQT}, 5", f"s_add_u32 s{sM1}, s{sM1}, s{sH}", f"s_lshl_b32 s{sM1}, s{sM1}, 7", f"s_add_u32 s{sM1}, s{sM1}, {W6_YP:#x}",
             ("pair", f"s_cmp_lt_u32 s{sQT}, 3", f"s_cselect_b32 s{sM1}, s{sM1}, {OOB:#x}"), ("pair", f"s_cmp_eq_u32 s{sWAVE}, 0", f"s_cselect_b32 s{sM1}, s{sM1}, {OOB:#x}")]
    pairstream(spart, c + 1, c + 20, win=1)
    its = [Wait(lgkm="S2R")]
    for n in range(4): its += [f"v_add_f32 v{m+n}, v{m+n}, v{m+4+n}", f"v_add_f32 v{m+8+n}, v{m+8+n}, v{m+12+n}"]
    for n in range(4): its += [f"v_add_f32 v{m+n}, v{m+n}, v{m+8+n}"]
    its += [f"v_and_b32 v{m+4}, 1, v1", f"v_lshlrev_b32 v{m+4}, 6, v{m+4}", f"v_lshl_add_u32 v{m+4}, v2, 4, v{m+4}",
            f"buffer_store_dwordx4 {q4('v', m)}, v{m+4}, s[{sWS}:{sWS+3}], s{sM1} offen sc1"]
    c = pl.stream(its, c + 6, c + 50, spread=True, win=0)
    assert c < Bgap[7]
    def ofin_head(qb, t, usepk):
        l0 = LS + 2 * qb
        ops = [f"v_add_f32 v{t}, v{l0}, v{l0+1}"]
        for sw in ("v_permlane32_swap_b32", "v_permlane16_swap_b32"):
            ops += [f"v_mov_b32 v{t+1}, v{t}", f"{sw} v{t}, v{t+1}", f"v_add_f32 v{t}, v{t}, v{t+1}"]
        return ops
    def ofin_body(qb, t, usepk, tag):
        ops = []
        for s in range(4):
            a0, a1 = acc(2*s, qb), acc(2*s+1, qb)
            if usepk: ops += [f"v_pk_mul_f32 {q2('v', a)}, {q2('v', a)}, {q2('v', t)}" for a in (a0, a0+2, a1, a1+2)]
            else: ops += [f"v_mul_f32 v{a0+n}, v{a0+n}, v{t}" for n in range(4)] + [f"v_mul_f32 v{a1+n}, v{a1+n}, v{t}" for n in range(4)]
            ops += [f"v_cvt_pk_bf16_f32 v{a0}, v{a0}, v{a0+1}", f"v_cvt_pk_bf16_f32 v{a0+1}, v{a0+2}, v{a0+3}",
                    f"v_cvt_pk_bf16_f32 v{a0+2}, v{a1}, v{a1+1}", f"v_cvt_pk_bf16_f32 v{a0+3}, v{a1+2}, v{a1+3}"]
            st = f"buffer_store_dwordx4 {q4('v', a0)}, v{oL}, s[{sWS}:{sWS+3}], s{sST} offen{off(qb*1024)} sc1"
            ops += [f"s_add_u32 s{sST}, s{sOO}, {s*4096}", Ins(st, tag=tag) if tag else unc(st)]
        return ops
    ocur = 0
    pl.put(Bgap[7] + 4, f"v_mov_b32 v31, {f32(2.0**-24) if force_slow else f32(2.0**24):#x}")
    for qb in range(4):
        i = lastunit[qb]
        t = MT + 2 * qb
        usepk = pk and qb == 3
        ops = ofin_head(qb, t, usepk) + [f"v_cmp_nle_f32 s[{sC2}:{sC2+1}], v{t}, v31", f"v_rcp_f32 v{t}, v{t}"] + ([f"v_mov_b32 v{t+1}, v{t}"] if usepk else [])
        ops += [f"s_or_b64 s[{sBAD}:{sBAD+1}], s[{sBAD}:{sBAD+1}], s[{sC2}:{sC2+1}]"]
        pl.stream(ops, PVpos[i] - 1, min(LAST, PVpos[i] + 7), spread=True, win=0)
        lo = min(LAST, max(ocur, PVpos[i] + 7 + 3))
        hi = min(LAST, lo + 16 * tailq - 4)
        ocur = pl.stream(ofin_body(qb, t, usepk, "OST"), lo, hi, spread=True, win=0)
    for nm, gp in (("q1", 0), ("qhalf", G0[8]), ("qend", NQ - 1), ("ahalf", NQ + 512), ("aend", LAST - 1)) + tuple((f"a{n}", NQ + 128*n) for n in range(1, 8)) + tuple((f"q{n}", G0[n]) for n in range(2, 16)):
        if nm in prof:
            for x in stamp_ins(prof.index(nm)): pl.put(gp, x)
    over = pl.emit()
    print("[k6] overflow per 64 gaps:", [sum(max(0, pl.load(i)-8) for i in range(b, min(b+64, LAST))) for b in range(0, NMF, 64)])
    print(f"[k6] QA mfma={NMF} overflow_cycles={over} tail={pl.load(LAST)}")

    slow = k.label("slow"); sback = k.label("sback")
    k(f"s_cmp_lg_u64 s[{sBAD}:{sBAD+1}], 0"); k(f"s_cbranch_scc1 {slow}")
    k(f"{sback}:")
    O = ool.append
    def OI(t): ool.append(Ins(t))
    OI(f"{slow}:")
    O(loopwait())
    OI(f"s_sub_u32 s{sOKV}, s{sBKV}, s{sM0K}")
    for i in range(4):
        OI(f"s_add_u32 s3, s{sWAVE}, {i}"); OI("s_and_b32 s3, s3, 3"); OI("s_lshl_b32 s3, s3, 6")
        OI(f"v_lshlrev_b32 v{aK+i}, 8, v3"); OI(f"v_lshl_add_u32 v{aK+i}, v2, 4, v{aK+i}"); OI(f"v_add_u32 v{aK+i}, s3, v{aK+i}")
    OI(f"v_lshl_add_u32 v{aV}, v2, 2, v29"); OI(f"v_lshlrev_b32 v{aV}, 8, v{aV}"); OI(f"v_lshl_add_u32 v{aV}, v30, 3, v{aV}"); OI(f"v_add_u32 v{aV}, s{sM0O}, v{aV}"); OI(f"v_add_u32 v{aV}, {zslot(0)}, v{aV}")
    for qb in range(4): OI(f"v_mov_b32 v{MT+qb}, 0xff800000")
    def kload():
        for kb2 in range(2):
            OI(f"s_add_u32 s3, s{sT}, {kb2*4096}")
            for i in range(4): O(unc(f"buffer_load_dwordx4 {q4('a', KB[0] + (kb2*4+i)*4)}, v{aK+i}, s[{sK}:{sK+3}], s3 offen"))
    def smfma(useNM):
        for qb in range(4):
            for kb2 in range(2):
                d = S + qb*8 + kb2*4
                for s in range(4):
                    c = q4('v', d) if s else (q4('v', NM + 4*qb) if useNM else "0")
                    OI(f"{MF} {q4('v', d)}, {q4('a', KB[0] + (kb2*4+s)*4)}, {q4('a', QF + (qb*4+s)*4)}, {c}")
        OI("s_nop 7")
    l1 = k.label("sl1"); l2 = k.label("sl2")
    OI(f"s_mov_b32 s{sT}, s{sOKV}"); OI(f"s_mov_b32 s{sM1}, 0")
    OI(f"{l1}:")
    kload(); O(loopwait()); smfma(False)
    for qb in range(4):
        b = S + qb*8
        for n in range(0, 8, 2): OI(f"v_max3_f32 v{MT+qb}, v{MT+qb}, v{b+n}, v{b+n+1}")
    OI(f"s_add_u32 s{sT}, s{sT}, 8192"); OI(f"s_add_u32 s{sM1}, s{sM1}, 1"); OI(f"s_cmp_lt_u32 s{sM1}, 16"); OI(f"s_cbranch_scc1 {l1}")
    for qb in range(4):
        t = MT + qb
        for sw in ("v_permlane32_swap_b32", "v_permlane16_swap_b32"):
            OI(f"v_mov_b32 v{MT+8}, v{t}"); OI(f"{sw} v{t}, v{MT+8}"); OI(f"v_max_f32 v{t}, v{t}, v{MT+8}")
        for n in range(4): OI(f"v_sub_f32 v{NM+4*qb+n}, 0, v{t}")
    for n in range(8): OI(f"v_mov_b32 v{LS+n}, 0")
    for n in range(128): OI(f"v_mov_b32 v{ACC+n}, 0")
    OI(f"s_mov_b32 s{sT}, s{sOKV}"); OI(f"s_mov_b32 s{sM1}, 0")
    OI(f"{l2}:")
    kload()
    for hf in range(2):
        OI(f"s_add_u32 m0, s{sM0O}, {zslot(0) + hf*4096}"); OI(f"s_add_u32 s3, s{sT}, {hf*4096}")
        for i in range(4): O(unc(f"buffer_load_dwordx4 v{oL}, s[{sV}:{sV+3}], s3 offen{off(i*1024)} lds"))
    O(loopwait())
    for T in range(8):
        for u in range(2): OI(f"ds_read_b64_tr_b16 {q2('a', VB[0] + T*4 + u*2)}, v{aV} offset:{u*4096 + T*32}")
        if T == 3: OI("s_waitcnt lgkmcnt(0)")
    smfma(True)
    for qb in range(4):
        b = S + qb*8
        for n in range(8): OI(f"v_exp_f32 v{b+n}, v{b+n}")
        for n in range(8): OI(f"v_add_f32 v{LS+2*qb+(n&1)}, v{LS+2*qb+(n&1)}, v{b+n}")
        for n in range(4): OI(f"v_cvt_pk_bf16_f32 v{P+4*qb+n}, v{b+2*n}, v{b+2*n+1}")
    OI("s_waitcnt lgkmcnt(0)"); OI("s_nop 1")
    for qb in range(4):
        for T in range(8): OI(f"{MF} {q4('v', acc(T, qb))}, {q4('a', VB[0] + T*4)}, {q4('v', P + 4*qb)}, {q4('v', acc(T, qb))}")
    OI(f"s_add_u32 s{sT}, s{sT}, 8192"); OI(f"s_add_u32 s{sM1}, s{sM1}, 1"); OI(f"s_cmp_lt_u32 s{sM1}, 16"); OI(f"s_cbranch_scc1 {l2}")
    OI("s_nop 7")
    for qb in range(4):
        t = MT + 2*qb
        for x in ofin_head(qb, t, False) + [f"v_rcp_f32 v{t}, v{t}"] + ofin_body(qb, t, False, None): ool.append(x if isinstance(x, Ins) else Ins(x))
    OI(f"s_xor_b32 s{sRW}, s{sRW}, 0x80000"); OI(f"s_or_b32 s{sOWO}, s{sRW}, s{sBWO}")
    for gi in range(2):
        for n, x in enumerate(WO(gi, tag=False)):
            ool.append(x if isinstance(x, Ins) else Ins(x))
            if n == 0: OI("s_nop 0")
    OI(f"s_add_u32 s{sRW}, s{sRW}, {6*65536}"); OI(f"s_and_b32 s{sRW}, s{sRW}, 0xf0000"); OI(f"s_or_b32 s{sOWO}, s{sRW}, s{sBWO}")
    O(loopwait())
    OI(f"s_branch {sback}")

    sFL, sRO, sBOL, sOOL, sQX, sXB, sXF, sXD, sPB = sROT, sBX, sOX, sM0X, sBW, sM0W, sBKV, sOKV, sOO
    aT = 4; aB = 7; oL2 = 10
    k("v_lshl_add_u32 v16, v2, 2, v29")
    k("v_lshlrev_b32 v16, 6, v16"); k("v_lshl_add_u32 v16, v30, 4, v16"); k(f"v_add_u32 v{aT}, s{sM0O}, v16")
    k(f"v_add_u32 v{aT+1}, 0x10000, v{aT}"); k(f"v_add_u32 v{aT+2}, 0x20000, v{aT}")
    def treads(gi):
        a = wslot(gi)
        return [Ins(f"ds_read_b64_tr_b16 {q2('a', (gi*2+e)*8 + t*4 + u*2)}, v{aT + (a >> 16)} offset:{(a & 0xffff) + e*2048 + u*1024 + t*8}", tag=f"T{gi}")
                for e in range(2) for t in range(2) for u in range(2)]
    st_('tail')
    k.wait(vm="WO7")
    nxt = 8
    for gi in range(8):
        for x in treads(gi): k(x)
        if gi >= 1 and nxt < 8 + n1:
            k.wait(lgkm=f"T{gi-1}")
            for x in WO(nxt): k(x)
            nxt += 1
    k(f"v_mov_b32 v{aB}, v{oL}"); k(f"v_add_u32 v{aB+1}, 0x10000, v{oL}"); k(f"v_add_u32 v{aB+2}, 0x20000, v{oL}"); k(f"v_add_u32 v{oL2}, 2048, v{oL}")
    k("v_and_b32 v21, 7, v1"); k("v_lshlrev_b32 v21, 7, v21")
    k(f"s_lshl_b32 s3, s{sQT}, 12"); k(f"s_lshl_b32 s{sT}, s{sH}, 7"); k(f"s_add_u32 s3, s3, s{sT}"); k(f"s_add_u32 s3, s3, {W6_OF:#x}")
    k(f"s_cmp_eq_u32 s{sWAVE}, 0"); k(f"s_cselect_b32 s3, s3, {OOB:#x}")
    k(f"v_mov_b32 v23, s{sTAG}"); k("v_mov_b32 v20, 0")
    k(f"s_lshr_b32 s{sFL}, s{sRT}, 1"); k(f"s_lshl_b32 s{sFL}, s{sFL}, 12"); k(f"s_lshl_b32 s{sT}, s{sKSL}, 10"); k(f"s_add_u32 s{sFL}, s{sFL}, s{sT}"); k(f"s_add_u32 s{sFL}, s{sFL}, {W6_OF:#x}")
    k(f"s_lshl_b32 s{sT}, s{sCT}, 1"); k(f"s_add_u32 s{sT}, s{sT}, s{sRT}"); k(f"s_and_b32 s{sT}, s{sT}, 7")
    k(f"s_lshl_b32 s{sRO}, s{sT}, 14"); k(f"s_add_u32 s{sRO}, s{sRO}, s{sM0O}"); k(f"s_and_b32 s{sRO}, s{sRO}, 0x1ffff")
    k(f"s_lshl_b32 s{sOW}, s{sRT}, 20"); k(f"s_lshl_b32 s{sT}, s{sKSL}, 17"); k(f"s_add_u32 s{sOW}, s{sOW}, s{sT}"); k(f"s_add_u32 s{sOW}, s{sOW}, {WS_O:#x}")
    st_('w2iss')
    k.wait(vm="OST", lgkm=0)
    st_('ost')
    k("s_barrier")
    k(f"buffer_store_dword v23, v20, s[{sWS}:{sWS+3}], s3 offen sc1")
    st_('pub')
    pollo = f"buffer_load_dword v22, v21, s[{sWS}:{sWS+3}], s{sFL} offen sc1"
    while nxt < 16:
        if nxt == pollat: k(pollo, tag="POLL")
        for x in WO(nxt): k(x)
        nxt += 1
    if pollat >= 16: k(pollo, tag="POLL")
    def quarter(j):
        return [f"s_add_u32 s{sQX}, s{sKSL}, {j+1}", f"s_and_b32 s{sQX}, s{sQX}, 3", f"s_lshr_b32 s{sBOL}, s{sQX}, 1", f"s_lshl_b32 s{sBOL}, s{sBOL}, 19",
                f"s_and_b32 s{sQX}, s{sQX}, 1", f"s_lshl_b32 s{sQX}, s{sQX}, 11", f"s_add_u32 s{sBOL}, s{sBOL}, s{sQX}", f"s_add_u32 s{sBOL}, s{sBOL}, s{sOW}"]
    def OC(c):
        g = (quarter(c >> 2) if c % 4 == 0 else []) + [f"s_add_u32 s{sOOL}, s{sRO}, s{sBOL}", f"s_add_u32 m0, s{sM0O}, {zslot((c + 8) % 10)}"]
        for a in range(2):
            for b in range(2):
                g.append(Ins(f"buffer_load_dwordx4 v{(oL, oL2)[a]}, s[{sWS}:{sWS+3}], s{sOOL} offen{off(a*2048 + b*1024)} sc1 lds", tag=f"OC{c}"))
        g += [f"s_add_u32 s{sRO}, s{sRO}, 32768", f"s_and_b32 s{sRO}, s{sRO}, 0x1ffff"]
        return g
    def emit_check(items):
        for x in items:
            if isinstance(x, tuple): k(x[1]); k(x[2])
            else: k(x)
    st_('w3iss')
    emit_check(check_items("POLL", pollo, [f"v_cmp_ne_u32 vcc, s{sTAG}, v22"]))
    st_('go')
    for x in OC(0) + OC(1): k(x)
    for gi in range(8, 16):
        k.wait(vm=f"WO{gi}")
        for x in treads(gi): k(x)
        if gi >= 9 and gi - 9 + 2 < opre:
            k.wait(lgkm=f"T{gi-1}")
            for x in OC(gi - 9 + 2): k(x)
    st_('oiss')
    ACO = 32; BF = 64; NB = 12
    def bread(f):
        c, e, b = f >> 4, (f >> 1) & 7, f & 1
        a = zslot((c + 8) % 10) + (e >> 1) * 8192 + (e & 1) * 2048 + b * 1024
        return Ins(f"ds_read_b128 {q4('v', BF + (f % NB)*4)}, v{aB + (a >> 16)} offset:{a & 0xffff}", tag=f"B{f}")
    k.wait(vm="OC0", lgkm=0); k("s_barrier")
    st_('o0')
    AH = 8
    for f in range(AH): k(bread(f))
    k.wait(lgkm="B1")
    po = Plan(k)
    for f in range(256):
        j = f >> 6; kk = (f >> 1) & 31; b = f & 1
        for t in range(2):
            a = ACO + (j & 1) * 16 + (b*2 + t) * 4
            po.mfma(f"{MF} {q4('v', a)}, {q4('a', kk*8 + t*4)}, {q4('v', BF + (f % NB)*4)}, {q4('v', a) if kk else '0'}")
    cover = {1: 1, 2: 3, 4: 5, 6: 7, 8: 9, 10: 11, 12: 13, 14: 15}
    bgap = {}
    for f in range(AH, 256):
        gp = 2 * (f - AH)
        if f % 16 == 0 and (f >> 4) in cover:
            c = f >> 4
            po.put(gp - 2, Wait(vm=f"OC{cover[c]}")); po.put(gp, "s_barrier"); bgap[c] = gp
        po.put(gp, bread(f))
    for f in range(2, 256, 2): po.put(2 * f - 1, Wait(lgkm=f"B{f+1}"))
    cur = 0
    for c in range(opre, 16):
        lo = cur + 1
        if c >= 10: lo = max(lo, min(g for g in bgap.values() if g >= 32 * (c - 9)) + 1)
        cur = po.stream(OC(c), lo, lo + 40, win=3)
    c0 = po.stream([f"s_lshl_b32 s{sXB}, s{sRT}, 2", f"s_add_u32 s{sXB}, s{sXB}, s{sCT}", f"s_lshl_b32 s{sXB}, s{sXB}, 2"], 0, 40)
    for j in range(3):
        g0 = (j + 1) * 128
        its = [f"s_add_u32 s{sT}, s{sKSL}, {j+1}", f"s_and_b32 s{sT}, s{sT}, 3", f"s_add_u32 s{sT}, s{sT}, s{sXB}",
               f"s_lshl_b32 s{sXD}, s{sT}, 16", f"s_add_u32 s{sXD}, s{sXD}, s{sM0K}", f"s_add_u32 s{sXD}, s{sXD}, {WS_XB + j*16384:#x}",
               f"s_lshl_b32 s{sXF}, s{sT}, 9", f"s_lshl_b32 s{sT}, s{sWAVE}, 7", f"s_add_u32 s{sXF}, s{sXF}, s{sT}", f"s_add_u32 s{sXF}, s{sXF}, {W6_XF + j*4:#x}"]
        po.stream(its, g0 - 36, g0)
        sts = [Ins(f"buffer_store_dwordx4 {q4('v', ACO + (j&1)*16 + n*4)}, v{oL}, s[{sWS}:{sWS+3}], s{sXD} offen{off(n*1024)} sc1", tag=f"XS{j}") for n in range(4)]
        c = po.stream(sts, g0 + 5, g0 + 24, win=2)
        xd = xdelay if j == 2 else 60
        xfl = po.stream([Wait(vm=f"XS{j}"), Ins(f"buffer_store_dword v23, v20, s[{sWS}:{sWS+3}], s{sXF} offen sc1")], c + xd, c + xd + 8, win=2)
    XNR, XR, GF, XF, PR, YF = 128, 136, 144, 160, 176, 224
    e1, e2, e3 = sK, sK + 1, sK + 2
    es = [f"s_lshr_b32 s{e1}, s{sKSL}, 1", f"s_lshl_b32 s{e2}, s{sRT}, 1", f"s_add_u32 s{e1}, s{e1}, s{e2}",
          f"s_and_b32 s{e2}, s{sKSL}, 1", f"s_lshl_b32 s{e2}, s{e2}, 1",
          f"s_lshl_b32 s{e3}, s{e1}, 2", f"s_add_u32 s{e3}, s{e3}, s{e2}", f"s_lshl_b32 s{e3}, s{e3}, 4",
          f"s_and_b32 s{sV}, s{sK1}, 0xffff", f"s_sub_u32 s{sV}, 0xffff, s{sV}", f"s_and_b32 s{sV+1}, s{sK2}, 0xffff", f"s_sub_u32 s{sV+1}, 0xffff, s{sV+1}",
          f"s_sub_u32 s{sV}, s{sV}, s{e3}", f"s_sub_u32 s{sV+1}, s{sV+1}, s{e3}",
          f"s_lshl_b32 s{sST}, s{e1}, 16", f"s_lshl_b32 s{e2}, s{e2}, 10", f"s_add_u32 s{sST}, s{sST}, s{e2}", f"s_lshl_b32 s{e2}, s{sCT}, 14", f"s_add_u32 s{sST}, s{sST}, s{e2}",
          f"s_add_u32 s{sST}, s{sST}, s{sM0K}", f"s_add_u32 s{sST}, s{sST}, {WS_XN:#x}",
          f"s_and_b32 s{e2}, s{sBWO}, 0x3ff",
          f"s_lshl_b32 s{e3}, s{e3}, 10", f"s_add_u32 s{e3}, s{e3}, s{e2}",
          f"s_lshl_b32 s{e2}, s{e2}, 2", f"s_add_u32 s{sM1}, s{e2}, {W6_OF:#x}", f"s_add_u32 s{e2}, s{e2}, {W6_YP:#x}", f"s_add_u32 s{sV+2}, s{e2}, 4096", f"s_add_u32 s{sV+3}, s{e2}, 8192",
          f"s_add_u32 s{sFL}, s{sXB}, s{sKSL}", f"s_lshl_b32 s{sPB}, s{sFL}, 16", f"s_add_u32 s{sPB}, s{sPB}, s{sM0K}", f"s_add_u32 s{sPB}, s{sPB}, {WS_XB:#x}",
          f"s_lshl_b32 s{sFL}, s{sFL}, 9", f"s_lshl_b32 s{e1}, s{sWAVE}, 7", f"s_add_u32 s{sFL}, s{sFL}, s{e1}", f"s_add_u32 s{sFL}, s{sFL}, {W6_XF:#x}"]
    c = po.stream(es, c0 + 1, 200)
    ev = ["v_lshlrev_b32 v24, 10, v3", "v_lshl_add_u32 v24, v2, 4, v24", f"v_add_u32 v24, s{e3}, v24", "v_add_u32 v25, 16384, v24",
          "v_lshrrev_b32 v27, 1, v2", "v_lshlrev_b32 v27, 7, v27", "v_and_b32 v26, 1, v2", "v_lshl_add_u32 v27, v26, 5, v27", "v_mov_b32 v21, 64",
          "v_lshrrev_b32 v13, 1, v1", "v_min_u32 v13, 2, v13", "v_lshlrev_b32 v13, 12, v13", "v_and_b32 v26, 1, v1", "v_lshl_add_u32 v13, v26, 7, v13"]
    for n, sk in enumerate((sK1, sK2)):
        r = 16 + n
        ev += [f"v_mov_b32 v{r}, s{sk}", f"v_ashrrev_i32 v26, 31, v{r}", "v_not_b32 v26, v26", "v_or_b32 v26, 0x80000000, v26", f"v_xor_b32 v{r}, v{r}, v26", f"v_and_b32 v{r}, 0xffff0000, v{r}",
               f"v_mul_f32 v{r}, 0xbfb8aa3b, v{r}", f"v_exp_f32 v{r}, v{r}", f"v_add_f32 v{r}, 1.0, v{r}", f"v_rcp_f32 v{r}, v{r}", f"v_cvt_pk_bf16_f32 v{r}, v{r}, v{r}", f"v_lshlrev_b32 v{r}, 16, v{r}"]
    for b in range(2):
        ev += [f"v_add_u32 v26, {16*b}, v3", f"v_mov_b32 v31, {OOB:#x}", f"v_cmp_eq_u32 vcc, s{sV}, v26", "v_cndmask_b32 v31, v31, 0, vcc",
               f"v_cmp_eq_u32 vcc, s{sV+1}, v26", "v_cndmask_b32 v31, v31, v21, vcc", f"v_cndmask_b32 v{14+b}, v16, v17, vcc", f"v_add_u32 v{18+b}, v31, v27"]
    ev += ["v_and_b32 v21, 3, v1", "v_min_u32 v21, 2, v21", "v_lshlrev_b32 v21, 2, v21"]
    c = po.stream(ev, c + 1, c + 90)
    polly = f"buffer_load_dword v12, v13, s[{sWS}:{sWS+3}], s{sM1} offen sc1"
    el = [Ins(f"buffer_load_dwordx4 {q4('v', XNR)}, v{oL}, s[{sWS}:{sWS+3}], s{sST} offen sc1", tag="E"), Ins(f"buffer_load_dwordx4 {q4('v', XNR+4)}, v{oL}, s[{sWS}:{sWS+3}], s{sST} offen offset:1024 sc1", tag="E"),
          Ins(f"buffer_load_dwordx4 {q4('v', XR)}, v24, s[{sX}:{sX+3}], 0 offen", tag="E"), Ins(f"buffer_load_dwordx4 {q4('v', XR+4)}, v25, s[{sX}:{sX+3}], 0 offen", tag="E"), Ins(polly, tag="PY")]
    c = po.stream(el, max(c + 1, 180), 225, spread=True, win=2)
    its = check_items("PY", polly, [f"v_cmp_ne_u32 vcc, s{sTAG}, v12"])
    for sl, (so, base) in enumerate(((e2, YF), (sV+2, PR), (sV+3, PR+16))):
        its += [Ins(f"buffer_load_dwordx4 {q4('v', base + b*8 + h*4)}, v{18+b}, s[{sWS}:{sWS+3}], s{so} offen{off(h*16)} sc1", tag="EY") for b in range(2) for h in range(2)]
    c = pstream(po, its, 268, 310, win=2)
    gops = []
    for i in range(8): gops += [f"v_lshlrev_b32 v{XF+2*i}, 16, v{XR+i}", f"v_and_b32 v{XF+2*i+1}, 0xffff0000, v{XR+i}", f"v_lshlrev_b32 v{GF+2*i}, 16, v{XNR+i}", f"v_and_b32 v{GF+2*i+1}, 0xffff0000, v{XNR+i}"]
    c = po.stream(gops, c + 1, 340)
    gops = [Wait(vm="EY")]
    for i in range(16): gops += [f"v_add_f32 v{YF+i}, v{YF+i}, v{PR+i}", f"v_add_f32 v{YF+i}, v{YF+i}, v{PR+16+i}"]
    for i in range(8):
        a, b, t, u = GF + 2*i, GF + 2*i + 1, YF + 2*i, YF + 2*i + 1
        rs = 14 + (i >> 2)
        gops += [f"v_cvt_pk_bf16_f32 v29, v{t}, v{u}", f"v_lshlrev_b32 v{t}, 16, v29", f"v_and_b32 v{u}, 0xffff0000, v29",
                 f"v_mul_f32 v{t}, v{t}, v{rs}", f"v_mul_f32 v{u}, v{u}, v{rs}", f"v_cvt_pk_bf16_f32 v29, v{t}, v{u}", f"v_lshlrev_b32 v{t}, 16, v29", f"v_and_b32 v{u}, 0xffff0000, v29",
                 f"v_add_f32 v{a}, v{a}, v{t}", f"v_add_f32 v{b}, v{b}, v{u}", f"v_cvt_pk_bf16_f32 v29, v{a}, v{b}",
                 f"v_lshlrev_b32 v{a}, 16, v29", f"v_and_b32 v{b}, 0xffff0000, v29",
                 f"v_mul_f32 v{t}, 0xbfb8aa3b, v{a}", f"v_mul_f32 v{u}, 0xbfb8aa3b, v{b}", f"v_exp_f32 v{t}, v{t}", f"v_exp_f32 v{u}, v{u}",
                 f"v_add_f32 v{t}, 1.0, v{t}", f"v_add_f32 v{u}, 1.0, v{u}", f"v_rcp_f32 v{t}, v{t}", f"v_rcp_f32 v{u}, v{u}",
                 f"v_mul_f32 v{a}, v{a}, v{t}", f"v_mul_f32 v{b}, v{b}, v{u}", f"v_cvt_pk_bf16_f32 v29, v{a}, v{b}",
                 f"v_lshlrev_b32 v{a}, 16, v29", f"v_and_b32 v{b}, 0xffff0000, v29"]
    c = po.stream(gops, max(c + 1, 340), 510)
    pollx = f"buffer_load_dword v22, v21, s[{sWS}:{sWS+3}], s{sFL} offen sc1"
    def ploads(js, counted):
        o = []
        for n in range(4):
            for j in js:
                t = f"buffer_load_dwordx4 {q4('v', PR + (n*3+j)*4)}, v{oL}, s[{sWS}:{sWS+3}], s{(sPB, sRO, sBOL)[j]} offen{off(n*1024)} sc1"
                o.append(Ins(t, tag=f"P{n}") if counted else unc(t))
        return o
    po.stream([f"s_add_u32 s{sRO}, s{sPB}, 16384", f"s_add_u32 s{sBOL}, s{sPB}, 32768", f"s_mov_b32 s{sQX}, 0"], 330, 370)
    if early_p:
        po.put(xfl - 36, Ins(f"buffer_load_dword v30, v21, s[{sWS}:{sWS+3}], s{sFL} offen sc1", tag="XQ1"))
        sk = k.label("skipp")
        g = (xfl + 2) & ~1
        po.put(g, Wait(vm="XQ1")); po.put(g, f"v_cmp_ne_u32 s[{sC2}:{sC2+1}], s{sTAG}, v30")
        po.put(g + 2, f"s_and_b32 s{sC2}, s{sC2}, 0x33333333"); po.put(g + 2, f"s_cbranch_scc1 {sk}", cls="s")
        for x in ploads((0, 1), False): po.put(g + 2, x, cls="s")
        po.put(g + 2, f"s_mov_b32 s{sQX}, 1", cls="s"); po.put(g + 2, f"{sk}:", cls="s")
    po.put(511 - xpoll, Ins(pollx, tag="XPOLL"))
    for nm, gp in (("o4", 64), ("o8", 128), ("o16", 256), ("o24", 384)):
        if nm in prof:
            for x in stamp_ins(prof.index(nm)): po.put(gp, x)
    ov = po.emit()
    print("[k6] phase O overflow", ov, "tail", po.load(511))
    st_('oend')
    emit_check(check_items("XPOLL", pollx, [f"v_cmp_ne_u32 vcc, s{sTAG}, v22"]))
    st_('xgo')
    hv = k.label("havep")
    k(f"s_cmp_lg_u32 s{sQX}, 0"); k(f"s_cbranch_scc1 {hv}")
    for x in ploads((0, 1), False): k(x)
    k(f"{hv}:")
    for x in ploads((2,), True): k(x)
    k(f"s_mov_b32 s{sTS}, s{pOUT}"); k(f"s_mov_b32 s{sTS+1}, s{pOUT+1}"); k(f"s_mov_b32 s{sTS+2}, {SZ['out']:#x}"); k(f"s_mov_b32 s{sTS+3}, 0x00020000")
    for b in range(2):
        for t in range(2):
            n = b*2 + t
            k.wait(vm=f"P{n}")
            a = ACO + 16 + n*4; r = PR + n*12
            for m_ in range(4): k(f"v_add_f32 v{a+m_}, v{a+m_}, v{r+m_}"); k(f"v_add_f32 v{r+4+m_}, v{r+4+m_}, v{r+8+m_}")
            for m_ in range(4): k(f"v_add_f32 v{a+m_}, v{a+m_}, v{r+4+m_}")
            for h in range(2):
                e = b*8 + t*4 + h*2
                x0, x1 = a + 2*h, a + 2*h + 1
                k(f"v_cvt_pk_bf16_f32 v{r}, v{x0}, v{x1}")
                k(f"v_lshlrev_b32 v{x0}, 16, v{r}"); k(f"v_and_b32 v{x1}, 0xffff0000, v{r}")
                k(f"v_mul_f32 v{x0}, v{x0}, v{GF+e}"); k(f"v_mul_f32 v{x1}, v{x1}, v{GF+e+1}")
                k(f"v_cvt_pk_bf16_f32 v{r}, v{x0}, v{x1}")
                k(f"v_lshlrev_b32 v{x0}, 16, v{r}"); k(f"v_and_b32 v{x1}, 0xffff0000, v{r}")
                k(f"v_add_f32 v{x0}, v{x0}, v{XF+e}"); k(f"v_add_f32 v{x1}, v{x1}, v{XF+e+1}")
                k(f"v_cvt_pk_bf16_f32 v{XNR + b*4 + t*2 + h}, v{x0}, v{x1}")
        k(f"buffer_store_dwordx4 {q4('v', XNR + b*4)}, v{24+b}, s[{sTS}:{sTS+3}], 0 offen")
    if prof:
        k("s_waitcnt vmcnt(0)"); stamp(k, 7); stamp_dump(k, 8, sWS, sWAVE, 0)
    k(f"{end}:")
    k("s_endpgm")
    k("s_waitcnt vmcnt(0) lgkmcnt(0)")
    for x in ool: k(x)
    return k, 512, 256
```

```python
from build6 import build
build("v6a.s", prof=["start", "qend", "a2", "a4", "a6", "aend", "go"])
build("v6b.s", prof=["start", "issued", "ln", "q1", "q2", "q4", "q6"])
build("v6c.s", prof=["q6", "q8", "q10", "q11", "q13", "q15", "qend"])
build("v6d.s", prof=["aend", "ost", "w3iss", "go", "o0", "oend", "xgo"])
```

```python
import sys
from asmlib import *
from common import *
import k7
def build(path, **kw):
    kn = NAME + "_kernel"
    k, nfv, accum = k7.gen_k7(kn, **kw)
    hdr = open(f"cdna_kernels/{NAME}.s.ref").read().split("; Override launch")[0]
    out = [hdr.rstrip("\n"), "; @launch grid=(256,1,1) block=(256,1,1) lds=163840", '.amdgcn_target "amdgcn-amd-amdhsa--gfx950"', ".text"]
    fix_hazards(k); k.resolve()
    errs = k.check()
    for e in errs[:8]: print(e)
    print(f"[{path.split('/')[-1]}] {len(k.ins)} instrs, {len(errs)} errors, nops={sum(1 for i in k.ins if i.op=='s_nop')}")
    out.append(kernel_text(k, nfv, accum)); out.append('.section .rodata,"a"'); out.append(desc_text(k.name, nfv, accum))
    txt = "\n".join(out).replace(kn + "_", "L_")
    open(path, "w").write(txt)
    return not errs
if __name__ == "__main__":
    build("t7.s")
    build("t7s.s", force_slow=True)
    build("v7a.s", prof=["start", "ln", "q1", "qend", "aend", "go", "oend"])
```

```python
from asmlib import *
from common import *
import struct

MF = "v_mfma_f32_16x16x32_bf16"
def q4(f, r): return f"{f}[{r}:{r+3}]"
def q2(f, r): return f"{f}[{r}:{r+1}]"
def off(o): return f" offset:{o}" if o else ""

aW, aK, aV, oK, oV, oW, oL = 4, 8, 12, 20, 24, 26, 28
AF = 32; S = 32; P = 64; NM = 80; LS = 96; CS0 = 96; CSX = 104; STAT = 112; aX = 12; oX = 120; oWO = 120; ONES = 124; ACC = 128
MT = 104
QF = 0
KB = [64, 96, 192]; VB = [128, 160, 224]
MA = 192
def acc(T, qb): return ACC + (T * 4 + qb) * 4
sX, sWS, sWQ, sK, sV, sWO = 4, 8, 12, 16, 20, 24
pWG, pWU, pWD, pOUT = 28, 30, 32, 34
sDBG = 36
sBAD = 40; sCMP = 42
(sWAVE, sH, sQT, sKSL, sRT, sCT, sM0K, sM0O, sROT, sBW, sOW, sBX, sOX, sM0W, sKR, sT, sBKV, sOKV, sRW, sBWO, sOWO, sOO, sST, sK1, sK2, sM1) = range(44, 70)
sTAG = 43
sC2 = 38
sTS = sWQ
def f32(x): return struct.unpack("<I", struct.pack("<f", x))[0]
QSCALE = f32(1.4426950408889634 * 128 ** -0.5)
OOB = 0x40000000
WREG = [2, 3, 4, 0, 1]
def zslot(z): return WREG[z >> 1] * 32768 + (z & 1) * 4096
def wslot(g): return zslot(g % 10)
R4 = 131072
XREG = [3, 4, 2]
DPP4 = ("quad_perm:[1,0,3,2] row_mask:0xf bank_mask:0xf", "quad_perm:[2,3,0,1] row_mask:0xf bank_mask:0xf",
        "row_half_mirror row_mask:0xf bank_mask:0xf", "row_mirror row_mask:0xf bank_mask:0xf")

def gen_k7(name, prof=False, tailq=3, codepf=1, pk=True, kvpf=7, n1=1, pollat=16, xrot=4, opre=6, xdelay=50, xpoll=20, force_slow=False, early_p=True, dbgout=False, ntr=9, kv0=8, xd01=30, amap=8, touch=None, w1sp=True, nt='', exp=(), nwo=10, xbf=True):
    k = Kern(name)
    if not prof: prof = []
    def NT(c): return ' nt' if c in nt else ''
    def st_(nm):
        if nm in prof: stamp(k, prof.index(nm))
    end = k.label("end")
    ool = []
    def unc(text):
        i = Ins(text); i.kind = "vmem_uncounted"; return i
    def loopwait():
        i = Ins("s_waitcnt vmcnt(0)"); i.op = "s_waitcnt_loop"; return i
    def check_items(tag, load_text, cmp_ops):
        sp = k.label("spin"); lp = k.label("splp"); bk = k.label("back")
        ool.extend([Ins(f"{sp}:"), Ins(f"s_mov_b32 s{sCMP}, 0"), Ins(f"{lp}:")] + [unc(t) for t in ([load_text] if isinstance(load_text, str) else load_text)] + [loopwait()] + [Ins(c) for c in cmp_ops] +
                   [Ins("s_nop 1"), Ins(f"s_cbranch_vccz {bk}"), Ins(f"s_add_u32 s{sCMP}, s{sCMP}, 1"), Ins(f"s_cmp_lt_u32 s{sCMP}, 0x40000"), Ins(f"s_cbranch_scc1 {lp}"), Ins(f"s_branch {bk}")])
        return [Wait(vm=tag)] + list(cmp_ops) + [("br", f"s_cbranch_vccnz {sp}", f"{bk}:")]
    def pstream(pl, items, lo, hi, **kw):
        cur = lo; buf = []
        def flush():
            nonlocal cur, buf
            if buf: cur = pl.stream(buf, cur, hi, **kw); buf = []
        for x in items:
            if isinstance(x, tuple):
                flush()
                cur += 1
                while pl._g(cur)["s"]: cur += 1
                pl.put(cur, x[1]); pl.put(cur, x[2], cls="s")
            else: buf.append(x)
        flush()
        return cur

    k("s_cmp_ge_u32 s2, 256"); k(f"s_cbranch_scc1 {end}")
    st_('start')
    k(f"s_memrealtime s[{sK1 & ~1}:{(sK1 & ~1) + 1}]")
    k(f"s_load_dwordx2 s[{sX}:{sX+1}], s[0:1], {KA['x']}")
    k(f"s_load_dwordx2 s[{sWQ}:{sWQ+1}], s[0:1], {KA['wq']}")
    k(f"s_load_dwordx2 s[{sBAD}:{sBAD+1}], s[0:1], {KA['wr']}")
    k(f"s_load_dwordx2 s[{sWS}:{sWS+1}], s[0:1], {KA['ws']}")
    k(f"s_load_dwordx2 s[{sK}:{sK+1}], s[0:1], {KA['k']}")
    k(f"s_load_dwordx2 s[{sV}:{sV+1}], s[0:1], {KA['v']}")
    k(f"s_load_dwordx2 s[{sWO}:{sWO+1}], s[0:1], {KA['wo']}")
    k(f"s_load_dwordx8 s[{pWG}:{pWG+7}], s[0:1], {KA['wg']}")
    k(f"s_load_dwordx2 s[{sDBG}:{sDBG+1}], s[0:1], {KA['dbg']}")
    k("v_and_b32 v1, 63, v0"); k("v_lshrrev_b32 v2, 6, v0")
    k("s_and_b32 s3, s2, 7"); k(f"s_lshr_b32 s{sT}, s2, 3")
    k(f"v_readfirstlane_b32 s{sWAVE}, v2")
    k(f"s_lshr_b32 s{sKSL}, s3, 1"); k(f"s_and_b32 s{sRT}, s3, 1"); k(f"s_lshl_b32 s{sRT}, s{sRT}, 3"); k(f"s_and_b32 s{sM1}, s{sT}, 7"); k(f"s_add_u32 s{sRT}, s{sRT}, s{sM1}")
    k(f"s_lshr_b32 s{sCT}, s{sT}, 3")
    if amap == 8:
        k("s_lshl_b32 s3, s3, 2"); k(f"s_and_b32 s{sM1}, s{sT}, 3"); k(f"s_add_u32 s{sH}, s3, s{sM1}")
        k(f"s_lshr_b32 s{sQT}, s{sT}, 2"); k(f"s_mov_b32 s{sKR}, s{sQT}")
        k(f"s_lshl_b32 s{sROT}, s{sQT}, 1"); k(f"s_mul_i32 s3, s{sM1}, {xrot}"); k(f"s_add_u32 s{sROT}, s{sROT}, s3")
        k("s_and_b32 s3, s2, 1"); k("s_lshl_b32 s3, s3, 1"); k(f"s_add_u32 s{sROT}, s{sROT}, s3")
    else:
        k(f"s_mov_b32 s{sH}, s{sKSL}"); k(f"s_lshl_b32 s{sH}, s{sH}, 3"); k(f"s_add_u32 s{sH}, s{sH}, s{sM1}")
        k("s_and_b32 s3, s3, 1"); k(f"s_lshl_b32 s{sQT}, s3, 2"); k(f"s_add_u32 s{sQT}, s{sQT}, s{sCT}")
        k(f"s_lshl_b32 s{sKR}, s{sCT}, 1"); k(f"s_add_u32 s{sKR}, s{sKR}, s3")
        k(f"s_add_u32 s{sROT}, s{sKR}, s{sM1}"); k(f"s_lshl_b32 s{sROT}, s{sROT}, 1")
    for d, sz in ((sX, SZ['x']), (sWQ, SZ['wq']), (sWS, SZ['ws'])):
        k(f"s_mov_b32 s{d+2}, {sz:#x}"); k(f"s_mov_b32 s{d+3}, 0x00020000")
    k("v_lshrrev_b32 v2, 4, v1")
    k("v_and_b32 v3, 15, v1")
    k(f"v_lshlrev_b32 v{oL}, 4, v1")
    L = ACC
    k(f"s_lshl_b32 s3, s{sQT}, 8"); k(f"s_lshl_b32 s{sT}, s{sH}, 3"); k(f"s_add_u32 s3, s3, s{sT}"); k(f"s_lshl_b32 s{sT}, s{sWAVE}, 1"); k(f"s_add_u32 s3, s3, s{sT}")
    k(f"v_lshrrev_b32 v{L}, 5, v1"); k(f"v_add_u32 v{L}, s3, v{L}")
    k(f"v_and_b32 v{L+1}, 31, v1")
    k(f"v_lshlrev_b32 v{L+2}, 4, v{L+1}")
    k(f"v_lshl_add_u32 v{L+3}, v{L}, 10, v{L+2}")
    k("v_lshlrev_b32 v29, 2, v2"); k("v_xor_b32 v29, v29, v3"); k("v_lshlrev_b32 v29, 4, v29")
    k(f"v_lshl_add_u32 v{oW}, v2, 13, v29"); k(f"v_add_u32 v{oW+1}, {4*8192-1024}, v{oW}")
    k("v_and_b32 v29, 7, v1"); k("v_xor_b32 v29, v29, v2"); k("v_lshrrev_b32 v30, 3, v1"); k("v_lshlrev_b32 v30, 10, v30")
    k(f"v_lshl_add_u32 v{oX}, v29, 4, v30"); k("v_xor_b32 v29, 4, v29"); k(f"v_lshl_add_u32 v{oX+1}, v29, 4, v30"); k(f"v_add_u32 v{oX+1}, 7168, v{oX+1}")
    k(f"v_add_u32 v{oX+2}, {2*7168}, v{oX}"); k(f"v_add_u32 v{oX+3}, {2*7168}, v{oX+1}")
    k(f"s_lshl_b32 s{sBW}, s{sH}, 8"); k(f"s_lshl_b32 s3, s{sWAVE}, 16"); k(f"s_add_u32 s{sBW}, s{sBW}, s3")
    k(f"s_lshl_b32 s{sBX}, s{sQT}, 18"); k(f"s_add_u32 s{sBX}, s{sBX}, s3")
    k(f"s_lshl_b32 s{sM0W}, s{sWAVE}, 11"); k(f"s_lshl_b32 s{sM0K}, s{sWAVE}, 12"); k(f"s_lshl_b32 s{sM0O}, s{sWAVE}, 13")
    k("s_waitcnt lgkmcnt(0)")
    st_('karg')

    def D(ks):
        return [f"s_add_u32 s{sT}, s{sROT}, {ks}", f"s_and_b32 s{sT}, s{sT}, 15", f"s_lshl_b32 s{sOW}, s{sT}, 18", f"s_add_u32 s{sOW}, s{sOW}, s{sBW}",
                f"s_add_u32 m0, s{sM0W}, {(ks % 8)*8192}",
                Ins(f"buffer_load_dwordx4 v{oW}, s[{sWQ}:{sWQ+3}], s{sOW} offen{NT('q')} lds", tag=f"D{ks}"),
                Ins(f"buffer_load_dwordx4 v{oW+1}, s[{sWQ}:{sWQ+3}], s{sOW} offen offset:1024{NT('q')} lds", tag=f"D{ks}")]
    def XP(p):
        g = [f"s_add_u32 s{sT}, s{sROT}, {2*p}", f"s_and_b32 s{sT}, s{sT}, 15", f"s_lshl_b32 s{sOX}, s{sT}, 6", f"s_add_u32 s{sOX}, s{sOX}, s{sBX}"]
        for hf in range(2):
            if hf: g.append(f"s_add_u32 s{sOX}, s{sOX}, 32768")
            g.append(f"s_add_u32 m0, s{sM0O}, {XREG[p % 3]*32768 + hf*4096}")
            for i in range(4):
                g.append(Ins(f"buffer_load_dwordx4 v{oX+i}, s[{sX}:{sX+3}], s{sOX} offen{off(i*1024)}{NT('x')} lds", tag=f"XP{p}"))
        return g
    def XR(p):
        return [Ins(f"ds_read_b128 {q4('a', ((2*p+ksl)*4+qb)*4)}, v{aX + ksl + (2 if XREG[p % 3] == 4 else 0)} offset:{(XREG[p % 3] & 1)*32768 + qb*2048}", tag=f"XR{p}") for ksl in range(2) for qb in range(4)]
    def KV(j):
        base = ((j + 2) % 4) * 32768
        g = [f"s_add_u32 s{sT}, s{sKR}, {j}", f"s_and_b32 s{sT}, s{sT}, 7", f"s_lshl_b32 s{sOKV}, s{sT}, 14", f"s_add_u32 s{sOKV}, s{sOKV}, s{sBKV}",
             f"s_add_u32 m0, s{sM0O}, {base}"]
        g += [Ins(f"buffer_load_dwordx4 v{oK+i}, s[{sK}:{sK+3}], s{sOKV} offen{off(i*1024)}{NT('k')} lds", tag=f"KV{j}") for i in range(4)]
        g += [f"s_add_u32 m0, s{sM0O}, {base+4096}"]
        g += [Ins(f"buffer_load_dwordx4 v{oV+(i&1)}, s[{sV}:{sV+3}], s{sOKV} offen{off(i*1024)}{NT('k')} lds", tag=f"KV{j}") for i in range(4)]
        return g
    def WO(gi, tag=True):
        g = [f"s_add_u32 m0, s{sM0O}, {wslot(gi)}"]
        for n in range(4):
            t = f"buffer_load_dwordx4 v{oWO+n}, s[{sWO}:{sWO+3}], s{sOWO} offen{off(n*1024)}{NT('o')} lds"
            g.append(Ins(t, tag=f"WO{gi}") if tag else unc(t))
        g += [f"s_add_u32 s{sRW}, s{sRW}, 65536", f"s_and_b32 s{sRW}, s{sRW}, 0xf0000", f"s_or_b32 s{sOWO}, s{sRW}, s{sBWO}"]
        return g

    XL, WL = L + 8, L + 16
    FT = CSX
    k(f"buffer_load_dwordx4 {q4('v', XL)}, v{L+3}, s[{sX}:{sX+3}], 0 offen", tag="LX")
    k(f"buffer_load_dwordx4 {q4('v', XL+4)}, v{L+3}, s[{sX}:{sX+3}], 0 offen offset:512", tag="LX")
    k(f"s_mov_b32 s{sDBG+2}, 256"); k(f"s_mov_b32 s{sDBG+3}, 0x00020000")
    k(f"s_or_b32 s{sTAG}, s{sK1 & ~1}, 1"); k(f"v_mov_b32 v{L+24}, s{sTAG}"); k(f"v_mov_b32 v{FT+6}, 0")
    k(f"s_or_b32 s3, s2, s{sWAVE}"); k("s_cmp_eq_u32 s3, 0"); k("s_cselect_b32 s3, 0, 0x1000")
    k(f"buffer_store_dword v{L+24}, v{FT+6}, s[{sDBG}:{sDBG+3}], s3 offen sc1")
    st_('lxiss')
    for x in D(0) + XP(0) + D(1): k(x)
    st_('d1iss')
    k("v_bfe_u32 v29, v1, 2, 2")
    k("v_and_b32 v30, 3, v1")
    k("v_lshl_add_u32 v31, v2, 3, v29"); k("v_lshlrev_b32 v31, 8, v31"); k("v_lshl_add_u32 v31, v30, 4, v31")
    for i in range(4):
        k(f"s_add_u32 s3, s{sWAVE}, {i}"); k("s_and_b32 s3, s3, 3")
        k(f"v_xor_b32 v{aW+i}, s3, v29"); k(f"v_lshl_add_u32 v{aW+i}, v{aW+i}, 6, v31")
    k("v_lshrrev_b32 v31, 1, v3"); k("v_xor_b32 v31, v31, v2")
    k(f"v_lshlrev_b32 v{aX+1}, 7, v3"); k(f"v_add_u32 v{aX+1}, s{sM0O}, v{aX+1}"); k(f"v_add_u32 v{aX+1}, 0x10000, v{aX+1}")
    k(f"v_lshl_add_u32 v{aX}, v31, 4, v{aX+1}"); k("v_xor_b32 v31, 4, v31"); k(f"v_lshl_add_u32 v{aX+1}, v31, 4, v{aX+1}")
    k(f"v_add_u32 v{aX+2}, 0x10000, v{aX}"); k(f"v_add_u32 v{aX+3}, 0x10000, v{aX+1}")
    for i in range(4): k(f"v_mov_b32 v{ONES+i}, 0x3f803f80")
    A0, A3 = L + 4, L + 7
    k(f"v_lshlrev_b32 v{FT+5}, 4, v{L}"); k(f"v_lshlrev_b32 v{FT+4}, 3, v{L}"); k(f"v_sub_u32 v{A3}, 0xffff, v{L}")
    cpf = []
    if codepf:
        pcl = k.label("pc")
        pcp = sK2
        assert pcp % 2 == 0
        k(f"s_getpc_b64 s[{pcp}:{pcp+1}]"); k(f"{pcl}:")
        k(f"s_lshr_b32 s3, s2, 3"); k(f"s_lshl_b32 s3, s3, 2"); k(f"s_add_u32 s3, s3, s{sWAVE}"); k("s_lshl_b32 s3, s3, 9")
        k(f"s_min_u32 s3, s3, {end}-{pcl}-512")
        k(f"v_lshl_add_u32 v{L+5}, v1, 3, s3")
        cpf = [Ins(f"global_load_dwordx2 a[254:255], v{L+5}, s[{pcp}:{pcp+1}]")]
    for d, sz in ((sK, SZ['k']), (sV, SZ['v'])):
        k(f"s_mov_b32 s{d+2}, {sz:#x}"); k(f"s_mov_b32 s{d+3}, 0x00020000")
    k(f"s_lshl_b32 s{sBKV}, s{sH}, 19"); k(f"s_add_u32 s{sBKV}, s{sBKV}, {1536*256}"); k(f"s_add_u32 s{sBKV}, s{sBKV}, s{sM0K}")
    k(f"s_lshl_b32 s{sK1}, s{sKR}, 14"); k(f"s_add_u32 s{sK1}, s{sK1}, s{sBKV}")
    st_('issued')
    ln = []
    A = ln.append
    F, Dv, T0, T1, T2 = L + 32, L + 48, L + 26, L + 27, L + 30
    def hsum(v, t):
        for m in DPP4: A(f"v_add_f32_dpp v{v}, v{v}, v{v} {m}")
        A(f"v_mov_b32 v{t}, v{v}"); A(f"v_permlane16_swap_b32 v{v}, v{t}"); A(f"v_add_f32 v{v}, v{v}, v{t}")
    polln = f"buffer_load_dword v{FT+1}, v{FT+6}, s[{sDBG}:{sDBG+3}], 0 offen sc1"
    k.wait(vm="LX")
    st_('lx')
    for i in range(8): A(f"v_lshlrev_b32 v{F+2*i}, 16, v{XL+i}"); A(f"v_and_b32 v{F+2*i+1}, 0xffff0000, v{XL+i}")
    for i in range(8): A(f"v_add_f32 v{Dv+i}, v{F+2*i}, v{F+2*i+1}")
    for i in range(4): A(f"v_add_f32 v{Dv+i}, v{Dv+i}, v{Dv+4+i}")
    A(f"v_add_f32 v{Dv}, v{Dv}, v{Dv+2}"); A(f"v_add_f32 v{Dv+1}, v{Dv+1}, v{Dv+3}"); A(f"v_add_f32 v{T0}, v{Dv}, v{Dv+1}")
    hsum(T0, T1)
    A(f"v_mul_f32 v{T0}, 0x3b000000, v{T0}")
    for i in range(16): A(f"v_sub_f32 v{Dv+i}, v{F+i}, v{T0}")
    A(f"v_mul_f32 v{T1}, v{Dv}, v{Dv}"); A(f"v_mul_f32 v{T2}, v{Dv+1}, v{Dv+1}")
    for i in range(2, 16, 2): A(f"v_fmac_f32 v{T1}, v{Dv+i}, v{Dv+i}"); A(f"v_fmac_f32 v{T2}, v{Dv+i+1}, v{Dv+i+1}")
    A(f"v_add_f32 v{T1}, v{T1}, v{T2}")
    hsum(T1, T2)
    A(f"v_mul_f32 v{T1}, 0x3b000000, v{T1}")
    A(f"v_cvt_pk_bf16_f32 v{T2}, v{T0}, v{T1}")
    A(f"v_lshlrev_b32 v{T0}, 16, v{T2}"); A(f"v_and_b32 v{T1}, 0xffff0000, v{T2}")
    A(f"v_add_f32 v{T1}, 0x3727c5ac, v{T1}"); A(f"v_cvt_pk_bf16_f32 v{T1}, v{T1}, v{T1}"); A(f"v_lshlrev_b32 v{T1}, 16, v{T1}")
    A(f"v_sqrt_f32 v{T1}, v{T1}")
    for i in range(16): A(f"v_sub_f32 v{Dv+i}, v{F+i}, v{T0}")
    A(f"v_cvt_pk_bf16_f32 v{FT}, v{T0}, v{T1}")
    A(f"v_and_b32 v{T1}, 0xffff0000, v{FT}"); A(f"v_rcp_f32 v{T1}, v{T1}")
    for i in range(8): A(f"v_cvt_pk_bf16_f32 v{XL+i}, v{Dv+2*i}, v{Dv+2*i+1}")
    for i in range(8): A(f"v_lshlrev_b32 v{Dv+2*i}, 16, v{XL+i}"); A(f"v_and_b32 v{Dv+2*i+1}, 0xffff0000, v{XL+i}")
    for i in range(16): A(f"v_mul_f32 v{Dv+i}, v{Dv+i}, v{T1}")
    for i in range(8): A(f"v_cvt_pk_bf16_f32 v{XL+i}, v{Dv+2*i}, v{Dv+2*i+1}")
    trickle = [Ins(f"global_load_dwordx4 {q4('v', WL)}, v{L+2}, s[{sBAD}:{sBAD+1}]", tag="LW"), Ins(f"global_load_dwordx4 {q4('v', WL+4)}, v{L+2}, s[{sBAD}:{sBAD+1}] offset:512", tag="LW")]
    trickle += cpf + D(2) + D(3) + XP(1)[:ntr]
    nv_ = sum(1 for x in trickle if isinstance(x, Ins)); per = len(ln) // nv_
    ti = 0
    for n, x in enumerate(ln):
        k(x)
        if n % per == per - 1:
            while ti < len(trickle):
                y = trickle[ti]; ti += 1; k(y)
                if isinstance(y, Ins): break
    while ti < len(trickle): k(trickle[ti]); ti += 1
    st_('ln1')
    ln = []; A = ln.append
    A(f"v_mov_b32 v{T0}, 0")
    for i in range(8): A(f"v_dot2c_f32_bf16 v{T0}, v{XL+i}, v{WL+i}")
    A("s_nop 2")
    hsum(T0, T1)
    A(f"v_cvt_pk_bf16_f32 v{T0}, v{T0}, v{T0}")
    A(f"v_bfe_i32 v{T1}, v{T0}, 15, 1"); A(f"v_and_b32 v{T1}, 0x7fff, v{T1}"); A(f"v_or_b32 v{T1}, 0x8000, v{T1}")
    A(f"v_xor_b32 v{T0}, v{T0}, v{T1}"); A(f"v_lshl_or_b32 v{FT+2}, v{T0}, 16, v{A3}")
    ln_tail = ln
    st_('ln')

    steps = [[(ks, T) for T in range(8)] for ks in range(12)]
    steps += [[(ks, 2*i+t) for ks in range(12, 16) for t in range(2)] for i in range(4)]
    def wreads(st):
        out = []
        for f, (ks, T) in enumerate(steps[st]):
            i, t = T >> 1, T & 1
            for u in range(2):
                out.append(Ins(f"ds_read_b64_tr_b16 {q2('v', AF + (st&1)*32 + f*4 + u*2)}, v{aW+i} offset:{(ks % 8) * 8192 + u * 1024 + t * 8}", tag=f"W{st}"))
        return out
    k.wait(vm="D1"); k("s_barrier")
    for x in XR(0)[:4] + wreads(0) + XR(0)[4:]: k(x)
    k.wait(vm="LW")
    for x in ln_tail: k(x)
    k.wait(lgkm=0)

    pl = Plan(k)
    seen = set(); G0 = {}
    for st in range(16):
        G0[st] = len(pl.mf)
        for f, (ks, T) in enumerate(steps[st]):
            af = q4('v', AF + (st&1)*32 + f*4)
            for qb in range(4):
                a = acc(T, qb)
                pl.mfma(f"{MF} {q4('v', a)}, {af}, {q4('a', (ks*4+qb)*4)}, {q4('v', a) if (T, qb) in seen else '0'}")
                seen.add((T, qb))
            if T < 2:
                a = CS0 + 4 * T
                pl.mfma(f"{MF} {q4('v', a)}, {af}, {q4('v', ONES)}, {q4('v', a) if ('c', T) in seen else '0'}")
                seen.add(('c', T))
    NQ = len(pl.mf); G0[16] = NQ
    units = [(p, qb) for p in range(16 - tailq) for qb in range(4)] + [(p, qb) for qb in range(4) for p in range(16 - tailq, 16)]
    def buf(p): return {14: 2, 15: 0}.get(p, p & 1)
    Spos = {}; PVpos = {}; seenO = set(); Xpos = {}
    def Sblk(i):
        p, qb = units[i]
        Spos[i] = len(pl.mf)
        for kb2 in range(2):
            d = S + (i % 4) * 8 + kb2 * 4
            for s in range(4):
                c = q4('v', d) if s else ("0" if p == 0 else q4('v', NM + 4*qb))
                pl.mfma(f"{MF} {q4('v', d)}, {q4('a', KB[buf(p)] + (kb2*4+s)*4)}, {q4('a', QF + (qb*4+s)*4)}, {c}")
    def PVblk(i):
        p, qb = units[i]
        PVpos[i] = len(pl.mf)
        for T in range(8):
            a = acc(T, qb)
            pl.mfma(f"{MF} {q4('v', a)}, {q4('a', VB[buf(p)] + T*4)}, {q4('v', P + 4*(i%4))}, {q4('v', a) if qb in seenO else '0'}")
        seenO.add(qb)
    U1, U2 = 21, 43
    for i in range(64):
        Sblk(i)
        if i >= 2: PVblk(i - 2)
        if i - 2 == U1 - 2:
            Xpos[1] = len(pl.mf)
            for n in range(4): pl.mfma(f"{MF} {q4('v', ONES)}, {q4('a', MA + 16 + 4*n)}, {q4('a', MA + 4*n)}, {q4('v', ONES) if n else '0'}")
        if i - 2 == U2 - 2:
            Xpos[2] = len(pl.mf)
            for n in range(4): pl.mfma(f"{MF} {q4('v', ONES)}, {q4('a', MA + 16 + 4*n)}, {q4('a', MA + 4*n)}, {q4('v', ONES) if n else '0'}")
    PVblk(62); PVblk(63)
    NMF = len(pl.mf); LAST = NMF - 1

    barg = {}
    for st in range(16):
        g0 = G0[st]
        if st > 0: pl.put(g0 - 1, Wait(lgkm=0))
        bar = None
        if st % 2 == 1 and st <= 9: bar = f"D{st+2}"
        if st == 11: bar = "D15"
        if st == 15: bar = "KV0"
        r0 = g0
        if bar:
            pl.put(g0, Wait(vm=bar)); pl.put(g0 + 1, "s_barrier"); r0 = g0 + 1; barg[st] = g0 + 1
        if st < 15: pl.stream(wreads(st + 1), r0, G0[st+1] - 8, spread=True, win=1)
    xr_step = {1: 1, 2: 2, 3: 3, 4: 5, 5: 6, 6: 8, 7: 9}
    for p, st in xr_step.items():
        lo = G0[st] + 10
        pl.stream([Wait(vm=f"XP{p}")] + XR(p), lo, G0[st+1] - 6, win=2)
    stl = [f"buffer_load_dwordx2 {q2('v', STAT + 2*qb)}, v{FT+7}, s[{sWS}:{sWS+3}], s{sM1} offen{off(qb*256)} sc1" for qb in range(4)]
    stq = [f"s_lshr_b32 s{sM1}, s{sBX}, 6", f"s_add_u32 s{sM1}, s{sM1}, {W6_STAT:#x}", f"v_lshlrev_b32 v{FT+7}, 4, v3"] + [Ins(t, tag="STAT") for t in stl]
    vq = [(XP(1)[ntr:] + [Ins(polln, tag="PN")], 0), (D(4) + D(5), 0), (XP(2), 0), (XP(3), 0), (D(6) + D(7), 0), (XP(4), G0[2]), (D(8) + D(9), barg[1] + 1), (XP(5), G0[3]), (D(10) + D(11), barg[3] + 1),
          (XP(6), G0[4]), (D(12) + D(13), barg[5] + 1), (XP(7), G0[6]), (D(14) + D(15), barg[7] + 1), (stq, 0),
          (KV(0), G0[kv0]), (KV(1), G0[9]), (KV(2), barg[11] + 1), (KV(3), barg[15] + 1)]
    gq = 0
    for items, lo in vq:
        n = sum(1 for x in items if isinstance(x, Ins))
        lo = max(lo, gq + 1)
        gq = pl.stream(items, lo, lo + 4 * n - 1, spread=True, win=2)
    su = []
    A = su.append
    A(f"s_mov_b32 s{sWO+2}, {SZ['wo']:#x}"); A(f"s_mov_b32 s{sWO+3}, 0x00020000")
    A(f"s_lshl_b32 s3, s{sQT}, 2"); A(f"s_add_u32 s3, s3, s{sWAVE}")
    A(f"s_lshl_b32 s{sOO}, s3, 19"); A(f"s_lshl_b32 s3, s{sH}, 14"); A(f"s_add_u32 s{sOO}, s{sOO}, s3"); A(f"s_add_u32 s{sOO}, s{sOO}, {WS_O:#x}")
    A(f"s_lshl_b32 s{sBWO}, s{sKSL}, 20"); A(f"s_lshl_b32 s3, s{sCT}, 8"); A(f"s_add_u32 s{sBWO}, s{sBWO}, s3"); A(f"s_lshl_b32 s3, s{sWAVE}, 6"); A(f"s_add_u32 s{sBWO}, s{sBWO}, s3")
    A(f"s_lshl_b32 s3, s{sCT}, 1"); A(f"s_add_u32 s3, s3, s{sRT}"); A(f"s_and_b32 s3, s3, 7")
    A(f"s_lshl_b32 s{sRW}, s3, 17"); A(f"s_or_b32 s{sOWO}, s{sRW}, s{sBWO}")
    A(f"s_mov_b64 s[{sBAD}:{sBAD+1}], 0")
    csu = pl.stream(su, 0, 90)
    sv = []
    A = sv.append
    for i in range(4):
        A(f"s_add_u32 s3, s{sWAVE}, {i}"); A("s_and_b32 s3, s3, 3"); A("s_lshl_b32 s3, s3, 2")
        A(f"v_add_u32 v31, s3, v2"); A("v_xor_b32 v31, v31, v3"); A("v_lshlrev_b32 v31, 4, v31"); A(f"v_lshl_add_u32 v{aK+i}, v3, 8, v31"); A(f"v_add_u32 v{aK+i}, 0x10000, v{aK+i}")
    sv1 = sv; sv = []; A = sv.append
    t0, t1 = FT + 4, FT + 5
    A("v_lshl_add_u32 v31, v2, 2, v29")
    A(f"v_and_b32 v{t0}, 7, v31"); A(f"v_lshlrev_b32 v{t0}, 1, v{t0}")
    A(f"v_lshrrev_b32 v{t1}, 1, v30"); A(f"v_xor_b32 v{t0}, v{t0}, v{t1}")
    A(f"v_and_b32 v{t1}, 1, v30"); A(f"v_lshlrev_b32 v{t1}, 3, v{t1}"); A(f"v_lshl_add_u32 v{t1}, v31, 8, v{t1}")
    A(f"v_add_u32 v{t1}, {4096 + 65536}, v{t1}")
    for T in range(8):
        A(f"v_xor_b32 v{aV+T}, {2*T}, v{t0}"); A(f"v_lshl_add_u32 v{aV+T}, v{aV+T}, 4, v{t1}")
    sv2 = sv; sv = sv1; A = sv.append
    for i in range(4):
        A(f"v_add_u32 v31, {4*i}, v2"); A("v_xor_b32 v31, v31, v3"); A("v_lshlrev_b32 v31, 4, v31"); A(f"v_lshl_add_u32 v{oK+i}, v2, 8, v31")
    for i in range(2):
        A(f"v_add_u32 v31, {4*i}, v2"); A("v_lshlrev_b32 v31, 1, v31"); A("v_xor_b32 v31, v31, v3"); A("v_lshlrev_b32 v31, 4, v31"); A(f"v_lshl_add_u32 v{oV+i}, v2, 8, v31")
    csv = pl.stream(sv, csu + 1, G0[6])
    pl.stream(sv2, G0[10], G0[11])
    if touch:
        ct = -1
        tl = [f"buffer_load_dword a{246+n}, v{oL}, s[{(sK, sV)[n & 1]}:{(sK, sV)[n & 1]+3}], s{sK1} offen{off((n >> 1)*1024)}" for n in range(8)]
        pl.stream(tl, max(ct + 1, G0[touch[0]]), G0[touch[1]] - 1, spread=True, win=2)
    its = check_items("PN", polln, [f"v_cmp_eq_u32 vcc, 0, v{FT+1}"])
    its += [f"s_mov_b32 s{sM1}, {W6_STAT:#x}", Ins(f"buffer_store_dwordx2 {q2('v', FT)}, v{FT+5}, s[{sWS}:{sWS+3}], s{sM1} offen sc1", tag="PUB0"),
            f"v_readfirstlane_b32 s{sTAG}, v{FT+1}", f"v_mov_b32 v{FT+3}, v{FT+1}"]
    c = pstream(pl, its, G0[2] + 4, G0[3] - 2, win=2)
    pl.stream([Wait(vm="PUB0"), f"buffer_store_dwordx2 {q2('v', FT+2)}, v{FT+4}, s[{sWS}:{sWS+3}], 0 offen sc1"], G0[7] + 4, G0[8] - 2, win=2)
    cm = [f"v_xor_b32 v{FT}, s{sTAG}, v{STAT+1}", f"v_xor_b32 v{FT+1}, s{sTAG}, v{STAT+3}", f"v_xor_b32 v{FT+3}, s{sTAG}, v{STAT+5}", f"v_or3_b32 v{FT}, v{FT}, v{FT+1}, v{FT+3}",
          f"v_xor_b32 v{FT+1}, s{sTAG}, v{STAT+7}", f"v_or_b32 v{FT}, v{FT}, v{FT+1}", f"v_cmp_ne_u32 vcc, 0, v{FT}"]
    its = check_items("STAT", stl, cm)
    for qb in range(4):
        a, b = STAT + 2*qb, STAT + 2*qb + 1
        its += [f"v_and_b32 v{b}, 0xffff0000, v{a}", f"v_rcp_f32 v{b}, v{b}", f"v_lshlrev_b32 v{a}, 16, v{a}", f"v_sub_f32 v{a}, 0, v{a}", f"v_mul_f32 v{b}, {QSCALE:#x}, v{b}"]
    c = pstream(pl, its, G0[12] + 2, G0[13] - 1, win=2)
    its = [f"v_lshrrev_b32 v31, 2, v1", f"v_lshlrev_b32 v31, 10, v31", f"v_lshl_add_u32 v{oWO}, v30, 4, v31"] + [f"v_add_u32 v{oWO+i}, {i*15360}, v{oWO}" for i in range(1, 4)]
    its += [f"v_add_u32 v{oW}, s{sM0O}, v{oL}", f"v_add_u32 v{oW}, {R4 + 6144}, v{oW}", f"v_add_u32 v{oW+1}, {R4 + 6144}, v{oL}"]
    pl.stream(its, G0[11] + 2, G0[12] - 1)
    g13 = G0[13]
    pl.stream([f"ds_write_b128 v{oW}, {q4('v', CS0)}", Ins(f"ds_write_b128 v{oW}, {q4('v', CS0+4)} offset:1024", tag="CSW")], g13 + 3, g13 + 8, win=1)
    cb = g13 + 16
    pl.put(cb - 1, Wait(lgkm="CSW")); pl.put(cb, "s_barrier")
    def csread(i, dst, lo, hi):
        c = pl.stream([f"s_add_u32 s3, s{sWAVE}, {i}", "s_and_b32 s3, s3, 3", "s_lshl_b32 s3, s3, 13", f"v_add_u32 v31, s3, v{oW+1}"], lo, hi, win=1)
        return pl.stream([f"ds_read_b128 {q4('v', dst)}, v31", Ins(f"ds_read_b128 {q4('v', dst+4)}, v31 offset:1024", tag=f"CS{i}")], max(c + 1, cb), hi, win=1)
    csreg = {0: CS0, 1: CSX, 2: CS0, 3: CSX}
    cur = 0; fin_end = {}
    for i in range(4):
        lo = max(cur, G0[13 + i] + (3 if i < 3 else -1))
        if i >= 1: pl.put(lo - 1, Wait(lgkm=f"CS{i}"))
        for qb in range(4):
            a0, a1 = acc(2*i, qb), acc(2*i+1, qb)
            cs = csreg[i]
            ops = [f"v_fmac_f32 v{a0+n}, v{cs+n}, v{STAT+2*qb}" for n in range(4)] + [f"v_fmac_f32 v{a1+n}, v{cs+4+n}, v{STAT+2*qb}" for n in range(4)]
            ops += [f"v_mul_f32 v{a0+n}, v{a0+n}, v{STAT+2*qb+1}" for n in range(4)] + [f"v_mul_f32 v{a1+n}, v{a1+n}, v{STAT+2*qb+1}" for n in range(4)]
            ops += [f"v_cvt_pk_bf16_f32 v{a0}, v{a0}, v{a0+1}", f"v_cvt_pk_bf16_f32 v{a0+1}, v{a0+2}, v{a0+3}",
                    f"v_cvt_pk_bf16_f32 v{a0+2}, v{a1}, v{a1+1}", f"v_cvt_pk_bf16_f32 v{a0+3}, v{a1+2}, v{a1+3}"]
            ops += [f"v_accvgpr_write_b32 a{QF + (qb*4+i)*4 + n}, v{a0+n}" for n in range(4)]
            if i < 3:
                span = G0[14 + i] + (2 if i < 2 else -2) - lo
                l2 = lo + (qb * span) // 4; h2 = lo + ((qb + 1) * span) // 4 - 1
                cur = pl.stream(ops, max(cur, l2), h2, spread=True, win=0)
            else:
                cur = pl.stream(ops, max(cur, lo), Spos[qb] + 2, spread=True, win=0)
        fin_end[i] = cur
        if i == 0: csread(1, CSX, cb - 4, cb + 8)
        if i in (0, 1): pass
    csread(2, CS0, fin_end[0] + 1, fin_end[0] + 14); csread(3, CSX, fin_end[1] + 1, fin_end[1] + 14)

    def kreads(p):
        slot = (p // 2) % 4
        return [Ins(f"ds_read_b128 {q4('a', KB[buf(p)] + (kb2*4+s)*4)}, v{aK+s} offset:{(slot & 1) * 32768 + (2*(p & 1) + kb2) * 8192}", tag=f"K{p}")
                for kb2 in range(2) for s in range(4)]
    def vreads(p):
        slot = (p // 2) % 4
        return [Ins(f"ds_read_b64_tr_b16 {q2('a', VB[buf(p)] + T*4 + u*2)}, v{aV+T} offset:{(slot & 1) * 32768 + (2*(p & 1) + u) * 8192}", tag=f"V{p}")
                for T in range(8) for u in range(2)]
    firstS = {}; firstPV = {}; lastS = {}; lastPV = {}
    for i, (p, qb) in enumerate(units):
        firstS.setdefault(p, Spos[i]); firstPV.setdefault(p, PVpos[i]); lastS[p] = Spos[i] + 7; lastPV[p] = PVpos[i] + 7
    vcur = cur
    PAT = [("E",0,0),("E",1,1),("A",0,2),("E",2,3),("A",1,4),("C",0,4),("E",3,5),("A",2,6),("E",4,7),("A",3,8),("C",1,8),("E",5,9),("A",4,10),
           ("E",6,11),("A",5,12),("C",2,12),("E",7,13),("A",6,14),("A",7,15),("C",3,15)]
    lastunit = {qb: max(i for i, u in enumerate(units) if u[1] == qb) for qb in range(4)}
    for i, (p, qb) in enumerate(units):
        b = S + (i % 4) * 8
        w0 = Spos[i] + 7 + 3
        dead = PVpos[i] - 1
        def op(kind, n):
            if kind == "E": return f"v_exp_f32 v{b+n}, v{b+n}"
            if kind == "A":
                if p == 0 and n < 2: return f"v_mov_b32 v{LS+2*qb+n}, v{b+n}"
                return f"v_add_f32 v{LS+2*qb+(n&1)}, v{LS+2*qb+(n&1)}, v{b+n}"
            return f"v_cvt_pk_bf16_f32 v{P+4*(i%4)+n}, v{b+2*n}, v{b+2*n+1}"
        if p == 0:
            t = ONES
            ops = [f"v_max3_f32 v{t}, v{b}, v{b+1}, v{b+2}", f"v_max3_f32 v{t+1}, v{b+3}, v{b+4}, v{b+5}", f"v_max3_f32 v{t}, v{t}, v{b+6}, v{b+7}", f"v_max_f32 v{t}, v{t}, v{t+1}"]
            for sw in ("v_permlane32_swap_b32", "v_permlane16_swap_b32"):
                ops += [f"v_mov_b32 v{t+1}, v{t}", f"{sw} v{t}, v{t+1}", f"v_max_f32 v{t}, v{t}, v{t+1}"]
            ops += [f"v_sub_f32 v{b+n}, v{b+n}, v{t}" for n in range(8)]
            ops += [f"v_sub_f32 v{NM+4*qb+n}, 0, v{t}" for n in range(4)]
            ops += [op(kd, n) for kd, n, _ in PAT]
            vcur = pl.stream(ops, min(dead, max(w0, vcur)), dead, spread=True, win=0)
        elif w0 + 15 <= dead and w0 > vcur:
            for kd, n, pos in PAT: pl.put(w0 + pos, op(kd, n))
            pl.mslots |= {w0 + j for j in (2, 4, 6, 8, 10, 12, 14)}
            vcur = w0 + 15
        else:
            lo = max(min(w0, dead), vcur)
            vcur = pl.stream([op(kd, n) for kd, n, _ in PAT], lo, min(dead, max(w0 + 15, lo + 12)), spread=True, win=0)
    Bgap = {0: barg[15]}
    for j in range(1, 7):
        p = 2*j - 1
        Bgap[j] = firstPV[p] - 1
        pl.put(Bgap[j] - 1, Wait(vm=f"KV{j if j < 6 else 7}", lgkm=0)); pl.put(Bgap[j], "s_barrier")
    cur = Bgap[0]
    order = [(kd, p) for p in range(13) for kd in "KV"] + [("K", 13), ("K", 14), ("V", 13), ("K", 15), ("V", 14), ("V", 15)]
    cur_k = cur_v = 0
    for kind, p in order:
        lo = max(cur, Bgap[min(p // 2, 6)])
        prevuser = [pp for pp in range(p) if buf(pp) == buf(p)]
        late = p >= 13
        if kind == "K":
            if prevuser: lo = max(lo, lastS[prevuser[-1]])
            hi = firstS[p] - 5
            if p % 4 == 0 and p: pl.stream([f"v_xor_b32 v{aK+s}, 0x10000, v{aK+s}" for s in range(4)], max(cur_k + 1, lo - 12), lo - 1, spread=True, win=1)
            n_av = hi - lo + 1
            cur = cur_k = pl.stream(kreads(p), lo, hi, win=(None if n_av >= 20 and p and not late else 1), spread=(n_av < 20 or p == 0))
            pl.put(firstS[p] - 1, Wait(lgkm=f"K{p}"))
        else:
            if prevuser: lo = max(lo, lastPV[prevuser[-1]])
            hi = firstPV[p] - 7
            if p % 4 == 0 and p: pl.stream([f"v_xor_b32 v{aV+T}, 0x10000, v{aV+T}" for T in range(8)], max(cur_v + 1, lo - 24), lo - 1, spread=True, win=1)
            n_av = hi - lo + 1
            cur = cur_v = pl.stream(vreads(p), lo, hi, win=(None if n_av >= 36 and p > 1 and not late else 1), spread=(n_av < 36 or p <= 1))
            if p % 2 == 0 or p >= 13: pl.put(firstPV[p] - 1, Wait(lgkm=f"V{p}"))
    Bgap[7] = firstPV[15]
    pl.put(Bgap[7], "s_barrier")
    mw = [f"s_and_b32 s{sT}, s2, 7", f"s_mul_i32 s{sT}, s{sT}, 22", f"s_lshr_b32 s{sOW}, s2, 3", f"s_add_u32 s{sT}, s{sT}, s{sOW}",
          ("pair", f"s_cmp_lt_u32 s{sOW}, 22", f"s_cselect_b32 s{sBW}, s{sT}, 172"),
          f"s_lshl_b32 s{sT}, s{sBW}, 4", f"s_mul_i32 s{sOW}, s{sWAVE}, {128*2752}", f"s_add_u32 s{sOW}, s{sOW}, s{sT}",
          ("pair", f"s_cmp_lt_u32 s{sBW}, 172", f"s_cselect_b32 s{sOW}, s{sOW}, {OOB:#x}"),
          f"s_add_u32 s{sOX}, s{sOW}, {64*2752}",
          f"v_mul_u32_u24 v{aW}, 2752, v1"]
    w1 = []
    for mat, ptr in enumerate((pWG, pWU)):
        w1 += [f"s_mov_b32 s{sTS}, s{ptr}", f"s_mov_b32 s{sTS+1}, s{ptr+1}", f"s_mov_b32 s{sTS+2}, {SZ['wg']:#x}", f"s_mov_b32 s{sTS+3}, 0x00020000"]
        for hf in range(2):
            w1 += [f"s_add_u32 m0, s{sM0O}, {R4 + mat*2048 + hf*1024}", Ins(f"buffer_load_dwordx4 v{aW}, s[{sTS}:{sTS+3}], s{(sOW, sOX)[hf]} offen{NT('m')} lds", tag="W1")]
    w2 = [f"s_mov_b32 s{sTS}, s{pWD}", f"s_mov_b32 s{sTS+1}, s{pWD+1}", f"s_mov_b32 s{sTS+2}, {SZ['wd']:#x}", f"s_mov_b32 s{sTS+3}, 0x00020000",
          f"s_lshl_b32 s{sM0W}, s{sQT}, 2", f"s_add_u32 s{sM0W}, s{sM0W}, s{sWAVE}",
          f"s_lshl_b32 s{sOW}, s{sM0W}, 17", f"s_lshl_b32 s{sT}, s{sH}, 5", f"s_add_u32 s{sOW}, s{sOW}, s{sT}",
          f"v_lshrrev_b32 v{aW+1}, 1, v1", f"v_lshlrev_b32 v{aW+1}, 10, v{aW+1}", f"v_and_b32 v{aW+3}, 1, v1", f"v_lshl_add_u32 v{aW+1}, v{aW+3}, 4, v{aW+1}"]
    for e in range(4):
        w2 += [f"s_add_u32 m0, s{sM0O}, {R4 + e*1024}", Ins(f"buffer_load_dwordx4 v{aW+1}, s[{sTS}:{sTS+3}], s{sOW} offen{NT('m')} lds", tag="W2"), f"s_add_u32 s{sOW}, s{sOW}, 32768"]
    def pairstream(items, lo, hi, **kw):
        cur = lo; b = []
        for x in items:
            if isinstance(x, tuple):
                if b: cur = pl.stream(b, cur, hi, **kw); b = []
                cur += 1
                while pl._g(cur)["s"]: cur += 1
                pl.put(cur, x[1]); pl.put(cur, x[2], cls="s")
            else: b.append(x)
        if b: cur = pl.stream(b, cur, hi, **kw)
        return cur
    dcur = pairstream(mw, max(gq + 1, NQ + 2), Bgap[1] - 2, win=2)
    dcur = pl.stream(w1[:6], dcur + 1, dcur + 16, win=2); dcur = pl.stream(w1[6:8], max(dcur + 1, Bgap[1] - 12), Bgap[1] - 2, win=2)
    w1b = w1[8:]
    dm = []
    for j in range(1, 5):
        if j == 3: dm.append((w2, Bgap[3] + 1, Bgap[3] + 84, 2))
        if j == 1: dm.append((w1b[:6], Bgap[1] + 40, Bgap[1] + 56, 2))
        dm.append((KV(j + 3), Bgap[j] + 1, Bgap[j+1] - 2, None))
        if j == 1: dm.append((w1b[6:], Bgap[2] - 1, Bgap[2] + 6, 2))
    dm.append((WO(0) + WO(1), Bgap[5] + 1, Bgap[6] - 2, None)); dm.append((WO(2) + WO(3) + WO(4), Bgap[6] + 1, Bgap[7] - 30, 3))
    if nwo > 5: dm.append((sum((WO(g) for g in range(5, nwo)), []), Bgap[7] + 1, LAST - 10, 3))
    for items, lo, hi, w in dm:
        dcur = pl.stream(items, max(lo, dcur + 1), hi, win=w, spread=bool(w))
    m = MT
    fin3 = fin_end[3]
    keyl = [f"buffer_load_dwordx4 {q4('v', m + 4*n)}, v{oL}, s[{sWS}:{sWS+3}], s{sM0K} offen{off(n*1024)} sc1" for n in range(4)]
    assert W6_KEY == 0
    c = pl.stream([Ins(t, tag="KEYS") for t in keyl], Bgap[1] - 30, Bgap[1] - 6, spread=True, win=1)
    t0_, t1_ = ONES, ONES + 1
    cm = [f"v_min3_u32 v{t0_}, v{m+1}, v{m+3}, v{m+5}", f"v_max3_u32 v{t1_}, v{m+1}, v{m+3}, v{m+5}"]
    for a, b in ((7, 9), (11, 13)): cm += [f"v_min3_u32 v{t0_}, v{t0_}, v{m+a}, v{m+b}", f"v_max3_u32 v{t1_}, v{t1_}, v{m+a}, v{m+b}"]
    cm += [f"v_min3_u32 v{t0_}, v{t0_}, v{m+15}, s{sTAG}", f"v_max3_u32 v{t1_}, v{t1_}, v{m+15}, s{sTAG}", f"v_cmp_ne_u32 vcc, v{t0_}, v{t1_}"]
    c = pstream(pl, check_items("KEYS", keyl, cm), Bgap[1] + 30, Bgap[1] + 50, spread=False, win=1)
    m1, m2, mt = ONES, ONES + 1, ONES + 2
    def top2of8(st=1):
        o = [f"v_max_u32 v{m1}, v{m}, v{m+st}", f"v_min_u32 v{m2}, v{m}, v{m+st}"]
        for i in range(2, 8): o += [f"v_med3_u32 v{m2}, v{m1}, v{m2}, v{m+i*st}", f"v_max_u32 v{m1}, v{m1}, v{m+i*st}"]
        return o
    def wmax(v, t):
        o = [f"v_max_u32_dpp v{v}, v{v}, v{v} {d}" for d in DPP4]
        for sw in ("v_permlane16_swap_b32", "v_permlane32_swap_b32"): o += [f"v_mov_b32 v{t}, v{v}", f"{sw} v{v}, v{t}", f"v_max_u32 v{v}, v{v}, v{t}"]
        return o
    its = top2of8(2) + [f"v_mov_b32 v{m}, v{m1}"] + wmax(m, mt) + [f"v_cmp_eq_u32 vcc, v{m}, v{m1}", f"v_cndmask_b32 v{m+1}, v{m1}, v{m2}, vcc"] + wmax(m + 1, mt)
    its += [f"v_mov_b32 v{mt}, s{sM0O}", f"v_add_u32 v{mt}, {R4 + 6144}, v{mt}", f"ds_write_b64 v{mt}, {q2('v', m)}"]
    c = pl.stream(its, c + 1, Bgap[2] - 6, spread=True, win=0)
    its = [f"v_mov_b32 v{mt}, {R4 + 6144}"] + [Ins(f"ds_read_b64 {q2('v', m + 2*w)}, v{mt} offset:{w*8192}", tag="T2R") for w in range(4)]
    c = pl.stream(its, Bgap[2], Bgap[2] + 8, win=1)
    its = [f"v_lshl_add_u32 v{aW}, v2, 3, v29", f"v_lshlrev_b32 v{aW}, 4, v{aW}", f"v_lshrrev_b32 v{aW+2}, 1, v30", f"v_lshl_add_u32 v{aW}, v{aW+2}, 11, v{aW}",
           f"v_and_b32 v{aW+2}, 1, v30", f"v_lshl_add_u32 v{aW}, v{aW+2}, 3, v{aW}", f"v_add_u32 v{aW}, s{sM0O}, v{aW}", f"v_add_u32 v{aW}, {R4}, v{aW}"]
    its += [Wait(lgkm="T2R")] + top2of8()
    its += [f"v_readfirstlane_b32 s{sK1}, v{m1}", f"v_readfirstlane_b32 s{sK2}, v{m2}",
            f"v_cmp_lt_u32 vcc, 31, v1", f"v_cndmask_b32 v{m}, v{m1}, v{m2}, vcc",
            f"v_and_b32 v{m}, 0xffff, v{m}", f"v_sub_u32 v{m}, 0xffff, v{m}",
            f"v_and_b32 v{mt}, 31, v1", f"v_lshlrev_b32 v{mt}, 3, v{mt}", f"v_lshl_add_u32 v{m+1}, v{m}, 10, v{mt}", f"v_lshlrev_b32 v{m}, 4, v{m}",
            f"s_lshl_b32 s{sM1}, s{sWAVE}, 8",
            Ins(f"buffer_load_dwordx2 {q2('v', m+2)}, v{m+1}, s[{sX}:{sX+3}], s{sM1} offen", tag="XS"), f"s_mov_b32 s{sM1}, {W6_STAT:#x}",
            Ins(f"buffer_load_dword v{m+4}, v{m}, s[{sWS}:{sWS+3}], s{sM1} offen sc1", tag="XS")]
    c = pl.stream(its, c + 1, c + 36, spread=True, win=0)
    its = [Ins(f"ds_read_b64_tr_b16 {q2('a', MA + 16 + 4*n + 2*u)}, v{aW} offset:{n*512 + u*64}", tag="W1R") for n in range(4) for u in range(2)]
    its += [f"v_lshlrev_b32 v{m+10}, 3, v1", f"v_add_u32 v{m+10}, s{sM0O}, v{m+10}", f"v_add_u32 v{m+10}, {R4 + 4096}, v{m+10}",
            f"v_and_b32 v{m+11}, 1, v1", f"v_lshlrev_b32 v{m+11}, 8, v{m+11}", f"v_lshl_add_u32 v{m+11}, v2, 4, v{m+11}", f"v_add_u32 v{m+11}, s{sM0O}, v{m+11}", f"v_add_u32 v{m+11}, {R4 + 4096}, v{m+11}"]
    c = pl.stream([Wait(vm="W1")] + its, c + 8, c + 36, spread=True, win=1)
    its = [Wait(vm="XS"), f"v_and_b32 v{m+5}, 0xffff0000, v{m+4}", f"v_rcp_f32 v{m+5}, v{m+5}", f"v_lshlrev_b32 v{m+4}, 16, v{m+4}"]
    for n in range(2): its += [f"v_lshlrev_b32 v{m+6+2*n}, 16, v{m+2+n}", f"v_and_b32 v{m+7+2*n}, 0xffff0000, v{m+2+n}"]
    its += [f"v_sub_f32 v{m+6+n}, v{m+6+n}, v{m+4}" for n in range(4)] + [f"v_cvt_pk_bf16_f32 v{m+2+n}, v{m+6+2*n}, v{m+7+2*n}" for n in range(2)]
    for n in range(2): its += [f"v_lshlrev_b32 v{m+6+2*n}, 16, v{m+2+n}", f"v_and_b32 v{m+7+2*n}, 0xffff0000, v{m+2+n}"]
    its += [f"v_mul_f32 v{m+6+n}, v{m+6+n}, v{m+5}" for n in range(4)] + [f"v_cvt_pk_bf16_f32 v{m+2+n}, v{m+6+2*n}, v{m+7+2*n}" for n in range(2)]
    its += [f"ds_write_b64 v{m+10}, {q2('v', m+2)}"] + [Ins(f"ds_read_b128 {q4('a', MA + 4*n)}, v{m+11} offset:{n*64}", tag="XSR") for n in range(4)]
    c = pl.stream(its, c + 1, Xpos[1] - 6, spread=True, win=0)
    pl.put(Xpos[1] - 1, Wait(lgkm="XSR"))
    assert Xpos[1] + 9 < Bgap[3] - 1, (Xpos, Bgap)
    pl.stream([f"ds_write_b128 v{oW}, {q4('v', ONES)} offset:1024"], Xpos[1] + 7, Xpos[1] + 8, win=1)
    its = [Ins(f"ds_read_b128 {q4('v', m + 4*w)}, v{oW+1} offset:{w*8192 + 1024}", tag="S1R") for w in range(4)]
    c = pl.stream(its, Bgap[3], Bgap[3] + 8, win=1)
    e0 = ONES
    its = [Wait(lgkm="S1R")]
    for n in range(4): its += [f"v_add_f32 v{m+n}, v{m+n}, v{m+4+n}", f"v_add_f32 v{m+8+n}, v{m+8+n}, v{m+12+n}"]
    for n in range(4): its += [f"v_add_f32 v{m+n}, v{m+n}, v{m+8+n}"]
    its += [f"v_cvt_pk_bf16_f32 v{m+4}, v{m}, v{m+1}", f"v_cvt_pk_bf16_f32 v{m+5}, v{m+2}, v{m+3}", f"v_mov_b32 v{m+6}, v{m+4}", f"v_mov_b32 v{m+7}, v{m+5}",
            f"v_permlane32_swap_b32 v{m+4}, v{m+6}", f"v_permlane32_swap_b32 v{m+5}, v{m+7}"]
    for n in range(2):
        its += [f"v_lshlrev_b32 v{m+2*n}, 16, v{m+4+n}", f"v_and_b32 v{m+2*n+1}, 0xffff0000, v{m+4+n}", f"v_lshlrev_b32 v{m+8+2*n}, 16, v{m+6+n}", f"v_and_b32 v{m+8+2*n+1}, 0xffff0000, v{m+6+n}"]
    its += [f"v_mul_f32 v{m+12+n}, 0xbfb8aa3b, v{m+n}" for n in range(4)] + [f"v_exp_f32 v{m+12+n}, v{m+12+n}" for n in range(4)]
    its += [f"v_add_f32 v{m+12+n}, 1.0, v{m+12+n}" for n in range(4)] + [f"v_rcp_f32 v{m+12+n}, v{m+12+n}" for n in range(4)]
    its += [f"v_mul_f32 v{m+n}, v{m+n}, v{m+12+n}" for n in range(4)]
    its += [f"v_cvt_pk_bf16_f32 v{m+4}, v{m}, v{m+1}", f"v_cvt_pk_bf16_f32 v{m+5}, v{m+2}, v{m+3}"]
    for n in range(2): its += [f"v_lshlrev_b32 v{m+2*n}, 16, v{m+4+n}", f"v_and_b32 v{m+2*n+1}, 0xffff0000, v{m+4+n}"]
    its += [f"v_mul_f32 v{m+n}, v{m+n}, v{m+8+n}" for n in range(4)]
    its += [f"v_cvt_pk_bf16_f32 v{m+4}, v{m}, v{m+1}", f"v_cvt_pk_bf16_f32 v{m+5}, v{m+2}, v{m+3}"]
    its += [f"v_and_b32 v{m+6}, 1, v1", f"v_lshlrev_b32 v{m+6}, 4, v{m+6}", f"v_and_b32 v{m+7}, 1, v2", f"v_lshl_add_u32 v{m+7}, v{m+7}, 3, v{m+6}", f"v_mov_b32 v{m}, s{sTAG}", f"v_mov_b32 v{m+1}, 64"]
    spart = [f"s_lshl_b32 s{sM1}, s{sBW}, 7", f"s_add_u32 s{sM1}, s{sM1}, {W6_H:#x}", ("pair", f"s_cmp_lt_u32 s{sBW}, 172", f"s_cselect_b32 s{sM1}, s{sM1}, {OOB:#x}"),
             ("pair", f"s_cmp_eq_u32 s{sWAVE}, 0", f"s_cselect_b32 s{sM1}, s{sM1}, {OOB:#x}")]
    pairstream(spart, c + 1, c + 30, win=1)
    c = pl.stream(its + [Ins(f"buffer_store_dwordx2 {q2('v', m+4)}, v{m+7}, s[{sWS}:{sWS+3}], s{sM1} offen sc1", tag="HS")], c + 4, Bgap[4] - 50, spread=True, win=0)
    c = pl.stream([Wait(vm="HS"), f"buffer_store_dword v{m}, v{m+1}, s[{sWS}:{sWS+3}], s{sM1} offen sc1"], Bgap[4] + 2, Bgap[4] + 12, win=1)
    pollh = f"buffer_load_dword v{m}, v{m+1}, s[{sWS}:{sWS+3}], s{sM1} offen sc1"
    its = [f"s_lshl_b32 s{sM1}, s{sM0W}, 4", f"v_add_u32 v{m+1}, s{sM1}, v3", f"v_min_u32 v{m+1}, 171, v{m+1}", f"v_lshlrev_b32 v{m+1}, 7, v{m+1}", f"s_mov_b32 s{sM1}, {W6_H + 64:#x}", Ins(pollh, tag="PH")]
    c = pl.stream(its, Bgap[5] - 50, Bgap[5] - 30, win=1)
    its = check_items("PH", pollh, [f"v_cmp_ne_u32 vcc, s{sTAG}, v{m}"])
    its += [f"v_lshl_add_u32 v{m+7}, v2, 7, v{m+6}"]
    for e in range(4):
        its += [f"s_lshl_b32 s{sM1}, s{sM0W}, 2", f"s_add_u32 s{sM1}, s{sM1}, {e}", f"s_min_u32 s{sM1}, s{sM1}, 42", f"s_lshl_b32 s{sM1}, s{sM1}, 9", f"s_add_u32 s{sM1}, s{sM1}, {W6_H:#x}",
                Ins(f"buffer_load_dwordx4 {q4('a', MA + 4*e)}, v{m+7}, s[{sWS}:{sWS+3}], s{sM1} offen sc1", tag="HL")]
    c = pstream(pl, its, Bgap[5] + 2, Bgap[5] + 44, win=1)
    its = [f"v_lshl_add_u32 v{aW}, v2, 3, v29", f"v_lshlrev_b32 v{aW}, 5, v{aW}", f"v_lshl_add_u32 v{aW}, v30, 3, v{aW}", f"v_add_u32 v{aW}, s{sM0O}, v{aW}", f"v_add_u32 v{aW}, {R4}, v{aW}", Wait(vm="W2")]
    its += [Ins(f"ds_read_b64_tr_b16 {q2('a', MA + 16 + 4*e + 2*u)}, v{aW} offset:{e*1024 + u*128}", tag="W2R") for e in range(4) for u in range(2)]
    c = pl.stream(its, c + 1, Xpos[2] - 4, spread=True, win=1)
    pl.put(Xpos[2] - 1, Wait(vm="HL", lgkm="W2R"))
    assert Xpos[2] + 12 < Bgap[6] - 4
    pl.stream([f"ds_write_b128 v{oW}, {q4('v', ONES)}"], Xpos[2] + 8, Xpos[2] + 12, win=1)
    c = pl.stream([Ins(f"ds_read_b128 {q4('v', m + 4*w)}, v{oW+1} offset:{w*8192}", tag="S2R") for w in range(4)], Bgap[6], Bgap[6] + 8, win=1)
    spart = [f"s_lshl_b32 s{sM1}, s{sQT}, 5", f"s_add_u32 s{sM1}, s{sM1}, s{sH}", f"s_lshl_b32 s{sM1}, s{sM1}, 7", f"s_add_u32 s{sM1}, s{sM1}, {W6_YP:#x}",
             ("pair", f"s_cmp_lt_u32 s{sQT}, 3", f"s_cselect_b32 s{sM1}, s{sM1}, {OOB:#x}"), ("pair", f"s_cmp_eq_u32 s{sWAVE}, 0", f"s_cselect_b32 s{sM1}, s{sM1}, {OOB:#x}")]
    pairstream(spart, c + 1, c + 20, win=1)
    its = [Wait(lgkm="S2R")]
    for n in range(4): its += [f"v_add_f32 v{m+n}, v{m+n}, v{m+4+n}", f"v_add_f32 v{m+8+n}, v{m+8+n}, v{m+12+n}"]
    for n in range(4): its += [f"v_add_f32 v{m+n}, v{m+n}, v{m+8+n}"]
    its += [f"v_and_b32 v{m+4}, 1, v1", f"v_lshlrev_b32 v{m+4}, 6, v{m+4}", f"v_lshl_add_u32 v{m+4}, v2, 4, v{m+4}",
            Ins(f"buffer_store_dwordx4 {q4('v', m)}, v{m+4}, s[{sWS}:{sWS+3}], s{sM1} offen sc1", tag="YS"), f"v_mov_b32 v{m+8}, s{sTAG}", f"v_mov_b32 v{m+9}, {W6_YT - W6_YP}"]
    c = pl.stream(its, c + 6, c + 40, spread=True, win=0)
    c = pl.stream([Wait(vm="YS"), f"buffer_store_dword v{m+8}, v{m+9}, s[{sWS}:{sWS+3}], s{sM1} offen sc1"], c + 60, c + 70, win=1)
    assert c < PVpos[lastunit[0]] - 2, (c, PVpos[lastunit[0]])
    def ofin_head(qb, t, usepk):
        l0 = LS + 2 * qb
        ops = [f"v_add_f32 v{t}, v{l0}, v{l0+1}"]
        for sw in ("v_permlane32_swap_b32", "v_permlane16_swap_b32"):
            ops += [f"v_mov_b32 v{t+1}, v{t}", f"{sw} v{t}, v{t+1}", f"v_add_f32 v{t}, v{t}, v{t+1}"]
        return ops
    def ofin_body(qb, t, usepk, tag):
        ops = []
        for s in range(4):
            a0, a1 = acc(2*s, qb), acc(2*s+1, qb)
            if usepk: ops += [f"v_pk_mul_f32 {q2('v', a)}, {q2('v', a)}, {q2('v', t)}" for a in (a0, a0+2, a1, a1+2)]
            else: ops += [f"v_mul_f32 v{a0+n}, v{a0+n}, v{t}" for n in range(4)] + [f"v_mul_f32 v{a1+n}, v{a1+n}, v{t}" for n in range(4)]
            ops += [f"v_cvt_pk_bf16_f32 v{a0}, v{a0}, v{a0+1}", f"v_cvt_pk_bf16_f32 v{a0+1}, v{a0+2}, v{a0+3}",
                    f"v_cvt_pk_bf16_f32 v{a0+2}, v{a1}, v{a1+1}", f"v_cvt_pk_bf16_f32 v{a0+3}, v{a1+2}, v{a1+3}"]
            st = f"buffer_store_dwordx4 {q4('v', a0)}, v{oL}, s[{sWS}:{sWS+3}], s{sST} offen{off(qb*1024)} sc1"
            ops += [f"s_add_u32 s{sST}, s{sOO}, {s*4096}", Ins(st, tag=tag) if tag else unc(st)]
        return ops
    ocur = 0
    pl.put(Bgap[7] - 8, f"v_mov_b32 v31, {f32(2.0**-24) if force_slow else f32(2.0**24):#x}")
    for qb in range(4):
        i = lastunit[qb]
        t = MT + 2 * qb
        usepk = pk and qb == 3
        ops = ofin_head(qb, t, usepk) + [f"v_cmp_nle_f32 s[{sC2}:{sC2+1}], v{t}, v31", f"v_rcp_f32 v{t}, v{t}"] + ([f"v_mov_b32 v{t+1}, v{t}"] if usepk else [])
        ops += [f"s_or_b64 s[{sBAD}:{sBAD+1}], s[{sBAD}:{sBAD+1}], s[{sC2}:{sC2+1}]"]
        pl.stream(ops, PVpos[i] - 1, min(LAST, PVpos[i] + 7), spread=True, win=0)
        lo = min(LAST, max(ocur, PVpos[i] + 7 + 3))
        hi = min(LAST, lo + 16 * tailq - 4)
        ocur = pl.stream(ofin_body(qb, t, usepk, "OST"), lo, hi, spread=True, win=0)
    for nm, gp in (("q1", 0), ("qhalf", G0[8]), ("qend", NQ - 1), ("ahalf", NQ + 512), ("aend", LAST - 1)) + tuple((f"a{n}", NQ + 128*n) for n in range(1, 8)) + tuple((f"q{n}", G0[n]) for n in range(2, 16)):
        if nm in prof:
            for x in stamp_ins(prof.index(nm)): pl.put(gp, x)
    over = pl.emit()
    print("[k7] overflow per 64 gaps:", [sum(max(0, pl.load(i)-8) for i in range(b, min(b+64, LAST))) for b in range(0, NMF, 64)])
    print(f"[k7] QA mfma={NMF} overflow_cycles={over} tail={pl.load(LAST)}")

    slow = k.label("slow"); sback = k.label("sback")
    k(f"s_cmp_lg_u64 s[{sBAD}:{sBAD+1}], 0"); k(f"s_cbranch_scc1 {slow}")
    k(f"{sback}:")
    O = ool.append
    def OI(t): ool.append(Ins(t))
    OI(f"{slow}:")
    O(loopwait())
    OI(f"s_sub_u32 s{sOKV}, s{sBKV}, s{sM0K}")
    for i in range(4):
        OI(f"s_add_u32 s3, s{sWAVE}, {i}"); OI("s_and_b32 s3, s3, 3"); OI("s_lshl_b32 s3, s3, 6")
        OI(f"v_lshlrev_b32 v{aK+i}, 8, v3"); OI(f"v_lshl_add_u32 v{aK+i}, v2, 4, v{aK+i}"); OI(f"v_add_u32 v{aK+i}, s3, v{aK+i}")
    OI(f"v_lshl_add_u32 v{aV}, v2, 2, v29"); OI(f"v_lshlrev_b32 v{aV}, 8, v{aV}"); OI(f"v_lshl_add_u32 v{aV}, v30, 3, v{aV}"); OI(f"v_add_u32 v{aV}, s{sM0O}, v{aV}"); OI(f"v_add_u32 v{aV}, {zslot(0)}, v{aV}")
    for qb in range(4): OI(f"v_mov_b32 v{MT+qb}, 0xff800000")
    def kload():
        for kb2 in range(2):
            OI(f"s_add_u32 s3, s{sT}, {kb2*4096}")
            for i in range(4): O(unc(f"buffer_load_dwordx4 {q4('a', KB[0] + (kb2*4+i)*4)}, v{aK+i}, s[{sK}:{sK+3}], s3 offen"))
    def smfma(useNM):
        for qb in range(4):
            for kb2 in range(2):
                d = S + qb*8 + kb2*4
                for s in range(4):
                    c = q4('v', d) if s else (q4('v', NM + 4*qb) if useNM else "0")
                    OI(f"{MF} {q4('v', d)}, {q4('a', KB[0] + (kb2*4+s)*4)}, {q4('a', QF + (qb*4+s)*4)}, {c}")
        OI("s_nop 7")
    l1 = k.label("sl1"); l2 = k.label("sl2")
    OI(f"s_mov_b32 s{sT}, s{sOKV}"); OI(f"s_mov_b32 s{sM1}, 0")
    OI(f"{l1}:")
    kload(); O(loopwait()); smfma(False)
    for qb in range(4):
        b = S + qb*8
        for n in range(0, 8, 2): OI(f"v_max3_f32 v{MT+qb}, v{MT+qb}, v{b+n}, v{b+n+1}")
    OI(f"s_add_u32 s{sT}, s{sT}, 8192"); OI(f"s_add_u32 s{sM1}, s{sM1}, 1"); OI(f"s_cmp_lt_u32 s{sM1}, 16"); OI(f"s_cbranch_scc1 {l1}")
    for qb in range(4):
        t = MT + qb
        for sw in ("v_permlane32_swap_b32", "v_permlane16_swap_b32"):
            OI(f"v_mov_b32 v{MT+8}, v{t}"); OI(f"{sw} v{t}, v{MT+8}"); OI(f"v_max_f32 v{t}, v{t}, v{MT+8}")
        for n in range(4): OI(f"v_sub_f32 v{NM+4*qb+n}, 0, v{t}")
    for n in range(8): OI(f"v_mov_b32 v{LS+n}, 0")
    for n in range(128): OI(f"v_mov_b32 v{ACC+n}, 0")
    OI(f"s_mov_b32 s{sT}, s{sOKV}"); OI(f"s_mov_b32 s{sM1}, 0")
    OI(f"{l2}:")
    kload()
    for hf in range(2):
        OI(f"s_add_u32 m0, s{sM0O}, {zslot(0) + hf*4096}"); OI(f"s_add_u32 s3, s{sT}, {hf*4096}")
        for i in range(4): O(unc(f"buffer_load_dwordx4 v{oL}, s[{sV}:{sV+3}], s3 offen{off(i*1024)} lds"))
    O(loopwait())
    for T in range(8):
        for u in range(2): OI(f"ds_read_b64_tr_b16 {q2('a', VB[0] + T*4 + u*2)}, v{aV} offset:{u*4096 + T*32}")
        if T == 3: OI("s_waitcnt lgkmcnt(0)")
    smfma(True)
    for qb in range(4):
        b = S + qb*8
        for n in range(8): OI(f"v_exp_f32 v{b+n}, v{b+n}")
        for n in range(8): OI(f"v_add_f32 v{LS+2*qb+(n&1)}, v{LS+2*qb+(n&1)}, v{b+n}")
        for n in range(4): OI(f"v_cvt_pk_bf16_f32 v{P+4*qb+n}, v{b+2*n}, v{b+2*n+1}")
    OI("s_waitcnt lgkmcnt(0)"); OI("s_nop 1")
    for qb in range(4):
        for T in range(8): OI(f"{MF} {q4('v', acc(T, qb))}, {q4('a', VB[0] + T*4)}, {q4('v', P + 4*qb)}, {q4('v', acc(T, qb))}")
    OI(f"s_add_u32 s{sT}, s{sT}, 8192"); OI(f"s_add_u32 s{sM1}, s{sM1}, 1"); OI(f"s_cmp_lt_u32 s{sM1}, 16"); OI(f"s_cbranch_scc1 {l2}")
    OI("s_nop 7")
    for qb in range(4):
        t = MT + 2*qb
        for x in ofin_head(qb, t, False) + [f"v_rcp_f32 v{t}, v{t}"] + ofin_body(qb, t, False, None): ool.append(x if isinstance(x, Ins) else Ins(x))
    OI(f"s_sub_u32 s{sRW}, s{sRW}, {nwo*65536}"); OI(f"s_and_b32 s{sRW}, s{sRW}, 0xf0000"); OI(f"s_or_b32 s{sOWO}, s{sRW}, s{sBWO}")
    for gi in range(2):
        for n, x in enumerate(WO(gi, tag=False)):
            ool.append(x if isinstance(x, Ins) else Ins(x))
            if n == 0: OI("s_nop 0")
    OI(f"s_add_u32 s{sRW}, s{sRW}, {(nwo-2)*65536}"); OI(f"s_and_b32 s{sRW}, s{sRW}, 0xf0000"); OI(f"s_or_b32 s{sOWO}, s{sRW}, s{sBWO}")
    O(loopwait())
    OI(f"s_branch {sback}")

    sFL, sRO, sBOL, sOOL, sQX, sXB, sXF, sXD, sPB = sROT, sBX, sOX, sKR, sBW, sM0W, sBKV, sOKV, sOO
    aT = 4; aB = 7; oL2 = 10
    XR, GF, XF, PR, YF, SR = 136, 144, 160, 176, 224, 128
    e1, e2, e3 = sK, sK + 1, sK + 2
    def emit_check(items):
        for x in items:
            if isinstance(x, tuple): k(x[1]); k(x[2])
            else: k(x)
    k("v_lshl_add_u32 v16, v2, 2, v29")
    k("v_lshlrev_b32 v16, 6, v16"); k("v_lshl_add_u32 v16, v30, 4, v16"); k(f"v_add_u32 v{aT}, s{sM0O}, v16")
    k(f"v_add_u32 v{aT+1}, 0x10000, v{aT}"); k(f"v_add_u32 v{aT+2}, 0x20000, v{aT}")
    def treads(gi):
        a = wslot(gi)
        return [Ins(f"ds_read_b64_tr_b16 {q2('a', (gi*2+e)*8 + t*4 + u*2)}, v{aT + (a >> 16)} offset:{(a & 0xffff) + e*2048 + u*1024 + t*8}", tag=f"T{gi}")
                for e in range(2) for t in range(2) for u in range(2)]
    st_('tail')
    nxt = nwo
    k.wait(vm="WO4")
    for gi in range(5):
        for x in treads(gi): k(x)
    es = [f"s_lshr_b32 s{e1}, s{sKSL}, 1", f"s_lshl_b32 s{e2}, s{sRT}, 1", f"s_add_u32 s{e1}, s{e1}, s{e2}",
          f"s_and_b32 s{e2}, s{sKSL}, 1", f"s_lshl_b32 s{e2}, s{e2}, 1",
          f"s_lshl_b32 s{e3}, s{e1}, 2", f"s_add_u32 s{e3}, s{e3}, s{e2}", f"s_lshl_b32 s{e3}, s{e3}, 4",
          f"s_and_b32 s{sV}, s{sK1}, 0xffff", f"s_sub_u32 s{sV}, 0xffff, s{sV}", f"s_and_b32 s{sV+1}, s{sK2}, 0xffff", f"s_sub_u32 s{sV+1}, 0xffff, s{sV+1}",
          f"s_sub_u32 s{sV}, s{sV}, s{e3}", f"s_sub_u32 s{sV+1}, s{sV+1}, s{e3}",
          f"s_lshl_b32 s{sST}, s{e3}, 4", f"s_add_u32 s{sST}, s{sST}, {W6_STAT:#x}",
          f"s_and_b32 s{e2}, s{sBWO}, 0x3ff",
          f"s_lshl_b32 s{e3}, s{e3}, 10", f"s_add_u32 s{e3}, s{e3}, s{e2}",
          f"s_lshl_b32 s{e2}, s{e2}, 2", f"s_add_u32 s{sM1}, s{e2}, {W6_YT:#x}", f"s_add_u32 s{e2}, s{e2}, {W6_YP:#x}", f"s_add_u32 s{sV+2}, s{e2}, 4096", f"s_add_u32 s{sV+3}, s{e2}, 8192"]
    for x in es: k(x)
    for x in ["v_lshlrev_b32 v24, 10, v3", "v_lshl_add_u32 v24, v2, 4, v24", f"v_add_u32 v24, s{e3}, v24", "v_add_u32 v25, 16384, v24", "v_lshlrev_b32 v26, 4, v3",
              "v_lshrrev_b32 v13, 1, v1", "v_min_u32 v13, 2, v13", "v_lshlrev_b32 v13, 12, v13", "v_and_b32 v27, 1, v1", "v_lshl_add_u32 v13, v27, 7, v13"]: k(x)
    polly = f"buffer_load_dword v12, v13, s[{sWS}:{sWS+3}], s{sM1} offen sc1"
    k(polly, tag="PY")
    k(f"buffer_load_dword v{SR}, v26, s[{sWS}:{sWS+3}], s{sST} offen sc1", tag="E"); k(f"buffer_load_dword v{SR+1}, v26, s[{sWS}:{sWS+3}], s{sST} offen offset:256 sc1", tag="E")
    k(f"buffer_load_dwordx4 {q4('v', XR)}, v24, s[{sX}:{sX+3}], 0 offen", tag="E"); k(f"buffer_load_dwordx4 {q4('v', XR+4)}, v25, s[{sX}:{sX+3}], 0 offen", tag="E")
    k.wait(lgkm=0)
    while nxt < nwo + n1:
        for x in WO(nxt): k(x)
        nxt += 1
    if nwo > 5:
        k.wait(vm=f"WO{nwo-1}")
        for gi in range(5, nwo):
            for x in treads(gi): k(x)
    k(f"v_mov_b32 v{aB}, v{oL}"); k(f"v_add_u32 v{aB+1}, 0x10000, v{oL}"); k(f"v_add_u32 v{aB+2}, 0x20000, v{oL}"); k(f"v_add_u32 v{oL2}, 2048, v{oL}")
    k("v_and_b32 v21, 7, v1"); k("v_lshlrev_b32 v21, 7, v21")
    k(f"s_lshl_b32 s3, s{sQT}, 12"); k(f"s_lshl_b32 s{sT}, s{sH}, 7"); k(f"s_add_u32 s3, s3, s{sT}"); k(f"s_add_u32 s3, s3, {W6_OF:#x}")
    k(f"s_cmp_eq_u32 s{sWAVE}, 0"); k(f"s_cselect_b32 s3, s3, {OOB:#x}")
    k(f"v_mov_b32 v23, s{sTAG}"); k("v_mov_b32 v20, 0")
    st_('w2iss')
    k.wait(vm="OST", lgkm=0)
    st_('ost')
    k("s_barrier")
    k(f"buffer_store_dword v23, v20, s[{sWS}:{sWS+3}], s3 offen sc1")
    st_('pub')
    k(f"s_lshr_b32 s{sFL}, s{sRT}, 1"); k(f"s_lshl_b32 s{sFL}, s{sFL}, 12"); k(f"s_lshl_b32 s{sT}, s{sKSL}, 10"); k(f"s_add_u32 s{sFL}, s{sFL}, s{sT}"); k(f"s_add_u32 s{sFL}, s{sFL}, {W6_OF:#x}")
    pollo = f"buffer_load_dword v22, v21, s[{sWS}:{sWS+3}], s{sFL} offen sc1"
    ev = ["v_lshrrev_b32 v27, 1, v2", "v_lshlrev_b32 v27, 7, v27", "v_and_b32 v26, 1, v2", "v_lshl_add_u32 v27, v26, 5, v27", "v_mov_b32 v11, 64"]
    for n, sk in enumerate((sK1, sK2)):
        r = 16 + n
        ev += [f"v_mov_b32 v{r}, s{sk}", f"v_ashrrev_i32 v26, 31, v{r}", "v_not_b32 v26, v26", "v_or_b32 v26, 0x80000000, v26", f"v_xor_b32 v{r}, v{r}, v26", f"v_and_b32 v{r}, 0xffff0000, v{r}",
               f"v_mul_f32 v{r}, 0xbfb8aa3b, v{r}", f"v_exp_f32 v{r}, v{r}", f"v_add_f32 v{r}, 1.0, v{r}", f"v_rcp_f32 v{r}, v{r}", f"v_cvt_pk_bf16_f32 v{r}, v{r}, v{r}", f"v_lshlrev_b32 v{r}, 16, v{r}"]
    for b in range(2):
        ev += [f"v_add_u32 v26, {16*b}, v3", f"v_mov_b32 v31, {OOB:#x}", f"v_cmp_eq_u32 vcc, s{sV}, v26", "v_cndmask_b32 v31, v31, 0, vcc",
               f"v_cmp_eq_u32 vcc, s{sV+1}, v26", "v_cndmask_b32 v31, v31, v11, vcc", f"v_cndmask_b32 v{14+b}, v16, v17, vcc", f"v_add_u32 v{18+b}, v31, v27"]
    ex = [Wait(vm="E")]
    for b in range(2): ex += [f"v_and_b32 v{SR+2+b}, 0xffff0000, v{SR+b}", f"v_rcp_f32 v{SR+2+b}, v{SR+2+b}", f"v_lshlrev_b32 v{SR+b}, 16, v{SR+b}"]
    for i in range(8):
        a, b_, bb = GF + 2*i, GF + 2*i + 1, i >> 2
        ex += [f"v_lshlrev_b32 v{XF+2*i}, 16, v{XR+i}", f"v_and_b32 v{XF+2*i+1}, 0xffff0000, v{XR+i}",
               f"v_sub_f32 v{a}, v{XF+2*i}, v{SR+bb}", f"v_sub_f32 v{b_}, v{XF+2*i+1}, v{SR+bb}", f"v_cvt_pk_bf16_f32 v29, v{a}, v{b_}",
               f"v_lshlrev_b32 v{a}, 16, v29", f"v_and_b32 v{b_}, 0xffff0000, v29", f"v_mul_f32 v{a}, v{a}, v{SR+2+bb}", f"v_mul_f32 v{b_}, v{b_}, v{SR+2+bb}",
               f"v_cvt_pk_bf16_f32 v29, v{a}, v{b_}", f"v_lshlrev_b32 v{a}, 16, v29", f"v_and_b32 v{b_}, 0xffff0000, v29"]
    def mix(vm_items, valu_items):
        nv_ = max(1, sum(1 for x in vm_items if isinstance(x, Ins) and x.kind == "vmem")); per = (len(valu_items) + nv_ - 1) // nv_
        vi = 0
        for x in vm_items:
            k(x)
            if isinstance(x, Ins) and x.kind == "vmem":
                for y in valu_items[vi:vi+per]: k(y)
                vi += per
        for y in valu_items[vi:]: k(y)
    rest = []
    while nxt < 16:
        if nxt == pollat: rest.append(Ins(pollo, tag="POLL"))
        rest += WO(nxt); nxt += 1
    if pollat >= 16 or pollat < nwo + n1: rest.append(Ins(pollo, tag="POLL"))
    mix(rest, ev + ex)
    k(f"s_lshl_b32 s{sT}, s{sCT}, 1"); k(f"s_add_u32 s{sT}, s{sT}, s{sRT}"); k(f"s_and_b32 s{sT}, s{sT}, 7")
    k(f"s_lshl_b32 s{sRO}, s{sT}, 14"); k(f"s_add_u32 s{sRO}, s{sRO}, s{sM0O}"); k(f"s_and_b32 s{sRO}, s{sRO}, 0x1ffff")
    k(f"s_lshl_b32 s{sOW}, s{sRT}, 20"); k(f"s_lshl_b32 s{sT}, s{sKSL}, 17"); k(f"s_add_u32 s{sOW}, s{sOW}, s{sT}"); k(f"s_add_u32 s{sOW}, s{sOW}, {WS_O:#x}")
    def quarter(j):
        return [f"s_add_u32 s{sQX}, s{sKSL}, {j+1}", f"s_and_b32 s{sQX}, s{sQX}, 3", f"s_lshr_b32 s{sBOL}, s{sQX}, 1", f"s_lshl_b32 s{sBOL}, s{sBOL}, 19",
                f"s_and_b32 s{sQX}, s{sQX}, 1", f"s_lshl_b32 s{sQX}, s{sQX}, 11", f"s_add_u32 s{sBOL}, s{sBOL}, s{sQX}", f"s_add_u32 s{sBOL}, s{sBOL}, s{sOW}"]
    def cslot(c): return zslot((c + 6) % 10)
    def OC(c):
        g = (quarter(c >> 2) if c % 4 == 0 else []) + [f"s_add_u32 s{sOOL}, s{sRO}, s{sBOL}", f"s_add_u32 m0, s{sM0O}, {cslot(c)}"]
        for a in range(2):
            for b in range(2):
                g.append(Ins(f"buffer_load_dwordx4 v{(oL, oL2)[a]}, s[{sWS}:{sWS+3}], s{sOOL} offen{off(a*2048 + b*1024)} sc1 lds", tag=f"OC{c}"))
        g += [f"s_add_u32 s{sRO}, s{sRO}, 32768", f"s_and_b32 s{sRO}, s{sRO}, 0x1ffff"]
        return g
    emit_check(check_items("PY", polly, [f"v_cmp_ne_u32 vcc, s{sTAG}, v12"]))
    noy = k.label("noy")
    k("v_min_u32 v26, v18, v19"); k(f"v_cmp_gt_u32 vcc, {OOB:#x}, v26")
    k(f"s_cbranch_vccz {noy}")
    for so, base in ((e2, YF), (sV+2, PR), (sV+3, PR+16)):
        for b in range(2):
            for h in range(2): k(unc(f"buffer_load_dwordx4 {q4('v', base + b*8 + h*4)}, v{18+b}, s[{sWS}:{sWS+3}], s{so} offen{off(h*16)} sc1"))
    k(loopwait())
    for i in range(16): k(f"v_add_f32 v{YF+i}, v{YF+i}, v{PR+i}"); k(f"v_add_f32 v{YF+i}, v{YF+i}, v{PR+16+i}")
    for i in range(8):
        a, b, t, u = GF + 2*i, GF + 2*i + 1, YF + 2*i, YF + 2*i + 1
        rs = 14 + (i >> 2)
        for x in [f"v_cvt_pk_bf16_f32 v29, v{t}, v{u}", f"v_lshlrev_b32 v{t}, 16, v29", f"v_and_b32 v{u}, 0xffff0000, v29",
                  f"v_mul_f32 v{t}, v{t}, v{rs}", f"v_mul_f32 v{u}, v{u}, v{rs}", f"v_cvt_pk_bf16_f32 v29, v{t}, v{u}", f"v_lshlrev_b32 v{t}, 16, v29", f"v_and_b32 v{u}, 0xffff0000, v29",
                  f"v_add_f32 v{a}, v{a}, v{t}", f"v_add_f32 v{b}, v{b}, v{u}", f"v_cvt_pk_bf16_f32 v29, v{a}, v{b}", f"v_lshlrev_b32 v{a}, 16, v29", f"v_and_b32 v{b}, 0xffff0000, v29"]: k(x)
    k(f"{noy}:")
    st_('w3iss')
    emit_check(check_items("POLL", pollo, [f"v_cmp_ne_u32 vcc, s{sTAG}, v22"]))
    st_('go')
    if nwo < 10:
        k.wait(vm="WO9")
        for gi in range(nwo, 10):
            for x in treads(gi): k(x)
        k.wait(lgkm=0)
    for c in range(4):
        for x in OC(c): k(x)
    k.wait(vm="WO15")
    for gi in range(10, 16):
        for x in treads(gi): k(x)
    st_('oiss')
    ACO = 32; BF = 64; NB = 12; XS = 112
    def bread(f):
        c, e, b = f >> 4, (f >> 1) & 7, f & 1
        a = cslot(c) + (e >> 1) * 8192 + (e & 1) * 2048 + b * 1024
        return Ins(f"ds_read_b128 {q4('v', BF + (f % NB)*4)}, v{aB + (a >> 16)} offset:{a & 0xffff}", tag=f"B{f}")
    k.wait(vm="OC0", lgkm=0); k("s_barrier")
    st_('o0')
    AH = 8
    for f in range(AH): k(bread(f))
    k.wait(lgkm="B1")
    po = Plan(k)
    for f in range(256):
        j = f >> 6; kk = (f >> 1) & 31; b = f & 1
        for t in range(2):
            a = ACO + (j & 1) * 16 + (b*2 + t) * 4
            po.mfma(f"{MF} {q4('v', a)}, {q4('a', kk*8 + t*4)}, {q4('v', BF + (f % NB)*4)}, {q4('v', a) if kk else '0'}")
    cover = {1: 1, 2: 3, 4: 5, 6: 7, 8: 9, 10: 11, 12: 13, 14: 15}
    bgap = {}
    for f in range(AH, 256):
        gp = 2 * (f - AH)
        if f % 16 == 0 and (f >> 4) in cover:
            c = f >> 4
            po.put(gp - 2, Wait(vm=f"OC{cover[c]}")); bgap[c] = gp
            po.put(gp, "s_barrier")
        po.put(gp, bread(f))
    for f in range(2, 256, 2): po.put(2 * f - 1, Wait(lgkm=f"B{f+1}"))
    cur = 0
    for c in range(4, 16):
        lo = cur + 1
        if c >= 10: lo = max(lo, min(g for g in bgap.values() if g >= 32 * (c - 9)) + 1)
        cur = po.stream(OC(c), lo, lo + 40, win=3)
    c0 = po.stream([f"s_lshl_b32 s{sXB}, s{sRT}, 2", f"s_add_u32 s{sXB}, s{sXB}, s{sCT}", f"s_lshl_b32 s{sXB}, s{sXB}, 2",
                    f"s_add_u32 s{sFL}, s{sXB}, s{sKSL}", f"s_lshl_b32 s{sPB}, s{sFL}, 16", f"s_add_u32 s{sPB}, s{sPB}, s{sM0K}", f"s_add_u32 s{sPB}, s{sPB}, {WS_XB:#x}",
                    f"s_lshl_b32 s{sFL}, s{sFL}, 9", f"s_lshl_b32 s{e1}, s{sWAVE}, 7", f"s_add_u32 s{sFL}, s{sFL}, s{e1}", f"s_add_u32 s{sFL}, s{sFL}, {W6_XF:#x}",
                    f"s_add_u32 s{e1}, s{sPB}, 16384", f"s_add_u32 s{e2}, s{sPB}, 32768", f"s_mov_b32 s{e3}, 0",
                    f"s_mov_b32 s{sTS}, s{pOUT}", f"s_mov_b32 s{sTS+1}, s{pOUT+1}", f"s_mov_b32 s{sTS+2}, {SZ['out']:#x}", f"s_mov_b32 s{sTS+3}, 0x00020000"], 0, 90)
    NX = 2 if xbf else 4
    for j in range(3):
        g0 = (j + 1) * 128
        its = [f"s_add_u32 s{sT}, s{sKSL}, {j+1}", f"s_and_b32 s{sT}, s{sT}, 3", f"s_add_u32 s{sT}, s{sT}, s{sXB}",
               f"s_lshl_b32 s{sXD}, s{sT}, 16", f"s_add_u32 s{sXD}, s{sXD}, s{sM0K}", f"s_add_u32 s{sXD}, s{sXD}, {WS_XB + j*16384:#x}"]
        po.stream(its, g0 - 24, g0)
        ab = ACO + (j & 1) * 16
        if xbf:
            c = po.stream([f"v_cvt_pk_bf16_f32 v{XS+n}, v{ab+2*n}, v{ab+2*n+1}" for n in range(8)], g0 + 3, g0 + 12)
            sts = [Ins(f"buffer_store_dwordx4 {q4('v', XS + n*4)}, v{oL}, s[{sWS}:{sWS+3}], s{sXD} offen{off(n*1024)} sc1", tag=f"XS{j}") for n in range(2)]
            c = po.stream(sts, c + 1, c + (8 if j == 2 else 40), win=2, spread=True)
        else:
            sts = [Ins(f"buffer_store_dwordx4 {q4('v', ab + n*4)}, v{oL}, s[{sWS}:{sWS+3}], s{sXD} offen{off(n*1024)} sc1", tag=f"XS{j}") for n in range(4)]
            c = po.stream(sts, g0 + 5, g0 + (24 if j == 2 else 70), win=2, spread=True)
        po.stream([f"s_lshl_b32 s{sXF}, s{sT}, 9", f"s_lshr_b32 s{sT}, s{sM0K}, 5", f"s_add_u32 s{sXF}, s{sXF}, s{sT}", f"s_add_u32 s{sXF}, s{sXF}, {W6_XF + j*4:#x}"], g0 + 30, g0 + 60)
        xd = xdelay if j == 2 else 85
        xfl = po.stream([Wait(vm=f"XS{j}"), Ins(f"buffer_store_dword v23, v20, s[{sWS}:{sWS+3}], s{sXF} offen sc1")], c + xd, c + xd + 8, win=2)
    gops = ["v_and_b32 v21, 3, v1", "v_min_u32 v21, 2, v21", "v_lshlrev_b32 v21, 2, v21"]
    for i in range(8):
        a, b, t, u = GF + 2*i, GF + 2*i + 1, YF + 2*i, YF + 2*i + 1
        gops += [f"v_mul_f32 v{t}, 0xbfb8aa3b, v{a}", f"v_mul_f32 v{u}, 0xbfb8aa3b, v{b}", f"v_exp_f32 v{t}, v{t}", f"v_exp_f32 v{u}, v{u}",
                 f"v_add_f32 v{t}, 1.0, v{t}", f"v_add_f32 v{u}, 1.0, v{u}", f"v_rcp_f32 v{t}, v{t}", f"v_rcp_f32 v{u}, v{u}",
                 f"v_mul_f32 v{a}, v{a}, v{t}", f"v_mul_f32 v{b}, v{b}, v{u}", f"v_cvt_pk_bf16_f32 v29, v{a}, v{b}",
                 f"v_lshlrev_b32 v{a}, 16, v29", f"v_and_b32 v{b}, 0xffff0000, v29"]
    po.stream(gops, 270, 380)
    pollx = f"buffer_load_dword v22, v21, s[{sWS}:{sWS+3}], s{sFL} offen sc1"
    def ploads(js, counted):
        o = []
        for n in range(NX):
            for j in js:
                t = f"buffer_load_dwordx4 {q4('v', PR + (n*3+j)*4)}, v{oL}, s[{sWS}:{sWS+3}], s{(sPB, e1, e2)[j]} offen{off(n*1024)} sc1"
                o.append(Ins(t, tag=f"P{n}") if counted else unc(t))
        return o
    if early_p:
        po.put(xfl - 36, Ins(f"buffer_load_dword v30, v21, s[{sWS}:{sWS+3}], s{sFL} offen sc1", tag="XQ1"))
        sk = k.label("skipp")
        g = (xfl + 2) & ~1
        po.put(g, Wait(vm="XQ1")); po.put(g, f"v_cmp_ne_u32 s[{sC2}:{sC2+1}], s{sTAG}, v30")
        po.put(g + 2, f"s_and_b32 s{sC2}, s{sC2}, 0x33333333"); po.put(g + 2, f"s_cbranch_scc1 {sk}", cls="s")
        for x in ploads((0, 1), False): po.put(g + 2, x, cls="s")
        po.put(g + 2, f"s_mov_b32 s{e3}, 1", cls="s"); po.put(g + 2, f"{sk}:", cls="s")
    po.put(511 - xpoll, Ins(pollx, tag="XPOLL"))
    for nm, gp in (("o4", 64), ("o8", 128), ("o16", 256), ("o24", 384)):
        if nm in prof:
            for x in stamp_ins(prof.index(nm)): po.put(gp, x)
    ov = po.emit()
    print("[k7] phase O overflow", ov, "tail", po.load(511))
    st_('oend')
    emit_check(check_items("XPOLL", pollx, [f"v_cmp_ne_u32 vcc, s{sTAG}, v22"]))
    st_('xgo')
    hv = k.label("havep")
    k(f"s_cmp_lg_u32 s{e3}, 0"); k(f"s_cbranch_scc1 {hv}")
    for x in ploads((0, 1), False): k(x)
    k(f"{hv}:")
    for x in ploads((2,), True): k(x)
    OUTR = 128
    for b in range(2):
        if xbf:
            k.wait(vm=f"P{b}")
            a = ACO + 16 + b*8
            for j in range(3):
                r = PR + (b*3 + j)*4
                for m_ in range(4):
                    k(f"v_lshlrev_b32 v29, 16, v{r+m_}"); k(f"v_and_b32 v30, 0xffff0000, v{r+m_}")
                    k(f"v_add_f32 v{a+2*m_}, v{a+2*m_}, v29"); k(f"v_add_f32 v{a+2*m_+1}, v{a+2*m_+1}, v30")
        for t in range(2):
            n = b*2 + t
            a = ACO + 16 + n*4
            if not xbf:
                k.wait(vm=f"P{n}")
                r = PR + n*12
                for m_ in range(4): k(f"v_add_f32 v{a+m_}, v{a+m_}, v{r+m_}"); k(f"v_add_f32 v{r+4+m_}, v{r+4+m_}, v{r+8+m_}")
                for m_ in range(4): k(f"v_add_f32 v{a+m_}, v{a+m_}, v{r+4+m_}")
            for h in range(2):
                e = b*8 + t*4 + h*2
                x0, x1 = a + 2*h, a + 2*h + 1
                k(f"v_cvt_pk_bf16_f32 v29, v{x0}, v{x1}")
                k(f"v_lshlrev_b32 v{x0}, 16, v29"); k(f"v_and_b32 v{x1}, 0xffff0000, v29")
                k(f"v_mul_f32 v{x0}, v{x0}, v{GF+e}"); k(f"v_mul_f32 v{x1}, v{x1}, v{GF+e+1}")
                k(f"v_cvt_pk_bf16_f32 v29, v{x0}, v{x1}")
                k(f"v_lshlrev_b32 v{x0}, 16, v29"); k(f"v_and_b32 v{x1}, 0xffff0000, v29")
                k(f"v_add_f32 v{x0}, v{x0}, v{XF+e}"); k(f"v_add_f32 v{x1}, v{x1}, v{XF+e+1}")
                k(f"v_cvt_pk_bf16_f32 v{OUTR + b*4 + t*2 + h}, v{x0}, v{x1}")
        k(f"buffer_store_dwordx4 {q4('v', OUTR + b*4)}, v{24+b}, s[{sTS}:{sTS+3}], 0 offen")
    if prof:
        k("s_waitcnt vmcnt(0)"); stamp(k, 7)
        if dbgout:
            k(f"s_load_dwordx2 s[{sDBG}:{sDBG+1}], s[0:1], {KA['dbg']}")
            k("s_waitcnt lgkmcnt(0)")
            k(f"s_mov_b32 s{sDBG+2}, 256"); k(f"s_mov_b32 s{sDBG+3}, 0x00020000")
            k("v_mov_b32 v1, 0"); k("s_mov_b64 exec, 1")
            k(f"s_cmp_eq_u32 s{sWAVE}, 0"); k("s_cselect_b32 s3, 0, 0x1000")
            for i in range(8):
                k(f"s_sub_u32 s{sT}, s{SB+4*i}, s{sTAG}"); k(f"s_add_u32 s{sT}, s{sT}, 1000"); k(f"v_mov_b32 v2, s{sT}")
                k(f"buffer_atomic_umax v2, v1, s[{sDBG}:{sDBG+3}], s3 offen offset:{4+4*i}"); k("s_nop 1")
        else: stamp_dump(k, 8, sWS, sWAVE, 0)
    k(f"{end}:")
    k("s_endpgm")
    k("s_waitcnt vmcnt(0) lgkmcnt(0)")
    for x in ool: k(x)
    return k, 512, 256
```

```python
from build7 import build
build("t7.s"); build("t7s.s", force_slow=True)
build("v7a.s", prof=["start", "q1", "q2", "q6", "qend", "a6", "aend"])
build("v7b.s", prof=["start", "aend", "w2iss", "ost", "w3iss", "go", "o0"])
build("v7c.s", prof=["start", "o0", "o8", "o16", "o24", "oend", "xgo"])
build("v7d.s", prof=["start", "aend", "w2iss", "ost", "w3iss", "go", "o0"], nwo=7)
build("v7e.s", prof=["start", "aend", "w2iss", "ost", "w3iss", "go", "o0"], n1=0, pollat=13)
build("v7f.s", prof=["start", "aend", "w2iss", "ost", "w3iss", "go", "o0"], amap=4)
```

```python
import sys
from asmlib import *
from common import *
import k9
def build(path, **kw):
    kn = NAME + "_kernel"
    k, nfv, accum = k9.gen_k9(kn, **kw)
    hdr = open(f"cdna_kernels/{NAME}.s.ref").read().split("; Override launch")[0]
    out = [hdr.rstrip("\n"), "; @launch grid=(256,1,1) block=(256,1,1) lds=163840", '.amdgcn_target "amdgcn-amd-amdhsa--gfx950"', ".text"]
    fix_hazards(k); k.resolve()
    errs = k.check()
    for e in errs[:8]: print(e)
    print(f"[{path.split('/')[-1]}] {len(k.ins)} instrs, {len(errs)} errors, nops={sum(1 for i in k.ins if i.op=='s_nop')}")
    out.append(kernel_text(k, nfv, accum)); out.append('.section .rodata,"a"'); out.append(desc_text(k.name, nfv, accum))
    txt = "\n".join(out).replace(kn + "_", "L_")
    open(path, "w").write(txt)
    return not errs
if __name__ == "__main__":
    build("t9.s")
    build("t9s.s", force_slow=True)
    build("v9a.s", prof=["start", "ln", "q1", "qend", "aend", "go", "oend"])
```

```python
from asmlib import *
from common import *
import struct

MF = "v_mfma_f32_16x16x32_bf16"
def q4(f, r): return f"{f}[{r}:{r+3}]"
def q2(f, r): return f"{f}[{r}:{r+1}]"
def off(o): return f" offset:{o}" if o else ""

aW, aK, aV, oK, oV, oW, oL = 4, 8, 12, 20, 24, 26, 28
AF = 32; S = 32; P = 64; NM = 80; LS = 96; CS0 = 96; CSX = 104; STAT = 112; aX = 12; oX = 120; oWO = 120; ONES = 124; ACC = 128
MT = 104
QF = 0
KB = [64, 96, 192]; VB = [128, 160, 224]
MA = 192
def acc(T, qb): return ACC + (T * 4 + qb) * 4
sX, sWS, sWQ, sK, sV, sWO = 4, 8, 12, 16, 20, 24
pWG, pWU, pWD, pOUT = 28, 30, 32, 34
sDBG = 36
sBAD = 40; sCMP = 42
(sWAVE, sH, sQT, sKSL, sRT, sCT, sM0K, sM0O, sROT, sBW, sOW, sBX, sOX, sM0W, sKR, sT, sBKV, sOKV, sRW, sBWO, sOWO, sOO, sST, sK1, sK2, sM1) = range(44, 70)
sTAG = 43
sC2 = 38
sTS = sWQ
def f32(x): return struct.unpack("<I", struct.pack("<f", x))[0]
QSCALE = f32(1.4426950408889634 * 128 ** -0.5)
OOB = 0x40000000
WREG = [2, 3, 4, 0, 1]
def zslot(z): return WREG[z >> 1] * 32768 + (z & 1) * 4096
def wslot(g): return zslot(g % 10)
R4 = 131072
XREG = [3, 4, 2]
DPP4 = ("quad_perm:[1,0,3,2] row_mask:0xf bank_mask:0xf", "quad_perm:[2,3,0,1] row_mask:0xf bank_mask:0xf",
        "row_half_mirror row_mask:0xf bank_mask:0xf", "row_mirror row_mask:0xf bank_mask:0xf")

def gen_k9(name, prof=False, tailq=3, codepf=1, pk=True, kvpf=7, n1=0, pollat=14, xrot=0, opre=6, xdelay=50, xpoll=20, force_slow=False, early_p=True, dbgout=False, ntr=9, kv0=8, xd01=30, amap=8, touch=None, w1sp=True, nt='', exp=(), nwo=10, xbf=True, omap=0, tstart=0.5, lwfirst=False, vpace=4, qrot=0, crot=2, krot=0, kv1=9, orot=1):
    k = Kern(name)
    if not prof: prof = []
    LO = '' if 'localo' in exp else ' sc1'; LX = '' if 'localx' in exp else ' sc1'
    LL = '' if 'plainld' in exp else ' sc0' if 'sc0ld' in exp else ' nt' if 'ntld' in exp else ' sc1'
    def NT(c): return ' nt' if c in nt else ''
    def st_(nm):
        if nm in prof: stamp(k, prof.index(nm))
    end = k.label("end")
    ool = []
    spin_sites = []
    def unc(text):
        i = Ins(text); i.kind = "vmem_uncounted"; return i
    def loopwait():
        i = Ins("s_waitcnt vmcnt(0)"); i.op = "s_waitcnt_loop"; return i
    def check_items(tag, load_text, cmp_ops):
        sp = k.label("spin"); lp = k.label("splp"); bk = k.label("back")
        ool.extend([Ins(f"{sp}:"), Ins(f"s_mov_b32 s{sCMP}, 0"), Ins(f"{lp}:")] + [unc(t) for t in ([load_text] if isinstance(load_text, str) else load_text)] + [loopwait()] + [Ins(c) for c in cmp_ops] +
                   [Ins("s_nop 1"), Ins(f"s_cbranch_vccz {bk}"), Ins(f"s_add_u32 s{sCMP}, s{sCMP}, 1"), Ins(f"s_cmp_lt_u32 s{sCMP}, 0x40000"), Ins(f"s_cbranch_scc1 {lp}"), Ins(f"s_branch {bk}")])
        if "spincnt" in exp:
            site = len(spin_sites); spin_sites.append(tag)
            idx = [n for n, x in enumerate(ool) if x.text == f"{lp}:"][0]
            ool[idx+1:idx+1] = [Ins("s_mov_b64 s[98:99], exec"), Ins("s_mov_b64 exec, 1"), Ins("v_accvgpr_write_b32 a255, v0") if False else Ins("s_nop 0"),
                                Ins(f"v_mov_b32 v0, {4 + 4*site}"), unc(f"global_atomic_add v0, v0, s[{sDBG}:{sDBG+1}]"), Ins("s_mov_b64 exec, s[98:99]")]
        return [Wait(vm=tag)] + list(cmp_ops) + [("br", f"s_cbranch_vccnz {sp}", f"{bk}:")]
    def pstream(pl, items, lo, hi, **kw):
        cur = lo; buf = []
        def flush():
            nonlocal cur, buf
            if buf: cur = pl.stream(buf, cur, hi, **kw); buf = []
        for x in items:
            if isinstance(x, tuple):
                flush()
                cur += 1
                while pl._g(cur)["s"]: cur += 1
                pl.put(cur, x[1]); pl.put(cur, x[2], cls="s")
            else: buf.append(x)
        flush()
        return cur

    k("s_cmp_ge_u32 s2, 256"); k(f"s_cbranch_scc1 {end}")
    if "badmap" in exp:
        k("s_lshr_b32 s3, s2, 5"); k("s_and_b32 s2, s2, 31"); k("s_lshl_b32 s2, s2, 3"); k("s_or_b32 s2, s2, s3")
    st_('start')
    k(f"s_memrealtime s[{sK1 & ~1}:{(sK1 & ~1) + 1}]")
    k(f"s_load_dwordx2 s[{sX}:{sX+1}], s[0:1], {KA['x']}")
    k(f"s_load_dwordx2 s[{sWQ}:{sWQ+1}], s[0:1], {KA['wq']}")
    k(f"s_load_dwordx2 s[{sBAD}:{sBAD+1}], s[0:1], {KA['wr']}")
    k(f"s_load_dwordx2 s[{sWS}:{sWS+1}], s[0:1], {KA['ws']}")
    k(f"s_load_dwordx2 s[{sK}:{sK+1}], s[0:1], {KA['k']}")
    k(f"s_load_dwordx2 s[{sV}:{sV+1}], s[0:1], {KA['v']}")
    k(f"s_load_dwordx2 s[{sWO}:{sWO+1}], s[0:1], {KA['wo']}")
    k(f"s_load_dwordx8 s[{pWG}:{pWG+7}], s[0:1], {KA['wg']}")
    k(f"s_load_dwordx2 s[{sDBG}:{sDBG+1}], s[0:1], {KA['dbg']}")
    k("v_and_b32 v1, 63, v0"); k("v_lshrrev_b32 v2, 6, v0")
    k("s_and_b32 s3, s2, 7"); k(f"s_lshr_b32 s{sT}, s2, 3")
    k(f"v_readfirstlane_b32 s{sWAVE}, v2")
    k(f"s_lshr_b32 s{sKSL}, s3, 1"); k(f"s_and_b32 s{sRT}, s3, 1"); k(f"s_lshl_b32 s{sRT}, s{sRT}, 3"); k(f"s_and_b32 s{sM1}, s{sT}, 7"); k(f"s_add_u32 s{sRT}, s{sRT}, s{sM1}")
    k(f"s_lshr_b32 s{sCT}, s{sT}, 3")
    if amap == 1:
        k(f"s_mov_b32 s{sQT}, s3"); k(f"s_mov_b32 s{sH}, s{sT}"); k(f"s_mov_b32 s{sKR}, s3")
        k(f"s_add_u32 s{sROT}, s3, s{sM1}"); k(f"s_lshl_b32 s{sROT}, s{sROT}, 1")
    elif amap == 2:
        k(f"s_lshr_b32 s{sQT}, s3, 1"); k(f"s_lshl_b32 s{sQT}, s{sQT}, 1"); k(f"s_lshr_b32 s{sH}, s{sT}, 4"); k(f"s_add_u32 s{sQT}, s{sQT}, s{sH}")
        k("s_and_b32 s3, s3, 1"); k("s_lshl_b32 s3, s3, 4"); k(f"s_and_b32 s{sH}, s{sT}, 15"); k(f"s_add_u32 s{sH}, s{sH}, s3")
        k(f"s_lshr_b32 s3, s{sQT}, 1"); k(f"s_and_b32 s{sKR}, s{sQT}, 1"); k(f"s_lshl_b32 s{sKR}, s{sKR}, 2"); k(f"s_add_u32 s{sKR}, s{sKR}, s3")
        k(f"s_add_u32 s{sROT}, s{sKR}, s{sM1}"); k(f"s_lshl_b32 s{sROT}, s{sROT}, 1")
    elif amap == 8:
        k("s_lshl_b32 s3, s3, 2"); k(f"s_and_b32 s{sM1}, s{sT}, 3"); k(f"s_add_u32 s{sH}, s3, s{sM1}")
        k(f"s_lshr_b32 s{sQT}, s{sT}, 2"); k(f"s_mul_i32 s{sKR}, s{sQT}, {krot}"); k(f"s_and_b32 s{sKR}, s{sKR}, 7")
        k(f"s_mul_i32 s{sROT}, s{sQT}, {qrot}"); k(f"s_mul_i32 s3, s{sM1}, {xrot}"); k(f"s_add_u32 s{sROT}, s{sROT}, s3")
        k("s_and_b32 s3, s2, 7"); k(f"s_mul_i32 s3, s3, {crot}"); k(f"s_add_u32 s{sROT}, s{sROT}, s3")
    else:
        k(f"s_mov_b32 s{sH}, s{sKSL}"); k(f"s_lshl_b32 s{sH}, s{sH}, 3"); k(f"s_add_u32 s{sH}, s{sH}, s{sM1}")
        k("s_and_b32 s3, s3, 1"); k(f"s_lshl_b32 s{sQT}, s3, 2"); k(f"s_add_u32 s{sQT}, s{sQT}, s{sCT}")
        k(f"s_lshl_b32 s{sKR}, s{sCT}, 1"); k(f"s_add_u32 s{sKR}, s{sKR}, s3")
        k(f"s_add_u32 s{sROT}, s{sKR}, s{sM1}"); k(f"s_lshl_b32 s{sROT}, s{sROT}, 1")
    if amap != 8 and norot:
        k("s_and_b32 s3, s2, 7"); k(f"s_mul_i32 s{sROT}, s3, {crot}"); k(f"s_mul_i32 s{sKR}, s3, {krot}"); k(f"s_and_b32 s{sKR}, s{sKR}, 7")
    if omap == 1:
        k("s_and_b32 s3, s2, 7"); k(f"s_lshl_b32 s{sRT}, s3, 1"); k(f"s_and_b32 s3, s{sT}, 1"); k(f"s_add_u32 s{sRT}, s{sRT}, s3")
        k(f"s_lshr_b32 s{sCT}, s{sT}, 1"); k(f"s_and_b32 s{sCT}, s{sCT}, 3"); k(f"s_lshr_b32 s{sKSL}, s{sT}, 3")
    for d, sz in ((sX, SZ['x']), (sWQ, SZ['wq']), (sWS, SZ['ws'])):
        k(f"s_mov_b32 s{d+2}, {sz:#x}"); k(f"s_mov_b32 s{d+3}, 0x00020000")
    k("v_lshrrev_b32 v2, 4, v1")
    k("v_and_b32 v3, 15, v1")
    k(f"v_lshlrev_b32 v{oL}, 4, v1")
    L = ACC
    k(f"s_lshl_b32 s3, s{sQT}, 8"); k(f"s_lshl_b32 s{sT}, s{sH}, 3"); k(f"s_add_u32 s3, s3, s{sT}"); k(f"s_lshl_b32 s{sT}, s{sWAVE}, 1"); k(f"s_add_u32 s3, s3, s{sT}")
    k(f"v_lshrrev_b32 v{L}, 5, v1"); k(f"v_add_u32 v{L}, s3, v{L}")
    k(f"v_and_b32 v{L+1}, 31, v1")
    k(f"v_lshlrev_b32 v{L+2}, 4, v{L+1}")
    k(f"v_lshl_add_u32 v{L+3}, v{L}, 10, v{L+2}")
    k("v_lshlrev_b32 v29, 2, v2"); k("v_xor_b32 v29, v29, v3"); k("v_lshlrev_b32 v29, 4, v29")
    k(f"v_lshl_add_u32 v{oW}, v2, 13, v29"); k(f"v_add_u32 v{oW+1}, {4*8192-1024}, v{oW}")
    k("v_and_b32 v29, 7, v1"); k("v_xor_b32 v29, v29, v2"); k("v_lshrrev_b32 v30, 3, v1"); k("v_lshlrev_b32 v30, 10, v30")
    k(f"v_lshl_add_u32 v{oX}, v29, 4, v30"); k("v_xor_b32 v29, 4, v29"); k(f"v_lshl_add_u32 v{oX+1}, v29, 4, v30"); k(f"v_add_u32 v{oX+1}, 7168, v{oX+1}")
    k(f"v_add_u32 v{oX+2}, {2*7168}, v{oX}"); k(f"v_add_u32 v{oX+3}, {2*7168}, v{oX+1}")
    k(f"s_lshl_b32 s{sBW}, s{sH}, 8"); k(f"s_lshl_b32 s3, s{sWAVE}, 16"); k(f"s_add_u32 s{sBW}, s{sBW}, s3")
    k(f"s_lshl_b32 s{sBX}, s{sQT}, 18"); k(f"s_add_u32 s{sBX}, s{sBX}, s3")
    k(f"s_lshl_b32 s{sM0W}, s{sWAVE}, 11"); k(f"s_lshl_b32 s{sM0K}, s{sWAVE}, 12"); k(f"s_lshl_b32 s{sM0O}, s{sWAVE}, 13")
    k("s_waitcnt lgkmcnt(0)")
    st_('karg')

    def D(ks):
        return [f"s_add_u32 s{sT}, s{sROT}, {ks}", f"s_and_b32 s{sT}, s{sT}, 15", f"s_lshl_b32 s{sOW}, s{sT}, 18", f"s_add_u32 s{sOW}, s{sOW}, s{sBW}",
                f"s_add_u32 m0, s{sM0W}, {(ks % 8)*8192}",
                Ins(f"buffer_load_dwordx4 v{oW}, s[{sWQ}:{sWQ+3}], s{sOW} offen{NT('q')} lds", tag=f"D{ks}"),
                Ins(f"buffer_load_dwordx4 v{oW+1}, s[{sWQ}:{sWQ+3}], s{sOW} offen offset:1024{NT('q')} lds", tag=f"D{ks}")]
    def XP(p):
        g = [f"s_add_u32 s{sT}, s{sROT}, {2*p}", f"s_and_b32 s{sT}, s{sT}, 15", f"s_lshl_b32 s{sOX}, s{sT}, 6", f"s_add_u32 s{sOX}, s{sOX}, s{sBX}"]
        for hf in range(2):
            if hf: g.append(f"s_add_u32 s{sOX}, s{sOX}, 32768")
            g.append(f"s_add_u32 m0, s{sM0O}, {XREG[p % 3]*32768 + hf*4096}")
            for i in range(4):
                g.append(Ins(f"buffer_load_dwordx4 v{oX+i}, s[{sX}:{sX+3}], s{sOX} offen{off(i*1024)}{NT('x')} lds", tag=f"XP{p}"))
        return g
    def XR(p):
        return [Ins(f"ds_read_b128 {q4('a', ((2*p+ksl)*4+qb)*4)}, v{aX + ksl + (2 if XREG[p % 3] == 4 else 0)} offset:{(XREG[p % 3] & 1)*32768 + qb*2048}", tag=f"XR{p}") for ksl in range(2) for qb in range(4)]
    def KV(j):
        base = ((j + 2) % 4) * 32768
        g = [f"s_add_u32 s{sT}, s{sKR}, {j}", f"s_and_b32 s{sT}, s{sT}, 7", f"s_lshl_b32 s{sOKV}, s{sT}, 14", f"s_add_u32 s{sOKV}, s{sOKV}, s{sBKV}",
             f"s_add_u32 m0, s{sM0O}, {base}"]
        g += [Ins(f"buffer_load_dwordx4 v{oK+i}, s[{sK}:{sK+3}], s{sOKV} offen{off(i*1024)}{NT('k')} lds", tag=f"KV{j}") for i in range(4)]
        g += [f"s_add_u32 m0, s{sM0O}, {base+4096}"]
        g += [Ins(f"buffer_load_dwordx4 v{oV+(i&1)}, s[{sV}:{sV+3}], s{sOKV} offen{off(i*1024)}{NT('k')} lds", tag=f"KV{j}") for i in range(4)]
        return g
    def WO(gi, tag=True):
        g = [f"s_add_u32 m0, s{sM0O}, {wslot(gi)}"]
        for n in range(4):
            t = f"buffer_load_dwordx4 v{oWO+n}, s[{sWO}:{sWO+3}], s{sOWO} offen{off(n*1024)}{NT('o')} lds"
            g.append(Ins(t, tag=f"WO{gi}") if tag else unc(t))
        g += [f"s_add_u32 s{sRW}, s{sRW}, 32768", f"s_and_b32 s{sRW}, s{sRW}, 0xf8000", f"s_or_b32 s{sOWO}, s{sRW}, s{sBWO}"]
        return g

    XL, WL = L + 8, L + 16
    FT = CSX
    k(f"buffer_load_dwordx4 {q4('v', XL)}, v{L+3}, s[{sX}:{sX+3}], 0 offen", tag="LX")
    k(f"buffer_load_dwordx4 {q4('v', XL+4)}, v{L+3}, s[{sX}:{sX+3}], 0 offen offset:512", tag="LX")
    k(f"s_mov_b32 s{sDBG+2}, 256"); k(f"s_mov_b32 s{sDBG+3}, 0x00020000")
    k(f"s_or_b32 s{sTAG}, s{sK1 & ~1}, 1"); k(f"v_mov_b32 v{L+24}, s{sTAG}"); k(f"v_mov_b32 v{FT+6}, 0")
    k(f"s_or_b32 s3, s2, s{sWAVE}"); k("s_cmp_eq_u32 s3, 0"); k("s_cselect_b32 s3, 0, 0x1000")
    k(f"buffer_store_dword v{L+24}, v{FT+6}, s[{sDBG}:{sDBG+3}], s3 offen sc1")
    lw = [Ins(f"global_load_dwordx4 {q4('v', WL)}, v{L+2}, s[{sBAD}:{sBAD+1}]", tag="LW"), Ins(f"global_load_dwordx4 {q4('v', WL+4)}, v{L+2}, s[{sBAD}:{sBAD+1}] offset:512", tag="LW")]
    if lwfirst:
        for x in lw: k(x)
        lw = []
    st_('lxiss')
    for x in D(0) + XP(0) + D(1): k(x)
    st_('d1iss')
    k("v_bfe_u32 v29, v1, 2, 2")
    k("v_and_b32 v30, 3, v1")
    k("v_lshl_add_u32 v31, v2, 3, v29"); k("v_lshlrev_b32 v31, 8, v31"); k("v_lshl_add_u32 v31, v30, 4, v31")
    for i in range(4):
        k(f"s_add_u32 s3, s{sWAVE}, {i}"); k("s_and_b32 s3, s3, 3")
        k(f"v_xor_b32 v{aW+i}, s3, v29"); k(f"v_lshl_add_u32 v{aW+i}, v{aW+i}, 6, v31")
    k("v_lshrrev_b32 v31, 1, v3"); k("v_xor_b32 v31, v31, v2")
    k(f"v_lshlrev_b32 v{aX+1}, 7, v3"); k(f"v_add_u32 v{aX+1}, s{sM0O}, v{aX+1}"); k(f"v_add_u32 v{aX+1}, 0x10000, v{aX+1}")
    k(f"v_lshl_add_u32 v{aX}, v31, 4, v{aX+1}"); k("v_xor_b32 v31, 4, v31"); k(f"v_lshl_add_u32 v{aX+1}, v31, 4, v{aX+1}")
    k(f"v_add_u32 v{aX+2}, 0x10000, v{aX}"); k(f"v_add_u32 v{aX+3}, 0x10000, v{aX+1}")
    for i in range(4): k(f"v_mov_b32 v{ONES+i}, 0x3f803f80")
    A0, A3 = L + 4, L + 7
    k(f"v_lshlrev_b32 v{FT+5}, 4, v{L}"); k(f"v_lshlrev_b32 v{FT+4}, 3, v{L}"); k(f"v_sub_u32 v{A3}, 0xffff, v{L}")
    cpf = []
    if codepf:
        pcl = k.label("pc")
        pcp = sK2
        assert pcp % 2 == 0
        k(f"s_getpc_b64 s[{pcp}:{pcp+1}]"); k(f"{pcl}:")
        k(f"s_lshr_b32 s3, s2, 3"); k(f"s_lshl_b32 s3, s3, 2"); k(f"s_add_u32 s3, s3, s{sWAVE}"); k("s_lshl_b32 s3, s3, 9")
        k(f"s_min_u32 s3, s3, {end}-{pcl}-512")
        k(f"v_lshl_add_u32 v{L+5}, v1, 3, s3")
        cpf = [Ins(f"global_load_dwordx2 a[254:255], v{L+5}, s[{pcp}:{pcp+1}]")]
    for d, sz in ((sK, SZ['k']), (sV, SZ['v'])):
        k(f"s_mov_b32 s{d+2}, {sz:#x}"); k(f"s_mov_b32 s{d+3}, 0x00020000")
    k(f"s_lshl_b32 s{sBKV}, s{sH}, 19"); k(f"s_add_u32 s{sBKV}, s{sBKV}, {1536*256}"); k(f"s_add_u32 s{sBKV}, s{sBKV}, s{sM0K}")
    k(f"s_lshl_b32 s{sK1}, s{sKR}, 14"); k(f"s_add_u32 s{sK1}, s{sK1}, s{sBKV}")
    st_('issued')
    ln = []
    A = ln.append
    F, Dv, T0, T1, T2 = L + 32, L + 48, L + 26, L + 27, L + 30
    def hsum(v, t):
        for m in DPP4: A(f"v_add_f32_dpp v{v}, v{v}, v{v} {m}")
        A(f"v_mov_b32 v{t}, v{v}"); A(f"v_permlane16_swap_b32 v{v}, v{t}"); A(f"v_add_f32 v{v}, v{v}, v{t}")
    polln = f"buffer_load_dword v{FT+1}, v{FT+6}, s[{sDBG}:{sDBG+3}], 0 offen sc1"
    k.wait(vm="LX")
    st_('lx')
    for i in range(8): A(f"v_lshlrev_b32 v{F+2*i}, 16, v{XL+i}"); A(f"v_and_b32 v{F+2*i+1}, 0xffff0000, v{XL+i}")
    for i in range(8): A(f"v_add_f32 v{Dv+i}, v{F+2*i}, v{F+2*i+1}")
    for i in range(4): A(f"v_add_f32 v{Dv+i}, v{Dv+i}, v{Dv+4+i}")
    A(f"v_add_f32 v{Dv}, v{Dv}, v{Dv+2}"); A(f"v_add_f32 v{Dv+1}, v{Dv+1}, v{Dv+3}"); A(f"v_add_f32 v{T0}, v{Dv}, v{Dv+1}")
    hsum(T0, T1)
    A(f"v_mul_f32 v{T0}, 0x3b000000, v{T0}")
    for i in range(16): A(f"v_sub_f32 v{Dv+i}, v{F+i}, v{T0}")
    A(f"v_mul_f32 v{T1}, v{Dv}, v{Dv}"); A(f"v_mul_f32 v{T2}, v{Dv+1}, v{Dv+1}")
    for i in range(2, 16, 2): A(f"v_fmac_f32 v{T1}, v{Dv+i}, v{Dv+i}"); A(f"v_fmac_f32 v{T2}, v{Dv+i+1}, v{Dv+i+1}")
    A(f"v_add_f32 v{T1}, v{T1}, v{T2}")
    hsum(T1, T2)
    A(f"v_mul_f32 v{T1}, 0x3b000000, v{T1}")
    A(f"v_cvt_pk_bf16_f32 v{T2}, v{T0}, v{T1}")
    A(f"v_lshlrev_b32 v{T0}, 16, v{T2}"); A(f"v_and_b32 v{T1}, 0xffff0000, v{T2}")
    A(f"v_add_f32 v{T1}, 0x3727c5ac, v{T1}"); A(f"v_cvt_pk_bf16_f32 v{T1}, v{T1}, v{T1}"); A(f"v_lshlrev_b32 v{T1}, 16, v{T1}")
    A(f"v_sqrt_f32 v{T1}, v{T1}")
    for i in range(16): A(f"v_sub_f32 v{Dv+i}, v{F+i}, v{T0}")
    A(f"v_cvt_pk_bf16_f32 v{FT}, v{T0}, v{T1}")
    A(f"v_and_b32 v{T1}, 0xffff0000, v{FT}"); A(f"v_rcp_f32 v{T1}, v{T1}")
    for i in range(8): A(f"v_cvt_pk_bf16_f32 v{XL+i}, v{Dv+2*i}, v{Dv+2*i+1}")
    for i in range(8): A(f"v_lshlrev_b32 v{Dv+2*i}, 16, v{XL+i}"); A(f"v_and_b32 v{Dv+2*i+1}, 0xffff0000, v{XL+i}")
    for i in range(16): A(f"v_mul_f32 v{Dv+i}, v{Dv+i}, v{T1}")
    for i in range(8): A(f"v_cvt_pk_bf16_f32 v{XL+i}, v{Dv+2*i}, v{Dv+2*i+1}")
    trickle = list(lw)
    trickle += cpf + D(2) + D(3) + XP(1)[:ntr]
    n0 = int(len(ln) * tstart)
    nv_ = sum(1 for x in trickle if isinstance(x, Ins)); per = max(1, (len(ln) - n0) // nv_)
    ti = 0
    for n, x in enumerate(ln):
        k(x)
        if n >= n0 and (n - n0) % per == per - 1:
            while ti < len(trickle):
                y = trickle[ti]; ti += 1; k(y)
                if isinstance(y, Ins): break
    while ti < len(trickle): k(trickle[ti]); ti += 1
    st_('ln1')
    ln = []; A = ln.append
    A(f"v_mov_b32 v{T0}, 0")
    for i in range(8): A(f"v_dot2c_f32_bf16 v{T0}, v{XL+i}, v{WL+i}")
    A("s_nop 2")
    hsum(T0, T1)
    A(f"v_cvt_pk_bf16_f32 v{T0}, v{T0}, v{T0}")
    A(f"v_bfe_i32 v{T1}, v{T0}, 15, 1"); A(f"v_and_b32 v{T1}, 0x7fff, v{T1}"); A(f"v_or_b32 v{T1}, 0x8000, v{T1}")
    A(f"v_xor_b32 v{T0}, v{T0}, v{T1}"); A(f"v_lshl_or_b32 v{FT+2}, v{T0}, 16, v{A3}")
    ln_tail = ln
    st_('ln')

    steps = [[(ks, T) for T in range(8)] for ks in range(12)]
    steps += [[(ks, 2*i+t) for ks in range(12, 16) for t in range(2)] for i in range(4)]
    def wreads(st):
        out = []
        for f, (ks, T) in enumerate(steps[st]):
            i, t = T >> 1, T & 1
            for u in range(2):
                out.append(Ins(f"ds_read_b64_tr_b16 {q2('v', AF + (st&1)*32 + f*4 + u*2)}, v{aW+i} offset:{(ks % 8) * 8192 + u * 1024 + t * 8}", tag=f"W{st}"))
        return out
    k.wait(vm="D1"); st_('d1'); k("s_barrier")
    for x in XR(0)[:4] + wreads(0) + XR(0)[4:]: k(x)
    k.wait(vm="LW")
    for x in ln_tail: k(x)
    k.wait(lgkm=0)

    pl = Plan(k)
    seen = set(); G0 = {}
    for st in range(16):
        G0[st] = len(pl.mf)
        for f, (ks, T) in enumerate(steps[st]):
            af = q4('v', AF + (st&1)*32 + f*4)
            for qb in range(4):
                a = acc(T, qb)
                pl.mfma(f"{MF} {q4('v', a)}, {af}, {q4('a', (ks*4+qb)*4)}, {q4('v', a) if (T, qb) in seen else '0'}")
                seen.add((T, qb))
            if T < 2:
                a = CS0 + 4 * T
                pl.mfma(f"{MF} {q4('v', a)}, {af}, {q4('v', ONES)}, {q4('v', a) if ('c', T) in seen else '0'}")
                seen.add(('c', T))
    NQ = len(pl.mf); G0[16] = NQ
    units = [(p, qb) for p in range(16 - tailq) for qb in range(4)] + [(p, qb) for qb in range(4) for p in range(16 - tailq, 16)]
    def buf(p): return {14: 2, 15: 0}.get(p, p & 1)
    Spos = {}; PVpos = {}; seenO = set(); Xpos = {}
    def Sblk(i):
        p, qb = units[i]
        Spos[i] = len(pl.mf)
        for kb2 in range(2):
            d = S + (i % 4) * 8 + kb2 * 4
            for s in range(4):
                c = q4('v', d) if s else ("0" if p == 0 else q4('v', NM + 4*qb))
                pl.mfma(f"{MF} {q4('v', d)}, {q4('a', KB[buf(p)] + (kb2*4+s)*4)}, {q4('a', QF + (qb*4+s)*4)}, {c}")
    def PVblk(i):
        p, qb = units[i]
        PVpos[i] = len(pl.mf)
        for T in range(8):
            a = acc(T, qb)
            pl.mfma(f"{MF} {q4('v', a)}, {q4('a', VB[buf(p)] + T*4)}, {q4('v', P + 4*(i%4))}, {q4('v', a) if qb in seenO else '0'}")
        seenO.add(qb)
    U1, U2 = 21, 45
    for i in range(64):
        Sblk(i)
        if i >= 2: PVblk(i - 2)
        if i - 2 == U1 - 2:
            Xpos[1] = len(pl.mf)
            for n in range(4): pl.mfma(f"{MF} {q4('v', ONES)}, {q4('a', MA + 16 + 4*n)}, {q4('a', MA + 4*n)}, {q4('v', ONES) if n else '0'}")
        if i - 2 == U2 - 2:
            Xpos[2] = len(pl.mf)
            for n in range(4): pl.mfma(f"{MF} {q4('v', ONES)}, {q4('a', MA + 16 + 4*n)}, {q4('a', MA + 4*n)}, {q4('v', ONES) if n else '0'}")
    PVblk(62); PVblk(63)
    NMF = len(pl.mf); LAST = NMF - 1

    barg = {}
    for st in range(16):
        g0 = G0[st]
        if st > 0: pl.put(g0 - 1, Wait(lgkm=0))
        bar = None
        if st % 2 == 1 and st <= 9: bar = f"D{st+2}"
        if st == 11: bar = "D15"
        if st == 15: bar = "KV0"
        r0 = g0
        if bar:
            pl.put(g0, Wait(vm=bar)); pl.put(g0 + 1, "s_barrier"); r0 = g0 + 1; barg[st] = g0 + 1
        if st < 15: pl.stream(wreads(st + 1), r0, G0[st+1] - 8, spread=True, win=1)
    xr_step = {1: 1, 2: 2, 3: 3, 4: 5, 5: 6, 6: 8, 7: 9}
    for p, st in xr_step.items():
        lo = G0[st] + 10
        pl.stream([Wait(vm=f"XP{p}")] + XR(p), lo, G0[st+1] - 6, win=2)
    stl = [f"buffer_load_dwordx2 {q2('v', STAT + 2*qb)}, v{FT+7}, s[{sWS}:{sWS+3}], s{sM1} offen{off(qb*256)} sc1" for qb in range(4)]
    stq = [f"s_lshr_b32 s{sM1}, s{sBX}, 6", f"s_add_u32 s{sM1}, s{sM1}, {W6_STAT:#x}", f"v_lshlrev_b32 v{FT+7}, 4, v3"] + [Ins(t, tag="STAT") for t in stl]
    vq = [(XP(1)[ntr:] + [Ins(polln, tag="PN")], 0), (D(4) + D(5), 0), (XP(2), 0), (XP(3), 0), (D(6) + D(7), 0), (XP(4), G0[2]), (D(8) + D(9), barg[1] + 1), (XP(5), G0[3]), (D(10) + D(11), barg[3] + 1),
          (XP(6), G0[4]), (D(12) + D(13), barg[5] + 1), (XP(7), G0[6]), (D(14) + D(15), barg[7] + 1), (stq, 0),
          (KV(0), G0[kv0]), (KV(1), G0[kv1]), (KV(2), barg[11] + 1), (KV(3), barg[15] + 1)]
    gq = 0
    for items, lo in vq:
        n = sum(1 for x in items if isinstance(x, Ins))
        lo = max(lo, gq + 1)
        gq = pl.stream(items, lo, lo + (vpace if lo < G0[4] else 4) * n - 1, spread=True, win=2)
    su = []
    A = su.append
    A(f"s_mov_b32 s{sWO+2}, {SZ['wo']:#x}"); A(f"s_mov_b32 s{sWO+3}, 0x00020000")
    A(f"s_lshl_b32 s3, s{sQT}, 2"); A(f"s_add_u32 s3, s3, s{sWAVE}")
    A(f"s_lshl_b32 s{sOO}, s3, 19"); A(f"s_lshl_b32 s3, s{sH}, 14"); A(f"s_add_u32 s{sOO}, s{sOO}, s3"); A(f"s_add_u32 s{sOO}, s{sOO}, {WS_O:#x}")
    if oswz:
        A(f"s_add_u32 s{sST}, s{sH}, s{sWAVE}"); A(f"s_and_b32 s3, s{sST}, 1"); A("s_lshl_b32 s3, s3, 11"); A(f"s_add_u32 s{sOO}, s{sOO}, s3")
        A(f"s_and_b32 s3, s{sST}, 2"); A("s_lshl_b32 s3, s3, 12"); A(f"s_add_u32 s{sOO}, s{sOO}, s3")
    A(f"s_lshl_b32 s{sBWO}, s{sKSL}, 20"); A(f"s_lshl_b32 s3, s{sCT}, 8"); A(f"s_add_u32 s{sBWO}, s{sBWO}, s3"); A(f"s_and_b32 s3, s{sWAVE}, 1"); A("s_lshl_b32 s3, s3, 7"); A(f"s_add_u32 s{sBWO}, s{sBWO}, s3")
    A(f"s_lshl_b32 s3, s{sCT}, 1"); A(f"s_add_u32 s3, s3, s{sRT}"); A(f"s_mul_i32 s3, s3, {orot}"); A(f"s_and_b32 s3, s3, 7")
    A(f"s_lshl_b32 s{sRW}, s3, 17"); A(f"s_lshr_b32 s3, s{sWAVE}, 1"); A("s_lshl_b32 s3, s3, 19"); A(f"s_xor_b32 s{sRW}, s{sRW}, s3"); A(f"s_or_b32 s{sOWO}, s{sRW}, s{sBWO}")
    A(f"s_mov_b64 s[{sBAD}:{sBAD+1}], 0")
    csu = pl.stream(su, 0, 90)
    sv = []
    A = sv.append
    for i in range(4):
        A(f"s_add_u32 s3, s{sWAVE}, {i}"); A("s_and_b32 s3, s3, 3"); A("s_lshl_b32 s3, s3, 2")
        A(f"v_add_u32 v31, s3, v2"); A("v_xor_b32 v31, v31, v3"); A("v_lshlrev_b32 v31, 4, v31"); A(f"v_lshl_add_u32 v{aK+i}, v3, 8, v31"); A(f"v_add_u32 v{aK+i}, 0x10000, v{aK+i}")
    sv1 = sv; sv = []; A = sv.append
    t0, t1 = FT + 4, FT + 5
    A("v_lshl_add_u32 v31, v2, 2, v29")
    A(f"v_and_b32 v{t0}, 7, v31"); A(f"v_lshlrev_b32 v{t0}, 1, v{t0}")
    A(f"v_lshrrev_b32 v{t1}, 1, v30"); A(f"v_xor_b32 v{t0}, v{t0}, v{t1}")
    A(f"v_and_b32 v{t1}, 1, v30"); A(f"v_lshlrev_b32 v{t1}, 3, v{t1}"); A(f"v_lshl_add_u32 v{t1}, v31, 8, v{t1}")
    A(f"v_add_u32 v{t1}, {4096 + 65536}, v{t1}")
    for T in range(8):
        A(f"v_xor_b32 v{aV+T}, {2*T}, v{t0}"); A(f"v_lshl_add_u32 v{aV+T}, v{aV+T}, 4, v{t1}")
    sv2 = sv; sv = sv1; A = sv.append
    for i in range(4):
        A(f"v_add_u32 v31, {4*i}, v2"); A("v_xor_b32 v31, v31, v3"); A("v_lshlrev_b32 v31, 4, v31"); A(f"v_lshl_add_u32 v{oK+i}, v2, 8, v31")
    for i in range(2):
        A(f"v_add_u32 v31, {4*i}, v2"); A("v_lshlrev_b32 v31, 1, v31"); A("v_xor_b32 v31, v31, v3"); A("v_lshlrev_b32 v31, 4, v31"); A(f"v_lshl_add_u32 v{oV+i}, v2, 8, v31")
    csv = pl.stream(sv, csu + 1, G0[6])
    pl.stream(sv2, G0[10], G0[11])
    if touch:
        ct = -1
        tl = [f"buffer_load_dword a{246+n}, v{oL}, s[{(sK, sV)[n & 1]}:{(sK, sV)[n & 1]+3}], s{sK1} offen{off((n >> 1)*1024)}" for n in range(8)]
        pl.stream(tl, max(ct + 1, G0[touch[0]]), G0[touch[1]] - 1, spread=True, win=2)
    its = check_items("PN", polln, [f"v_cmp_eq_u32 vcc, 0, v{FT+1}"])
    its += [f"s_mov_b32 s{sM1}, {W6_STAT:#x}", Ins(f"buffer_store_dwordx2 {q2('v', FT)}, v{FT+5}, s[{sWS}:{sWS+3}], s{sM1} offen sc1", tag="PUB0"),
            f"v_readfirstlane_b32 s{sTAG}, v{FT+1}", f"v_mov_b32 v{FT+3}, v{FT+1}"]
    c = pstream(pl, its, G0[2] + 4, G0[3] - 2, win=2)
    pl.stream([Wait(vm="PUB0"), f"buffer_store_dwordx2 {q2('v', FT+2)}, v{FT+4}, s[{sWS}:{sWS+3}], 0 offen sc1"], G0[7] + 4, G0[8] - 2, win=2)
    cm = [f"v_xor_b32 v{FT}, s{sTAG}, v{STAT+1}", f"v_xor_b32 v{FT+1}, s{sTAG}, v{STAT+3}", f"v_xor_b32 v{FT+3}, s{sTAG}, v{STAT+5}", f"v_or3_b32 v{FT}, v{FT}, v{FT+1}, v{FT+3}",
          f"v_xor_b32 v{FT+1}, s{sTAG}, v{STAT+7}", f"v_or_b32 v{FT}, v{FT}, v{FT+1}", f"v_cmp_ne_u32 vcc, 0, v{FT}"]
    its = check_items("STAT", stl, cm)
    for qb in range(4):
        a, b = STAT + 2*qb, STAT + 2*qb + 1
        its += [f"v_and_b32 v{b}, 0xffff0000, v{a}", f"v_rcp_f32 v{b}, v{b}", f"v_lshlrev_b32 v{a}, 16, v{a}", f"v_sub_f32 v{a}, 0, v{a}", f"v_mul_f32 v{b}, {QSCALE:#x}, v{b}"]
    c = pstream(pl, its, G0[12] + 2, G0[13] - 1, win=2)
    its = ["v_lshlrev_b32 v31, 1, v2", f"v_and_b32 v{oWO}, 7, v1", f"v_xor_b32 v31, v31, v{oWO}", "v_lshlrev_b32 v31, 4, v31", f"v_lshrrev_b32 v{oWO}, 3, v1", f"v_lshl_add_u32 v{oWO}, v{oWO}, 10, v31"]
    its += [f"v_add_u32 v{oWO+i}, {i*7168}, v{oWO}" for i in range(1, 4)]
    its += [f"v_add_u32 v{oW}, s{sM0O}, v{oL}", f"v_add_u32 v{oW}, {R4 + 6144}, v{oW}", f"v_add_u32 v{oW+1}, {R4 + 6144}, v{oL}"]
    pl.stream(its, G0[11] + 2, G0[12] - 1)
    g13 = G0[13]
    pl.stream([f"ds_write_b128 v{oW}, {q4('v', CS0)}", Ins(f"ds_write_b128 v{oW}, {q4('v', CS0+4)} offset:1024", tag="CSW")], g13 + 3, g13 + 8, win=1)
    cb = g13 + 16
    pl.put(cb - 1, Wait(lgkm="CSW")); pl.put(cb, "s_barrier")
    def csread(i, dst, lo, hi):
        c = pl.stream([f"s_add_u32 s3, s{sWAVE}, {i}", "s_and_b32 s3, s3, 3", "s_lshl_b32 s3, s3, 13", f"v_add_u32 v31, s3, v{oW+1}"], lo, hi, win=1)
        return pl.stream([f"ds_read_b128 {q4('v', dst)}, v31", Ins(f"ds_read_b128 {q4('v', dst+4)}, v31 offset:1024", tag=f"CS{i}")], max(c + 1, cb), hi, win=1)
    csreg = {0: CS0, 1: CSX, 2: CS0, 3: CSX}
    cur = 0; fin_end = {}
    for i in range(4):
        lo = max(cur, G0[13 + i] + (3 if i < 3 else -1))
        if i >= 1: pl.put(lo - 1, Wait(lgkm=f"CS{i}"))
        for qb in range(4):
            a0, a1 = acc(2*i, qb), acc(2*i+1, qb)
            cs = csreg[i]
            ops = [f"v_fmac_f32 v{a0+n}, v{cs+n}, v{STAT+2*qb}" for n in range(4)] + [f"v_fmac_f32 v{a1+n}, v{cs+4+n}, v{STAT+2*qb}" for n in range(4)]
            ops += [f"v_mul_f32 v{a0+n}, v{a0+n}, v{STAT+2*qb+1}" for n in range(4)] + [f"v_mul_f32 v{a1+n}, v{a1+n}, v{STAT+2*qb+1}" for n in range(4)]
            ops += [f"v_cvt_pk_bf16_f32 v{a0}, v{a0}, v{a0+1}", f"v_cvt_pk_bf16_f32 v{a0+1}, v{a0+2}, v{a0+3}",
                    f"v_cvt_pk_bf16_f32 v{a0+2}, v{a1}, v{a1+1}", f"v_cvt_pk_bf16_f32 v{a0+3}, v{a1+2}, v{a1+3}"]
            ops += [f"v_accvgpr_write_b32 a{QF + (qb*4+i)*4 + n}, v{a0+n}" for n in range(4)]
            if i < 3:
                span = G0[14 + i] + (2 if i < 2 else -2) - lo
                l2 = lo + (qb * span) // 4; h2 = lo + ((qb + 1) * span) // 4 - 1
                cur = pl.stream(ops, max(cur, l2), h2, spread=True, win=0)
            else:
                cur = pl.stream(ops, max(cur, lo), Spos[qb] + 2, spread=True, win=0)
        fin_end[i] = cur
        if i == 0: csread(1, CSX, cb - 4, cb + 8)
        if i in (0, 1): pass
    csread(2, CS0, fin_end[0] + 1, fin_end[0] + 14); csread(3, CSX, fin_end[1] + 1, fin_end[1] + 14)

    def kreads(p):
        slot = (p // 2) % 4
        return [Ins(f"ds_read_b128 {q4('a', KB[buf(p)] + (kb2*4+s)*4)}, v{aK+s} offset:{(slot & 1) * 32768 + (2*(p & 1) + kb2) * 8192}", tag=f"K{p}")
                for kb2 in range(2) for s in range(4)]
    def vreads(p):
        slot = (p // 2) % 4
        return [Ins(f"ds_read_b64_tr_b16 {q2('a', VB[buf(p)] + T*4 + u*2)}, v{aV+T} offset:{(slot & 1) * 32768 + (2*(p & 1) + u) * 8192}", tag=f"V{p}")
                for T in range(8) for u in range(2)]
    firstS = {}; firstPV = {}; lastS = {}; lastPV = {}
    for i, (p, qb) in enumerate(units):
        firstS.setdefault(p, Spos[i]); firstPV.setdefault(p, PVpos[i]); lastS[p] = Spos[i] + 7; lastPV[p] = PVpos[i] + 7
    vcur = cur
    PAT = [("E",0,0),("E",1,1),("A",0,2),("E",2,3),("A",1,4),("C",0,4),("E",3,5),("A",2,6),("E",4,7),("A",3,8),("C",1,8),("E",5,9),("A",4,10),
           ("E",6,11),("A",5,12),("C",2,12),("E",7,13),("A",6,14),("A",7,15),("C",3,15)]
    lastunit = {qb: max(i for i, u in enumerate(units) if u[1] == qb) for qb in range(4)}
    for i, (p, qb) in enumerate(units):
        b = S + (i % 4) * 8
        w0 = Spos[i] + 7 + 3
        dead = PVpos[i] - 1
        def op(kind, n):
            if kind == "E": return f"v_exp_f32 v{b+n}, v{b+n}"
            if kind == "A":
                if p == 0 and n < 2: return f"v_mov_b32 v{LS+2*qb+n}, v{b+n}"
                return f"v_add_f32 v{LS+2*qb+(n&1)}, v{LS+2*qb+(n&1)}, v{b+n}"
            return f"v_cvt_pk_bf16_f32 v{P+4*(i%4)+n}, v{b+2*n}, v{b+2*n+1}"
        if p == 0:
            t = ONES
            ops = [f"v_max3_f32 v{t}, v{b}, v{b+1}, v{b+2}", f"v_max3_f32 v{t+1}, v{b+3}, v{b+4}, v{b+5}", f"v_max3_f32 v{t}, v{t}, v{b+6}, v{b+7}", f"v_max_f32 v{t}, v{t}, v{t+1}"]
            for sw in ("v_permlane32_swap_b32", "v_permlane16_swap_b32"):
                ops += [f"v_mov_b32 v{t+1}, v{t}", f"{sw} v{t}, v{t+1}", f"v_max_f32 v{t}, v{t}, v{t+1}"]
            ops += [f"v_sub_f32 v{b+n}, v{b+n}, v{t}" for n in range(8)]
            ops += [f"v_sub_f32 v{NM+4*qb+n}, 0, v{t}" for n in range(4)]
            ops += [op(kd, n) for kd, n, _ in PAT]
            vcur = pl.stream(ops, min(dead, max(w0, vcur)), dead, spread=True, win=0)
        elif w0 + 15 <= dead and w0 > vcur:
            for kd, n, pos in PAT: pl.put(w0 + pos, op(kd, n))
            pl.mslots |= {w0 + j for j in (2, 4, 6, 8, 10, 12, 14)}
            vcur = w0 + 15
        else:
            lo = max(min(w0, dead), vcur)
            vcur = pl.stream([op(kd, n) for kd, n, _ in PAT], lo, min(dead, max(w0 + 15, lo + 12)), spread=True, win=0)
    Bgap = {0: barg[15]}
    for j in range(1, 7):
        p = 2*j - 1
        Bgap[j] = firstPV[p] - 1
        pl.put(Bgap[j] - 1, Wait(vm=f"KV{j if j < 6 else 7}", lgkm=0)); pl.put(Bgap[j], "s_barrier")
    cur = Bgap[0]
    order = [(kd, p) for p in range(13) for kd in "KV"] + [("K", 13), ("K", 14), ("V", 13), ("K", 15), ("V", 14), ("V", 15)]
    cur_k = cur_v = 0
    for kind, p in order:
        lo = max(cur, Bgap[min(p // 2, 6)])
        prevuser = [pp for pp in range(p) if buf(pp) == buf(p)]
        late = p >= 13
        if kind == "K":
            if prevuser: lo = max(lo, lastS[prevuser[-1]])
            hi = firstS[p] - 5
            if p % 4 == 0 and p: pl.stream([f"v_xor_b32 v{aK+s}, 0x10000, v{aK+s}" for s in range(4)], max(cur_k + 1, lo - 12), lo - 1, spread=True, win=1)
            n_av = hi - lo + 1
            cur = cur_k = pl.stream(kreads(p), lo, hi, win=(None if n_av >= 20 and p and not late else 1), spread=(n_av < 20 or p == 0))
            pl.put(firstS[p] - 1, Wait(lgkm=f"K{p}"))
        else:
            if prevuser: lo = max(lo, lastPV[prevuser[-1]])
            hi = firstPV[p] - 7
            if p % 4 == 0 and p: pl.stream([f"v_xor_b32 v{aV+T}, 0x10000, v{aV+T}" for T in range(8)], max(cur_v + 1, lo - 24), lo - 1, spread=True, win=1)
            n_av = hi - lo + 1
            cur = cur_v = pl.stream(vreads(p), lo, hi, win=(None if n_av >= 36 and p > 1 and not late else 1), spread=(n_av < 36 or p <= 1))
            if p % 2 == 0 or p >= 13: pl.put(firstPV[p] - 1, Wait(lgkm=f"V{p}"))
    Bgap[7] = firstPV[15]
    pl.put(Bgap[7], "s_barrier")
    mw = [f"s_and_b32 s{sT}, s2, 7", f"s_mul_i32 s{sT}, s{sT}, 22", f"s_lshr_b32 s{sOW}, s2, 3", f"s_add_u32 s{sT}, s{sT}, s{sOW}",
          ("pair", f"s_cmp_lt_u32 s{sOW}, 22", f"s_cselect_b32 s{sBW}, s{sT}, 172"),
          f"s_lshl_b32 s{sT}, s{sBW}, 4", f"s_mul_i32 s{sOW}, s{sWAVE}, {128*2752}", f"s_add_u32 s{sOW}, s{sOW}, s{sT}",
          ("pair", f"s_cmp_lt_u32 s{sBW}, 172", f"s_cselect_b32 s{sOW}, s{sOW}, {OOB:#x}"),
          f"s_add_u32 s{sOX}, s{sOW}, {64*2752}",
          f"v_mul_u32_u24 v{aW}, 2752, v1"]
    w1 = []
    for mat, ptr in enumerate((pWG, pWU)):
        w1 += [f"s_mov_b32 s{sTS}, s{ptr}", f"s_mov_b32 s{sTS+1}, s{ptr+1}", f"s_mov_b32 s{sTS+2}, {SZ['wg']:#x}", f"s_mov_b32 s{sTS+3}, 0x00020000"]
        for hf in range(2):
            w1 += [f"s_add_u32 m0, s{sM0O}, {R4 + mat*2048 + hf*1024}", Ins(f"buffer_load_dwordx4 v{aW}, s[{sTS}:{sTS+3}], s{(sOW, sOX)[hf]} offen{NT('m')} lds", tag="W1")]
    w2 = [f"s_mov_b32 s{sTS}, s{pWD}", f"s_mov_b32 s{sTS+1}, s{pWD+1}", f"s_mov_b32 s{sTS+2}, {SZ['wd']:#x}", f"s_mov_b32 s{sTS+3}, 0x00020000",
          f"s_lshl_b32 s{sM0W}, s{sQT}, 2", f"s_add_u32 s{sM0W}, s{sM0W}, s{sWAVE}",
          f"s_lshl_b32 s{sOW}, s{sM0W}, 17", f"s_lshl_b32 s{sT}, s{sH}, 5", f"s_add_u32 s{sOW}, s{sOW}, s{sT}",
          f"v_lshrrev_b32 v{aW+1}, 1, v1", f"v_lshlrev_b32 v{aW+1}, 10, v{aW+1}", f"v_and_b32 v{aW+3}, 1, v1", f"v_lshl_add_u32 v{aW+1}, v{aW+3}, 4, v{aW+1}"]
    for e in range(4):
        w2 += [f"s_add_u32 m0, s{sM0O}, {R4 + e*1024}", Ins(f"buffer_load_dwordx4 v{aW+1}, s[{sTS}:{sTS+3}], s{sOW} offen{NT('m')} lds", tag="W2"), f"s_add_u32 s{sOW}, s{sOW}, 32768"]
    def pairstream(items, lo, hi, **kw):
        cur = lo; b = []
        for x in items:
            if isinstance(x, tuple):
                if b: cur = pl.stream(b, cur, hi, **kw); b = []
                cur += 1
                while pl._g(cur)["s"]: cur += 1
                pl.put(cur, x[1]); pl.put(cur, x[2], cls="s")
            else: b.append(x)
        if b: cur = pl.stream(b, cur, hi, **kw)
        return cur
    dcur = pairstream(mw, max(gq + 1, NQ + 2), Bgap[1] - 2, win=2)
    dcur = pl.stream(w1[:6], dcur + 1, dcur + 16, win=2); dcur = pl.stream(w1[6:8], max(dcur + 1, Bgap[1] - 12), Bgap[1] - 2, win=2)
    w1b = w1[8:]
    dm = []
    for j in range(1, 5):
        if j == 3: dm.append((w2, Bgap[3] + 1, Bgap[3] + 84, 2))
        if j == 1: dm.append((w1b[:6], Bgap[1] + 40, Bgap[1] + 56, 2))
        dm.append((KV(j + 3), Bgap[j] + 1, Bgap[j+1] - 2, None))
        if j == 1: dm.append((w1b[6:], Bgap[2] - 1, Bgap[2] + 6, 2))
    dm.append((WO(0) + WO(1), Bgap[5] + 1, Bgap[6] - 2, None)); dm.append((WO(2) + WO(3) + WO(4), Bgap[6] + 1, Bgap[7] - 30, 3))
    if nwo > 5: dm.append((sum((WO(g) for g in range(5, nwo)), []), Bgap[7] + 1, LAST - 10, 3))
    for items, lo, hi, w in dm:
        dcur = pl.stream(items, max(lo, dcur + 1), hi, win=w, spread=bool(w))
    m = MT
    fin3 = fin_end[3]
    keyl = [f"buffer_load_dwordx4 {q4('v', m + 4*n)}, v{oL}, s[{sWS}:{sWS+3}], s{sM0K} offen{off(n*1024)} sc1" for n in range(4)]
    assert W6_KEY == 0
    c = pl.stream([Ins(t, tag="KEYS") for t in keyl], Bgap[1] - 30, Bgap[1] - 6, spread=True, win=1)
    t0_, t1_ = ONES, ONES + 1
    cm = [f"v_min3_u32 v{t0_}, v{m+1}, v{m+3}, v{m+5}", f"v_max3_u32 v{t1_}, v{m+1}, v{m+3}, v{m+5}"]
    for a, b in ((7, 9), (11, 13)): cm += [f"v_min3_u32 v{t0_}, v{t0_}, v{m+a}, v{m+b}", f"v_max3_u32 v{t1_}, v{t1_}, v{m+a}, v{m+b}"]
    cm += [f"v_min3_u32 v{t0_}, v{t0_}, v{m+15}, s{sTAG}", f"v_max3_u32 v{t1_}, v{t1_}, v{m+15}, s{sTAG}", f"v_cmp_ne_u32 vcc, v{t0_}, v{t1_}"]
    c = pstream(pl, check_items("KEYS", keyl, cm), Bgap[1] + 30, Bgap[1] + 50, spread=False, win=1)
    m1, m2, mt = ONES, ONES + 1, ONES + 2
    def top2of8(st=1):
        o = [f"v_max_u32 v{m1}, v{m}, v{m+st}", f"v_min_u32 v{m2}, v{m}, v{m+st}"]
        for i in range(2, 8): o += [f"v_med3_u32 v{m2}, v{m1}, v{m2}, v{m+i*st}", f"v_max_u32 v{m1}, v{m1}, v{m+i*st}"]
        return o
    def wmax(v, t):
        o = [f"v_max_u32_dpp v{v}, v{v}, v{v} {d}" for d in DPP4]
        for sw in ("v_permlane16_swap_b32", "v_permlane32_swap_b32"): o += [f"v_mov_b32 v{t}, v{v}", f"{sw} v{v}, v{t}", f"v_max_u32 v{v}, v{v}, v{t}"]
        return o
    its = top2of8(2) + [f"v_mov_b32 v{m}, v{m1}"] + wmax(m, mt) + [f"v_cmp_eq_u32 vcc, v{m}, v{m1}", f"v_cndmask_b32 v{m+1}, v{m1}, v{m2}, vcc"] + wmax(m + 1, mt)
    its += [f"v_mov_b32 v{mt}, s{sM0O}", f"v_add_u32 v{mt}, {R4 + 6144}, v{mt}", f"ds_write_b64 v{mt}, {q2('v', m)}"]
    c = pl.stream(its, c + 1, Bgap[2] - 6, spread=True, win=0)
    its = [f"v_mov_b32 v{mt}, {R4 + 6144}"] + [Ins(f"ds_read_b64 {q2('v', m + 2*w)}, v{mt} offset:{w*8192}", tag="T2R") for w in range(4)]
    c = pl.stream(its, Bgap[2], Bgap[2] + 8, win=1)
    its = [f"v_lshl_add_u32 v{aW}, v2, 3, v29", f"v_lshlrev_b32 v{aW}, 4, v{aW}", f"v_lshrrev_b32 v{aW+2}, 1, v30", f"v_lshl_add_u32 v{aW}, v{aW+2}, 11, v{aW}",
           f"v_and_b32 v{aW+2}, 1, v30", f"v_lshl_add_u32 v{aW}, v{aW+2}, 3, v{aW}", f"v_add_u32 v{aW}, s{sM0O}, v{aW}", f"v_add_u32 v{aW}, {R4}, v{aW}"]
    its += [Wait(lgkm="T2R")] + top2of8()
    its += [f"v_readfirstlane_b32 s{sK1}, v{m1}", f"v_readfirstlane_b32 s{sK2}, v{m2}",
            f"v_cmp_lt_u32 vcc, 31, v1", f"v_cndmask_b32 v{m}, v{m1}, v{m2}, vcc",
            f"v_and_b32 v{m}, 0xffff, v{m}", f"v_sub_u32 v{m}, 0xffff, v{m}",
            f"v_and_b32 v{mt}, 31, v1", f"v_lshlrev_b32 v{mt}, 3, v{mt}", f"v_lshl_add_u32 v{m+1}, v{m}, 10, v{mt}", f"v_lshlrev_b32 v{m}, 4, v{m}",
            f"s_lshl_b32 s{sM1}, s{sWAVE}, 8",
            Ins(f"buffer_load_dwordx2 {q2('v', m+2)}, v{m+1}, s[{sX}:{sX+3}], s{sM1} offen", tag="XS"), f"s_mov_b32 s{sM1}, {W6_STAT:#x}",
            Ins(f"buffer_load_dword v{m+4}, v{m}, s[{sWS}:{sWS+3}], s{sM1} offen sc1", tag="XS")]
    c = pl.stream(its, c + 1, c + 36, spread=True, win=0)
    its = [Ins(f"ds_read_b64_tr_b16 {q2('a', MA + 16 + 4*n + 2*u)}, v{aW} offset:{n*512 + u*64}", tag="W1R") for n in range(4) for u in range(2)]
    its += [f"v_lshlrev_b32 v{m+10}, 3, v1", f"v_add_u32 v{m+10}, s{sM0O}, v{m+10}", f"v_add_u32 v{m+10}, {R4 + 4096}, v{m+10}",
            f"v_and_b32 v{m+11}, 1, v1", f"v_lshlrev_b32 v{m+11}, 8, v{m+11}", f"v_lshl_add_u32 v{m+11}, v2, 4, v{m+11}", f"v_add_u32 v{m+11}, s{sM0O}, v{m+11}", f"v_add_u32 v{m+11}, {R4 + 4096}, v{m+11}"]
    c = pl.stream([Wait(vm="W1")] + its, c + 8, c + 36, spread=True, win=1)
    its = [Wait(vm="XS"), f"v_and_b32 v{m+5}, 0xffff0000, v{m+4}", f"v_rcp_f32 v{m+5}, v{m+5}", f"v_lshlrev_b32 v{m+4}, 16, v{m+4}"]
    for n in range(2): its += [f"v_lshlrev_b32 v{m+6+2*n}, 16, v{m+2+n}", f"v_and_b32 v{m+7+2*n}, 0xffff0000, v{m+2+n}"]
    its += [f"v_sub_f32 v{m+6+n}, v{m+6+n}, v{m+4}" for n in range(4)] + [f"v_cvt_pk_bf16_f32 v{m+2+n}, v{m+6+2*n}, v{m+7+2*n}" for n in range(2)]
    for n in range(2): its += [f"v_lshlrev_b32 v{m+6+2*n}, 16, v{m+2+n}", f"v_and_b32 v{m+7+2*n}, 0xffff0000, v{m+2+n}"]
    its += [f"v_mul_f32 v{m+6+n}, v{m+6+n}, v{m+5}" for n in range(4)] + [f"v_cvt_pk_bf16_f32 v{m+2+n}, v{m+6+2*n}, v{m+7+2*n}" for n in range(2)]
    its += [f"ds_write_b64 v{m+10}, {q2('v', m+2)}"] + [Ins(f"ds_read_b128 {q4('a', MA + 4*n)}, v{m+11} offset:{n*64}", tag="XSR") for n in range(4)]
    c = pl.stream(its, c + 1, Xpos[1] - 6, spread=True, win=0)
    pl.put(Xpos[1] - 1, Wait(lgkm="XSR"))
    assert Xpos[1] + 9 < Bgap[3] - 1, (Xpos, Bgap)
    pl.stream([f"ds_write_b128 v{oW}, {q4('v', ONES)} offset:1024"], Xpos[1] + 7, Xpos[1] + 8, win=1)
    its = [Ins(f"ds_read_b128 {q4('v', m + 4*w)}, v{oW+1} offset:{w*8192 + 1024}", tag="S1R") for w in range(4)]
    c = pl.stream(its, Bgap[3], Bgap[3] + 8, win=1)
    e0 = ONES
    its = [Wait(lgkm="S1R")]
    for n in range(4): its += [f"v_add_f32 v{m+n}, v{m+n}, v{m+4+n}", f"v_add_f32 v{m+8+n}, v{m+8+n}, v{m+12+n}"]
    for n in range(4): its += [f"v_add_f32 v{m+n}, v{m+n}, v{m+8+n}"]
    its += [f"v_cvt_pk_bf16_f32 v{m+4}, v{m}, v{m+1}", f"v_cvt_pk_bf16_f32 v{m+5}, v{m+2}, v{m+3}", f"v_mov_b32 v{m+6}, v{m+4}", f"v_mov_b32 v{m+7}, v{m+5}",
            f"v_permlane32_swap_b32 v{m+4}, v{m+6}", f"v_permlane32_swap_b32 v{m+5}, v{m+7}"]
    for n in range(2):
        its += [f"v_lshlrev_b32 v{m+2*n}, 16, v{m+4+n}", f"v_and_b32 v{m+2*n+1}, 0xffff0000, v{m+4+n}", f"v_lshlrev_b32 v{m+8+2*n}, 16, v{m+6+n}", f"v_and_b32 v{m+8+2*n+1}, 0xffff0000, v{m+6+n}"]
    its += [f"v_mul_f32 v{m+12+n}, 0xbfb8aa3b, v{m+n}" for n in range(4)] + [f"v_exp_f32 v{m+12+n}, v{m+12+n}" for n in range(4)]
    its += [f"v_add_f32 v{m+12+n}, 1.0, v{m+12+n}" for n in range(4)] + [f"v_rcp_f32 v{m+12+n}, v{m+12+n}" for n in range(4)]
    its += [f"v_mul_f32 v{m+n}, v{m+n}, v{m+12+n}" for n in range(4)]
    its += [f"v_cvt_pk_bf16_f32 v{m+4}, v{m}, v{m+1}", f"v_cvt_pk_bf16_f32 v{m+5}, v{m+2}, v{m+3}"]
    for n in range(2): its += [f"v_lshlrev_b32 v{m+2*n}, 16, v{m+4+n}", f"v_and_b32 v{m+2*n+1}, 0xffff0000, v{m+4+n}"]
    its += [f"v_mul_f32 v{m+n}, v{m+n}, v{m+8+n}" for n in range(4)]
    its += [f"v_cvt_pk_bf16_f32 v{m+4}, v{m}, v{m+1}", f"v_cvt_pk_bf16_f32 v{m+5}, v{m+2}, v{m+3}"]
    its += [f"v_and_b32 v{m+6}, 1, v1", f"v_lshlrev_b32 v{m+6}, 4, v{m+6}", f"v_and_b32 v{m+7}, 1, v2", f"v_lshl_add_u32 v{m+7}, v{m+7}, 3, v{m+6}", f"v_mov_b32 v{m}, s{sTAG}", f"v_mov_b32 v{m+1}, 64"]
    spart = [f"s_lshl_b32 s{sM1}, s{sBW}, 7", f"s_add_u32 s{sM1}, s{sM1}, {W6_H:#x}", ("pair", f"s_cmp_lt_u32 s{sBW}, 172", f"s_cselect_b32 s{sM1}, s{sM1}, {OOB:#x}"),
             ("pair", f"s_cmp_eq_u32 s{sWAVE}, 0", f"s_cselect_b32 s{sM1}, s{sM1}, {OOB:#x}")]
    pairstream(spart, c + 1, c + 30, win=1)
    c = pl.stream(its + [Ins(f"buffer_store_dwordx2 {q2('v', m+4)}, v{m+7}, s[{sWS}:{sWS+3}], s{sM1} offen sc1", tag="HS")], c + 4, Bgap[3] + 56, spread=True, win=0)
    c = pl.stream([Wait(vm="HS"), f"buffer_store_dword v{m}, v{m+1}, s[{sWS}:{sWS+3}], s{sM1} offen sc1"], c + 56, c + 66, win=1)
    pollh = f"buffer_load_dword v{m}, v{m+1}, s[{sWS}:{sWS+3}], s{sM1} offen sc1"
    its = [f"s_lshl_b32 s{sM1}, s{sM0W}, 4", f"v_add_u32 v{m+1}, s{sM1}, v3", f"v_min_u32 v{m+1}, 171, v{m+1}", f"v_lshlrev_b32 v{m+1}, 7, v{m+1}",
           ("pair", f"s_cmp_lt_u32 s{sM0W}, 11", f"s_cselect_b32 s{sM1}, {W6_H + 64:#x}, s{sOX}"), Ins(pollh, tag="PH")]
    c = pl.stream([f"s_mov_b32 s{sOX}, {W6_STAT + 4:#x}"], Bgap[5] - 40, Bgap[5] - 30)
    c = pairstream(its, c + 1, Bgap[5] - 4, win=1)
    pl.stream([f"v_lshl_add_u32 v{aW}, v2, 3, v29", f"v_lshlrev_b32 v{aW}, 5, v{aW}", f"v_lshl_add_u32 v{aW}, v30, 3, v{aW}", f"v_add_u32 v{aW}, s{sM0O}, v{aW}", f"v_add_u32 v{aW}, {R4}, v{aW}", Wait(vm="W2")] +
              [Ins(f"ds_read_b64_tr_b16 {q2('a', MA + 16 + 4*e + 2*u)}, v{aW} offset:{e*1024 + u*128}", tag="W2R") for e in range(4) for u in range(2)], Bgap[4] + 20, Bgap[5] - 44, spread=True, win=1)
    its = check_items("PH", pollh, [f"v_cmp_ne_u32 vcc, s{sTAG}, v{m}"])
    its += [f"v_lshl_add_u32 v{m+7}, v2, 7, v{m+6}"]
    for e in range(4):
        its += [f"s_lshl_b32 s{sM1}, s{sM0W}, 2", f"s_add_u32 s{sM1}, s{sM1}, {e}", f"s_lshl_b32 s{sM1}, s{sM1}, 9", f"s_add_u32 s{sM1}, s{sM1}, {W6_H:#x}", ("pair", f"s_cmp_lt_u32 s{sM1}, {W6_H + 43*512:#x}", f"s_cselect_b32 s{sM1}, s{sM1}, {OOB:#x}"),
                Ins(f"buffer_load_dwordx4 {q4('a', MA + 4*e)}, v{m+7}, s[{sWS}:{sWS+3}], s{sM1} offen sc1", tag="HL")]
    c = pstream(pl, its, Bgap[5] + 30, Bgap[5] + 70, win=1)
    assert c < Xpos[2] - 30, (c, Xpos)
    pl.put(Xpos[2] - 1, Wait(vm="HL", lgkm="W2R"))
    assert Xpos[2] + 9 < Bgap[6] - 1
    pl.stream([f"ds_write_b128 v{oW}, {q4('v', ONES)}"], Xpos[2] + 7, Xpos[2] + 8, win=1)
    c = pl.stream([Ins(f"ds_read_b128 {q4('v', m + 4*w)}, v{oW+1} offset:{w*8192}", tag="S2R") for w in range(4)], Bgap[6], Bgap[6] + 8, win=1)
    spart = [f"s_lshl_b32 s{sM1}, s{sQT}, 5", f"s_add_u32 s{sM1}, s{sM1}, s{sH}", f"s_lshl_b32 s{sM1}, s{sM1}, 7", f"s_add_u32 s{sM1}, s{sM1}, {W6_YP:#x}",
             ("pair", f"s_cmp_lt_u32 s{sQT}, 3", f"s_cselect_b32 s{sM1}, s{sM1}, {OOB:#x}"), ("pair", f"s_cmp_eq_u32 s{sWAVE}, 0", f"s_cselect_b32 s{sM1}, s{sM1}, {OOB:#x}")]
    pairstream(spart, c + 1, c + 20, win=1)
    its = [Wait(lgkm="S2R")]
    for n in range(4): its += [f"v_add_f32 v{m+n}, v{m+n}, v{m+4+n}", f"v_add_f32 v{m+8+n}, v{m+8+n}, v{m+12+n}"]
    for n in range(4): its += [f"v_add_f32 v{m+n}, v{m+n}, v{m+8+n}"]
    its += [f"v_and_b32 v{m+4}, 1, v1", f"v_lshlrev_b32 v{m+4}, 6, v{m+4}", f"v_lshl_add_u32 v{m+4}, v2, 4, v{m+4}",
            Ins(f"buffer_store_dwordx4 {q4('v', m)}, v{m+4}, s[{sWS}:{sWS+3}], s{sM1} offen sc1", tag="YS"), f"v_mov_b32 v{m+8}, s{sTAG}", f"v_mov_b32 v{m+9}, {W6_YT - W6_YP}"]
    c = pl.stream(its, c + 6, c + 40, spread=True, win=0)
    c = pl.stream([Wait(vm="YS"), f"buffer_store_dword v{m+8}, v{m+9}, s[{sWS}:{sWS+3}], s{sM1} offen sc1"], c + 60, c + 70, win=1)
    assert c < PVpos[lastunit[0]] - 2, (c, PVpos[lastunit[0]])
    def ofin_head(qb, t, usepk):
        l0 = LS + 2 * qb
        ops = [f"v_add_f32 v{t}, v{l0}, v{l0+1}"]
        for sw in ("v_permlane32_swap_b32", "v_permlane16_swap_b32"):
            ops += [f"v_mov_b32 v{t+1}, v{t}", f"{sw} v{t}, v{t+1}", f"v_add_f32 v{t}, v{t}, v{t+1}"]
        return ops
    def ofin_body(qb, t, usepk, tag):
        ops = []
        for s in range(4):
            a0, a1 = acc(2*s, qb), acc(2*s+1, qb)
            if usepk: ops += [f"v_pk_mul_f32 {q2('v', a)}, {q2('v', a)}, {q2('v', t)}" for a in (a0, a0+2, a1, a1+2)]
            else: ops += [f"v_mul_f32 v{a0+n}, v{a0+n}, v{t}" for n in range(4)] + [f"v_mul_f32 v{a1+n}, v{a1+n}, v{t}" for n in range(4)]
            ops += [f"v_cvt_pk_bf16_f32 v{a0}, v{a0}, v{a0+1}", f"v_cvt_pk_bf16_f32 v{a0+1}, v{a0+2}, v{a0+3}",
                    f"v_cvt_pk_bf16_f32 v{a0+2}, v{a1}, v{a1+1}", f"v_cvt_pk_bf16_f32 v{a0+3}, v{a1+2}, v{a1+3}"]
            st = f"buffer_store_dwordx4 {q4('v', a0)}, v{oL}, s[{sWS}:{sWS+3}], s{sST} offen{LO}"
            ops += [f"s_xor_b32 s{sST}, s{sOO}, {(qb*4 + s)*1024}", Ins(st, tag=tag) if tag else unc(st)]
        return ops
    ocur = 0
    pl.put(Bgap[7] - 8, f"v_mov_b32 v31, {f32(2.0**-24) if force_slow else f32(2.0**24):#x}")
    for qb in range(4):
        i = lastunit[qb]
        t = MT + 2 * qb
        usepk = pk and qb == 3
        ops = ofin_head(qb, t, usepk) + [f"v_cmp_nle_f32 s[{sC2}:{sC2+1}], v{t}, v31", f"v_rcp_f32 v{t}, v{t}"] + ([f"v_mov_b32 v{t+1}, v{t}"] if usepk else [])
        ops += [f"s_or_b64 s[{sBAD}:{sBAD+1}], s[{sBAD}:{sBAD+1}], s[{sC2}:{sC2+1}]"]
        pl.stream(ops, PVpos[i] - 1, min(LAST, PVpos[i] + 7), spread=True, win=0)
        lo = min(LAST, max(ocur, PVpos[i] + 7 + 3))
        hi = min(LAST, lo + 16 * tailq - 4)
        ocur = pl.stream(ofin_body(qb, t, usepk, "OST"), lo, hi, spread=True, win=0)
    for nm, gp in (("q1", 0), ("qhalf", G0[8]), ("qend", NQ - 1), ("ahalf", NQ + 512), ("aend", LAST - 1)) + tuple((f"a{n}", NQ + 128*n) for n in range(1, 8)) + tuple((f"q{n}", G0[n]) for n in range(2, 16)):
        if nm in prof:
            for x in stamp_ins(prof.index(nm)): pl.put(gp, x)
    over = pl.emit()
    print("[k9] overflow per 64 gaps:", [sum(max(0, pl.load(i)-8) for i in range(b, min(b+64, LAST))) for b in range(0, NMF, 64)])
    print(f"[k9] QA mfma={NMF} overflow_cycles={over} tail={pl.load(LAST)}")

    slow = k.label("slow"); sback = k.label("sback")
    k(f"s_cmp_lg_u64 s[{sBAD}:{sBAD+1}], 0"); k(f"s_cbranch_scc1 {slow}")
    k(f"{sback}:")
    O = ool.append
    def OI(t): ool.append(Ins(t))
    OI(f"{slow}:")
    O(loopwait())
    OI(f"s_sub_u32 s{sOKV}, s{sBKV}, s{sM0K}")
    for i in range(4):
        OI(f"s_add_u32 s3, s{sWAVE}, {i}"); OI("s_and_b32 s3, s3, 3"); OI("s_lshl_b32 s3, s3, 6")
        OI(f"v_lshlrev_b32 v{aK+i}, 8, v3"); OI(f"v_lshl_add_u32 v{aK+i}, v2, 4, v{aK+i}"); OI(f"v_add_u32 v{aK+i}, s3, v{aK+i}")
    OI(f"v_lshl_add_u32 v{aV}, v2, 2, v29"); OI(f"v_lshlrev_b32 v{aV}, 8, v{aV}"); OI(f"v_lshl_add_u32 v{aV}, v30, 3, v{aV}"); OI(f"v_add_u32 v{aV}, s{sM0O}, v{aV}"); OI(f"v_add_u32 v{aV}, {zslot(0)}, v{aV}")
    for qb in range(4): OI(f"v_mov_b32 v{MT+qb}, 0xff800000")
    def kload():
        for kb2 in range(2):
            OI(f"s_add_u32 s3, s{sT}, {kb2*4096}")
            for i in range(4): O(unc(f"buffer_load_dwordx4 {q4('a', KB[0] + (kb2*4+i)*4)}, v{aK+i}, s[{sK}:{sK+3}], s3 offen"))
    def smfma(useNM):
        for qb in range(4):
            for kb2 in range(2):
                d = S + qb*8 + kb2*4
                for s in range(4):
                    c = q4('v', d) if s else (q4('v', NM + 4*qb) if useNM else "0")
                    OI(f"{MF} {q4('v', d)}, {q4('a', KB[0] + (kb2*4+s)*4)}, {q4('a', QF + (qb*4+s)*4)}, {c}")
        OI("s_nop 7")
    l1 = k.label("sl1"); l2 = k.label("sl2")
    OI(f"s_mov_b32 s{sT}, s{sOKV}"); OI(f"s_mov_b32 s{sM1}, 0")
    OI(f"{l1}:")
    kload(); O(loopwait()); smfma(False)
    for qb in range(4):
        b = S + qb*8
        for n in range(0, 8, 2): OI(f"v_max3_f32 v{MT+qb}, v{MT+qb}, v{b+n}, v{b+n+1}")
    OI(f"s_add_u32 s{sT}, s{sT}, 8192"); OI(f"s_add_u32 s{sM1}, s{sM1}, 1"); OI(f"s_cmp_lt_u32 s{sM1}, 16"); OI(f"s_cbranch_scc1 {l1}")
    for qb in range(4):
        t = MT + qb
        for sw in ("v_permlane32_swap_b32", "v_permlane16_swap_b32"):
            OI(f"v_mov_b32 v{MT+8}, v{t}"); OI(f"{sw} v{t}, v{MT+8}"); OI(f"v_max_f32 v{t}, v{t}, v{MT+8}")
        for n in range(4): OI(f"v_sub_f32 v{NM+4*qb+n}, 0, v{t}")
    for n in range(8): OI(f"v_mov_b32 v{LS+n}, 0")
    for n in range(128): OI(f"v_mov_b32 v{ACC+n}, 0")
    OI(f"s_mov_b32 s{sT}, s{sOKV}"); OI(f"s_mov_b32 s{sM1}, 0")
    OI(f"{l2}:")
    kload()
    for hf in range(2):
        OI(f"s_add_u32 m0, s{sM0O}, {zslot(0) + hf*4096}"); OI(f"s_add_u32 s3, s{sT}, {hf*4096}")
        for i in range(4): O(unc(f"buffer_load_dwordx4 v{oL}, s[{sV}:{sV+3}], s3 offen{off(i*1024)} lds"))
    O(loopwait())
    for T in range(8):
        for u in range(2): OI(f"ds_read_b64_tr_b16 {q2('a', VB[0] + T*4 + u*2)}, v{aV} offset:{u*4096 + T*32}")
        if T == 3: OI("s_waitcnt lgkmcnt(0)")
    smfma(True)
    for qb in range(4):
        b = S + qb*8
        for n in range(8): OI(f"v_exp_f32 v{b+n}, v{b+n}")
        for n in range(8): OI(f"v_add_f32 v{LS+2*qb+(n&1)}, v{LS+2*qb+(n&1)}, v{b+n}")
        for n in range(4): OI(f"v_cvt_pk_bf16_f32 v{P+4*qb+n}, v{b+2*n}, v{b+2*n+1}")
    OI("s_waitcnt lgkmcnt(0)"); OI("s_nop 1")
    for qb in range(4):
        for T in range(8): OI(f"{MF} {q4('v', acc(T, qb))}, {q4('a', VB[0] + T*4)}, {q4('v', P + 4*qb)}, {q4('v', acc(T, qb))}")
    OI(f"s_add_u32 s{sT}, s{sT}, 8192"); OI(f"s_add_u32 s{sM1}, s{sM1}, 1"); OI(f"s_cmp_lt_u32 s{sM1}, 16"); OI(f"s_cbranch_scc1 {l2}")
    OI("s_nop 7")
    for qb in range(4):
        t = MT + 2*qb
        for x in ofin_head(qb, t, False) + [f"v_rcp_f32 v{t}, v{t}"] + ofin_body(qb, t, False, None): ool.append(x if isinstance(x, Ins) else Ins(x))
    OI(f"s_sub_u32 s{sRW}, s{sRW}, {nwo*32768}"); OI(f"s_and_b32 s{sRW}, s{sRW}, 0xf8000"); OI(f"s_or_b32 s{sOWO}, s{sRW}, s{sBWO}")
    for gi in range(2):
        for n, x in enumerate(WO(gi, tag=False)):
            ool.append(x if isinstance(x, Ins) else Ins(x))
            if n == 0: OI("s_nop 0")
    OI(f"s_add_u32 s{sRW}, s{sRW}, {(nwo-2)*32768}"); OI(f"s_and_b32 s{sRW}, s{sRW}, 0xf8000"); OI(f"s_or_b32 s{sOWO}, s{sRW}, s{sBWO}")
    O(loopwait())
    OI(f"s_branch {sback}")

    sFL, sRO, sBOL, sOOL, sQX, sXB, sXF, sXD, sPB = sROT, sBX, sOX, sKR, sBW, sM0W, sBKV, sOKV, sOO
    aT = 96; aB = 7; oL2 = 10; aS = 4
    XR, GF, XF, PR, YF, SR = 136, 144, 160, 176, 224, 128
    GT = 176
    e1, e2, e3 = sK, sK + 1, sK + 2
    def emit_check(items):
        for x in items:
            if isinstance(x, tuple): k(x[1]); k(x[2])
            else: k(x)
    sKH, sWP = sK + 3, sDBG
    k(f"s_lshr_b32 s{sKH}, s{sWAVE}, 1"); k(f"s_lshl_b32 s3, s{sKH}, 2")
    k("v_lshl_add_u32 v16, v2, 2, v29")
    k("v_bfe_u32 v17, v16, 1, 2"); k("v_lshlrev_b32 v17, 1, v17"); k("v_xor_b32 v17, v17, v30"); k("v_xor_b32 v17, s3, v17")
    k("v_lshlrev_b32 v18, 7, v16"); k(f"v_add_u32 v18, s{sM0O}, v18")
    k(f"v_lshl_add_u32 v{aT}, v17, 4, v18"); k("v_xor_b32 v17, 4, v17"); k(f"v_lshl_add_u32 v{aT+1}, v17, 4, v18")
    for i in range(2): k(f"v_add_u32 v{aT+2+i}, 0x10000, v{aT+i}"); k(f"v_add_u32 v{aT+4+i}, 0x20000, v{aT+i}")
    def treads(gi):
        a = wslot(gi)
        return [Ins(f"ds_read_b64_tr_b16 {q2('a', gi*16 + (i*2+t)*4 + u*2)}, v{aT + 2*(a >> 16) + i} offset:{(a & 0xffff) + u*2048 + t*8}", tag=f"T{gi}")
                for i in range(2) for t in range(2) for u in range(2)]
    st_('tail')
    nxt = nwo
    k.wait(vm="WO4")
    for gi in range(5):
        for x in treads(gi): k(x)
    es = [f"s_lshr_b32 s{e1}, s{sKSL}, 1", f"s_lshl_b32 s{e2}, s{sRT}, 1", f"s_add_u32 s{e1}, s{e1}, s{e2}",
          f"s_and_b32 s{e2}, s{sKSL}, 1", f"s_lshl_b32 s{e2}, s{e2}, 1",
          f"s_lshl_b32 s{e3}, s{e1}, 2", f"s_add_u32 s{e3}, s{e3}, s{e2}", f"s_lshl_b32 s{e3}, s{e3}, 4",
          f"s_and_b32 s{sV}, s{sK1}, 0xffff", f"s_sub_u32 s{sV}, 0xffff, s{sV}", f"s_and_b32 s{sV+1}, s{sK2}, 0xffff", f"s_sub_u32 s{sV+1}, 0xffff, s{sV+1}",
          f"s_sub_u32 s{sV}, s{sV}, s{e3}", f"s_sub_u32 s{sV+1}, s{sV+1}, s{e3}",
          f"s_lshl_b32 s{sST}, s{e3}, 4", f"s_add_u32 s{sST}, s{sST}, {W6_STAT:#x}",
          f"s_and_b32 s{e2}, s{sBWO}, 0x3ff", f"s_lshl_b32 s{e1}, s{sKH}, 6", f"s_add_u32 s{e2}, s{e2}, s{e1}",
          f"s_lshl_b32 s{e3}, s{e3}, 10", f"s_add_u32 s{e3}, s{e3}, s{e2}",
          f"s_lshl_b32 s{e2}, s{e2}, 2", f"s_add_u32 s{sM1}, s{e2}, {W6_YT:#x}", f"s_add_u32 s{e2}, s{e2}, {W6_YP:#x}", f"s_add_u32 s{sV+2}, s{e2}, 4096", f"s_add_u32 s{sV+3}, s{e2}, 8192"]
    for x in es: k(x)
    k(f"s_min_u32 s{sC2}, s{sV}, s{sV+1}"); k(f"s_cmp_lt_u32 s{sC2}, 32"); k(f"s_cselect_b32 s{sM1}, s{sM1}, {OOB:#x}")
    for x in ["v_lshlrev_b32 v24, 10, v3", "v_lshl_add_u32 v24, v2, 4, v24", f"v_add_u32 v24, s{e3}, v24", "v_add_u32 v25, 16384, v24", "v_lshlrev_b32 v6, 4, v3",
              "v_lshrrev_b32 v13, 1, v1", "v_min_u32 v13, 2, v13", "v_lshlrev_b32 v13, 12, v13", "v_and_b32 v27, 1, v1", "v_lshl_add_u32 v13, v27, 7, v13"]: k(x)
    polly = f"buffer_load_dword v12, v13, s[{sWS}:{sWS+3}], s{sM1} offen sc1"
    small = {"p": [Ins(polly, tag="PY")],
             "s": [Ins(f"buffer_load_dword v{SR}, v6, s[{sWS}:{sWS+3}], s{sST} offen sc1", tag="E"), Ins(f"buffer_load_dword v{SR+1}, v6, s[{sWS}:{sWS+3}], s{sST} offen offset:256 sc1", tag="E")],
             "x": [Ins(f"buffer_load_dwordx4 {q4('v', XR)}, v24, s[{sX}:{sX+3}], 0 offen", tag="E"), Ins(f"buffer_load_dwordx4 {q4('v', XR+4)}, v25, s[{sX}:{sX+3}], 0 offen", tag="E")]}
    late_small = []
    for key, its_ in small.items():
        if key in smlate: late_small += its_
        else:
            for x in its_: k(x)
    k.wait(lgkm=0)
    while nxt < nwo + n1:
        for x in WO(nxt): k(x)
        nxt += 1
    if nwo > 5:
        k.wait(vm=f"WO{nwo-1}")
        for gi in range(5, nwo):
            for x in treads(gi): k(x)
    k(f"s_lshl_b32 s3, s{sKH}, 14"); k(f"v_add_u32 v{aB}, s3, v{oL}"); k(f"v_add_u32 v{aB+1}, 0x10000, v{aB}"); k(f"v_add_u32 v{aB+2}, 0x20000, v{aB}"); k(f"v_add_u32 v{oL2}, 2048, v{oL}")
    k(f"s_add_u32 s3, s{sM0O}, {zslot(5)}"); k(f"v_add_u32 v{aS}, s3, v{oL}"); k(f"v_xor_b32 v{aS+1}, 0x4000, v{aS}")
    k("v_and_b32 v21, 7, v1"); k("v_lshlrev_b32 v21, 7, v21")
    k(f"s_lshl_b32 s3, s{sQT}, 12"); k(f"s_lshl_b32 s{sT}, s{sH}, 7"); k(f"s_add_u32 s3, s3, s{sT}"); k(f"s_add_u32 s3, s3, {W6_OF:#x}")
    k(f"s_cmp_eq_u32 s{sWAVE}, 0"); k(f"s_cselect_b32 s3, s3, {OOB:#x}")
    k(f"v_mov_b32 v23, s{sTAG}"); k("v_mov_b32 v20, 0")
    st_('w2iss')
    k.wait(vm="OST", lgkm=0)
    st_('ost')
    k("s_barrier")
    k(f"buffer_store_dword v23, v20, s[{sWS}:{sWS+3}], s3 offen{LO}")
    st_('pub')
    k(f"s_lshr_b32 s{sFL}, s{sRT}, 1"); k(f"s_lshl_b32 s{sFL}, s{sFL}, 12"); k(f"s_lshl_b32 s{sT}, s{sKSL}, 10"); k(f"s_add_u32 s{sFL}, s{sFL}, s{sT}"); k(f"s_add_u32 s{sFL}, s{sFL}, {W6_OF:#x}")
    if poll1:
        k(f"s_cmp_eq_u32 s{sWAVE}, 0"); k(f"s_cselect_b32 s{sFL}, s{sFL}, {OOB:#x}"); k(f"s_cselect_b32 s{sC2+1}, s{sTAG}, 0")
    pollo = f"buffer_load_dword v22, v21, s[{sWS}:{sWS+3}], s{sFL} offen sc1"
    ev = ["v_lshrrev_b32 v27, 1, v2", "v_lshlrev_b32 v27, 7, v27", "v_and_b32 v26, 1, v2", "v_lshl_add_u32 v27, v26, 5, v27", "v_mov_b32 v11, 64"]
    for n, sk in enumerate((sK1, sK2)):
        r = 16 + n
        ev += [f"v_mov_b32 v{r}, s{sk}", f"v_ashrrev_i32 v26, 31, v{r}", "v_not_b32 v26, v26", "v_or_b32 v26, 0x80000000, v26", f"v_xor_b32 v{r}, v{r}, v26", f"v_and_b32 v{r}, 0xffff0000, v{r}",
               f"v_mul_f32 v{r}, 0xbfb8aa3b, v{r}", f"v_exp_f32 v{r}, v{r}", f"v_add_f32 v{r}, 1.0, v{r}", f"v_rcp_f32 v{r}, v{r}", f"v_cvt_pk_bf16_f32 v{r}, v{r}, v{r}", f"v_lshlrev_b32 v{r}, 16, v{r}"]
    for b in range(2):
        ev += [f"v_add_u32 v26, {16*b}, v3", f"v_mov_b32 v31, {OOB:#x}", f"v_cmp_eq_u32 vcc, s{sV}, v26", "v_cndmask_b32 v31, v31, 0, vcc",
               f"v_cmp_eq_u32 vcc, s{sV+1}, v26", "v_cndmask_b32 v31, v31, v11, vcc", f"v_cndmask_b32 v{14+b}, v16, v17, vcc", f"v_add_u32 v{18+b}, v31, v27"]
    ex = [Wait(vm="E")]
    for b in range(2): ex += [f"v_and_b32 v{SR+2+b}, 0xffff0000, v{SR+b}", f"v_rcp_f32 v{SR+2+b}, v{SR+2+b}", f"v_lshlrev_b32 v{SR+b}, 16, v{SR+b}"]
    for i in range(8):
        a, b_, bb = GF + 2*i, GF + 2*i + 1, i >> 2
        ex += [f"v_lshlrev_b32 v{XF+2*i}, 16, v{XR+i}", f"v_and_b32 v{XF+2*i+1}, 0xffff0000, v{XR+i}",
               f"v_sub_f32 v{a}, v{XF+2*i}, v{SR+bb}", f"v_sub_f32 v{b_}, v{XF+2*i+1}, v{SR+bb}", f"v_cvt_pk_bf16_f32 v29, v{a}, v{b_}",
               f"v_lshlrev_b32 v{a}, 16, v29", f"v_and_b32 v{b_}, 0xffff0000, v29", f"v_mul_f32 v{a}, v{a}, v{SR+2+bb}", f"v_mul_f32 v{b_}, v{b_}, v{SR+2+bb}",
               f"v_cvt_pk_bf16_f32 v29, v{a}, v{b_}", f"v_lshlrev_b32 v{a}, 16, v29", f"v_and_b32 v{b_}, 0xffff0000, v29"]
    def mix(vm_items, valu_items):
        nv_ = max(1, sum(1 for x in vm_items if isinstance(x, Ins) and x.kind == "vmem")); per = (len(valu_items) + nv_ - 1) // nv_
        vi = 0
        for x in vm_items:
            k(x)
            if isinstance(x, Ins) and x.kind == "vmem":
                for y in valu_items[vi:vi+per]: k(y)
                vi += per
        for y in valu_items[vi:]: k(y)
    rest = []
    while nxt < 16:
        if nxt == pollat: rest.append(Ins(pollo, tag="POLL"))
        rest += WO(nxt); nxt += 1
    if pollat >= 16 or pollat < nwo + n1: rest.append(Ins(pollo, tag="POLL"))
    mix(rest, ev + (ex if not exlate else []))
    st_('mix')
    k(f"s_lshl_b32 s{sT}, s{sCT}, 1"); k(f"s_add_u32 s{sT}, s{sT}, s{sRT}"); k(f"s_mul_i32 s{sT}, s{sT}, {orot}"); k(f"s_and_b32 s{sT}, s{sT}, 7")
    k(f"s_lshl_b32 s{sRO}, s{sT}, 14"); k(f"s_lshl_b32 s{sT}, s{sKH}, 16"); k(f"s_add_u32 s{sRO}, s{sRO}, s{sT}"); k(f"s_and_b32 s{sT}, s{sM0O}, 0x2000"); k(f"s_add_u32 s{sRO}, s{sRO}, s{sT}")
    k(f"s_lshl_b32 s{sOW}, s{sRT}, 20"); k(f"s_lshl_b32 s{sT}, s{sKSL}, 17"); k(f"s_add_u32 s{sOW}, s{sOW}, s{sT}"); k(f"s_add_u32 s{sOW}, s{sOW}, {WS_O:#x}")
    sQ6 = sDBG + 1
    def quarter(j):
        return [f"s_add_u32 s{sQX}, s{sKSL}, {j+1}", f"s_and_b32 s{sQX}, s{sQX}, 3", f"s_lshr_b32 s{sQ6}, s{sQX}, 1", f"s_lshl_b32 s{sBOL}, s{sQ6}, 19", f"s_add_u32 s{sBOL}, s{sBOL}, s{sOW}",
                f"s_and_b32 s{sQX}, s{sQX}, 1", f"s_lshl_b32 s{sQX}, s{sQX}, 13", f"s_and_b32 s{sWP}, s{sM0O}, 0x2000", f"s_lshr_b32 s{sWP}, s{sWP}, 2", f"s_or_b32 s{sQX}, s{sQX}, s{sWP}",
                f"s_lshl_b32 s{sWP}, s{sRT}, 1", f"s_add_u32 s{sQ6}, s{sQ6}, s{sWP}"]
    CZ = [6, 7, 8, 9, 0, 1, 2, 3, 4]
    def cslot(c): return zslot(CZ[c % 9])
    def OC(c):
        g = (quarter(c >> 2) if c % 4 == 0 else []) + [f"s_add_u32 s{sOOL}, s{sRO}, {(c & 3)*16384}", f"s_and_b32 s{sOOL}, s{sOOL}, 0x1c000", f"s_or_b32 s{sOOL}, s{sOOL}, s{sQX}"]
        if oswz:
            g += [f"s_lshr_b32 s{sWP}, s{sOOL}, 14", f"s_add_u32 s{sWP}, s{sWP}, s{sQ6}", f"s_and_b32 s{sWP}, s{sWP}, 3", f"s_lshl_b32 s{sWP}, s{sWP}, 3", f"s_lshr_b32 s{sWP}, 0x05040100, s{sWP}", f"s_and_b32 s{sWP}, s{sWP}, 5", f"s_lshl_b32 s{sWP}, s{sWP}, 11",
                  f"s_xor_b32 s{sOOL}, s{sOOL}, s{sWP}"]
        g += [f"s_add_u32 s{sOOL}, s{sOOL}, s{sBOL}", f"s_add_u32 m0, s{sM0O}, {cslot(c)}"]
        for b in range(2):
            for a in range(2):
                g.append(Ins(f"buffer_load_dwordx4 v{(oL, oL2)[b]}, s[{sWS}:{sWS+3}], s{sOOL} offen{off(b*2048 + a*1024)}{LL} lds", tag=f"OC{c}"))
        return g
    def ybranch():
        noy = k.label("noy")
        k(f"s_cmp_ge_u32 s{sC2}, 32"); k(f"s_cbranch_scc1 {noy}")
        emit_check(check_items("PY", polly, [f"v_cmp_ne_u32 vcc, s{sTAG}, v12"]))
        for so, base in ((e2, YF), (sV+2, PR), (sV+3, PR+16)):
            for b in range(2):
                for h in range(2): k(unc(f"buffer_load_dwordx4 {q4('v', base + b*8 + h*4)}, v{18+b}, s[{sWS}:{sWS+3}], s{so} offen{off(h*16)} sc1"))
        k(f"{noy}:")
    def ybranch2():
        noy = k.label("noy")
        k(f"s_cmp_ge_u32 s{sC2}, 32"); k(f"s_cbranch_scc1 {noy}")
        for i in range(16): k(f"v_add_f32 v{YF+i}, v{YF+i}, v{PR+i}"); k(f"v_add_f32 v{YF+i}, v{YF+i}, v{PR+16+i}")
        for i in range(8):
            a, b, t, u = GF + 2*i, GF + 2*i + 1, YF + 2*i, YF + 2*i + 1
            rs = 14 + (i >> 2)
            for x in [f"v_cvt_pk_bf16_f32 v29, v{t}, v{u}", f"v_lshlrev_b32 v{t}, 16, v29", f"v_and_b32 v{u}, 0xffff0000, v29",
                      f"v_mul_f32 v{t}, v{t}, v{rs}", f"v_mul_f32 v{u}, v{u}, v{rs}", f"v_cvt_pk_bf16_f32 v29, v{t}, v{u}", f"v_lshlrev_b32 v{t}, 16, v29", f"v_and_b32 v{u}, 0xffff0000, v29",
                      f"v_add_f32 v{a}, v{a}, v{t}", f"v_add_f32 v{b}, v{b}, v{u}", f"v_cvt_pk_bf16_f32 v29, v{a}, v{b}", f"v_lshlrev_b32 v{a}, 16, v29", f"v_and_b32 v{b}, 0xffff0000, v29"]: k(x)
        k(f"{noy}:")
    ybranch()
    st_('w3iss')
    emit_check(check_items("POLL", pollo, [f"v_cmp_ne_u32 vcc, s{sC2+1 if poll1 else sTAG}, v22"]))
    if poll1: k("s_barrier")
    st_('go')
    if nwo < 10:
        k.wait(vm="WO9")
        for gi in range(nwo, 10):
            for x in treads(gi): k(x)
        k.wait(lgkm=0)
    if late_small:
        for x in OC(0) + OC(1) + late_small + OC(2) + OC(3): k(x)
    else: mix(sum((OC(c) for c in range(4)), []), ex if exlate else [])
    k.wait(vm="WO15")
    for gi in range(10, 16):
        for x in treads(gi): k(x)
    if late_small:
        for x in ex: k(x)
    k("s_waitcnt vmcnt(16)")
    assert not late_small
    ybranch2()
    st_('oiss')
    ACO = 32; BF = 200; NB = 12; XS = 112; RD = 96
    assert xbf
    def bread(f):
        c, e, b = f >> 3, (f >> 1) & 3, f & 1
        a = cslot(c) + (e >> 1) * 8192 + (e & 1) * 1024 + b * 2048
        return Ins(f"ds_read_b128 {q4('v', BF + (f % NB)*4)}, v{aB + (a >> 16)} offset:{a & 0xffff}", tag=f"B{f}")
    k.wait(vm="OC0", lgkm=0); k("s_barrier")
    st_('o0')
    AH = 4
    for f in range(AH): k(bread(f))
    k.wait(lgkm="B0")
    po = Plan(k)
    def omf(f, i, t):
        j = f >> 5; g = (f >> 1) & 15; b = f & 1
        a = ACO + (j & 1) * 32 + i * 16 + (b*2 + t) * 4
        po.mfma(f"{MF} {q4('v', a)}, {q4('a', g*16 + (i*2+t)*4)}, {q4('v', BF + (f % NB)*4)}, {q4('v', a) if g else '0'}")
    use = {}
    for f in range(120):
        use[f] = len(po.mf)
        for i in range(2):
            for t in range(2): omf(f, i, t)
    for i in (1, 0):
        for f in range(120, 128):
            use.setdefault(f, len(po.mf))
            for t in range(2): omf(f, i, t)
    cover = {1: 1, 2: 3, 4: 5, 6: 7, 8: 9, 10: 11, 12: 13, 14: 15}
    bgap = {}
    for f in range(AH, 128):
        gp = use[f] - 4 * AH
        if f % 8 == 0 and (f >> 3) in cover:
            c = f >> 3
            po.put(gp - 2, Wait(vm=f"OC{cover[c]}")); bgap[c] = gp
            po.put(gp, "s_barrier")
        po.put(gp, bread(f))
    for f in range(1, 128): po.put(use[f] - 1, Wait(lgkm=f"B{f}"))
    cur = 0
    for c in range(4, 16):
        lo = cur + 1
        if c >= 9: lo = max(lo, min(g for g in bgap.values() if g >= 32 * (c - 8)) + 1)
        cur = po.stream(OC(c), lo, lo + 40, win=3)
    def pair_reduce(j, gw, gb, newbar):
        ab = ACO + (j & 1) * 32
        c = po.stream([Ins(f"ds_write_b128 v{aS}, {q4('v', ab + 16 + n*4)} offset:{n*1024}", tag=f"RW{j}") for n in range(4)], gw, gw + 6, win=1)
        assert c < gb - 1
        po.put(gb - 1, Wait(lgkm=f"RW{j}"))
        if newbar: po.put(gb, "s_barrier")
        return po.stream([Ins(f"ds_read_b128 {q4('v', RD + n*4)}, v{aS+1} offset:{n*1024}", tag=f"RR{j}") for n in range(4)], gb, gb + 6, win=1)
    c0 = po.stream([f"s_lshl_b32 s{sXB}, s{sRT}, 2", f"s_add_u32 s{sXB}, s{sXB}, s{sCT}", f"s_lshl_b32 s{sXB}, s{sXB}, 2",
                    f"s_add_u32 s{sFL}, s{sXB}, s{sKSL}", f"s_lshl_b32 s{sPB}, s{sFL}, 16", f"s_add_u32 s{sPB}, s{sPB}, s{sM0K}", f"s_add_u32 s{sPB}, s{sPB}, {WS_XB:#x}",
                    f"s_lshl_b32 s{sFL}, s{sFL}, 9", f"s_lshl_b32 s{e1}, s{sWAVE}, 7", f"s_add_u32 s{sFL}, s{sFL}, s{e1}", f"s_add_u32 s{sFL}, s{sFL}, {W6_XF:#x}",
                    f"s_add_u32 s{e1}, s{sPB}, 16384", f"s_add_u32 s{e2}, s{sPB}, 32768", f"s_mov_b32 s{e3}, 0",
                    f"s_mov_b32 s{sTS}, s{pOUT}", f"s_mov_b32 s{sTS+1}, s{pOUT+1}", f"s_mov_b32 s{sTS+2}, {SZ['out']:#x}", f"s_mov_b32 s{sTS+3}, 0x00020000"], 0, 90)
    NX = 2 if xbf else 4
    for j in range(3):
        g0 = (j + 1) * 128
        its = [f"s_add_u32 s{sT}, s{sKSL}, {j+1}", f"s_and_b32 s{sT}, s{sT}, 3", f"s_add_u32 s{sT}, s{sT}, s{sXB}",
               f"s_lshl_b32 s{sXD}, s{sT}, 16", f"s_add_u32 s{sXD}, s{sXD}, s{sM0K}", f"s_add_u32 s{sXD}, s{sXD}, {WS_XB + j*16384:#x}"]
        po.stream(its, g0 - 24, g0)
        ab = ACO + (j & 1) * 32
        c = pair_reduce(j, g0 + 4, g0 + 14 if j == 2 else g0 + 48, j == 2)
        c = po.stream([Wait(lgkm=f"RR{j}")] + [f"v_add_f32 v{ab+n}, v{ab+n}, v{RD+n}" for n in range(16)] + [f"v_cvt_pk_bf16_f32 v{XS+n}, v{ab+2*n}, v{ab+2*n+1}" for n in range(8)], c + 5, c + 30)
        sts = [Ins(f"buffer_store_dwordx4 {q4('v', XS + n*4)}, v{oL}, s[{sWS}:{sWS+3}], s{sXD} offen{off(n*1024)}{LX}", tag=f"XS{j}") for n in range(2)]
        c = po.stream(sts, c + 1, c + (8 if j == 2 else 20), win=2, spread=True)
        assert c < g0 + 100
        po.stream([f"s_lshl_b32 s{sXF}, s{sT}, 9", f"s_lshr_b32 s{sT}, s{sM0K}, 5", f"s_add_u32 s{sXF}, s{sXF}, s{sT}", f"s_add_u32 s{sXF}, s{sXF}, {W6_XF + j*4:#x}"], g0 + 40, g0 + 60)
        xd = xdelay if j == 2 else 66
        xfl = po.stream([Wait(vm=f"XS{j}"), Ins(f"buffer_store_dword v23, v20, s[{sWS}:{sWS+3}], s{sXF} offen{LX}")], c + xd, c + xd + 8, win=2)
    gops = ["v_and_b32 v21, 3, v1", "v_min_u32 v21, 2, v21", "v_lshlrev_b32 v21, 2, v21"]
    for i in range(8):
        a, b, t, u = GF + 2*i, GF + 2*i + 1, GT + 2*i, GT + 2*i + 1
        gops += [f"v_mul_f32 v{t}, 0xbfb8aa3b, v{a}", f"v_mul_f32 v{u}, 0xbfb8aa3b, v{b}", f"v_exp_f32 v{t}, v{t}", f"v_exp_f32 v{u}, v{u}",
                 f"v_add_f32 v{t}, 1.0, v{t}", f"v_add_f32 v{u}, 1.0, v{u}", f"v_rcp_f32 v{t}, v{t}", f"v_rcp_f32 v{u}, v{u}",
                 f"v_mul_f32 v{a}, v{a}, v{t}", f"v_mul_f32 v{b}, v{b}, v{u}", f"v_cvt_pk_bf16_f32 v29, v{a}, v{b}",
                 f"v_lshlrev_b32 v{a}, 16, v29", f"v_and_b32 v{b}, 0xffff0000, v29"]
    po.stream(gops, 20, 125)
    pair_reduce(3, 499, 507, True)
    pollx = f"buffer_load_dword v22, v21, s[{sWS}:{sWS+3}], s{sFL} offen sc1"
    def ploads(js, counted):
        o = []
        for n in range(NX):
            for j in js:
                t = f"buffer_load_dwordx4 {q4('v', PR + (n*3+j)*4)}, v{oL}, s[{sWS}:{sWS+3}], s{(sPB, e1, e2)[j]} offen{off(n*1024)} sc1"
                o.append(Ins(t, tag=f"P{n}") if counted else unc(t))
        return o
    if early_p:
        po.put(xfl - 36, Ins(f"buffer_load_dword v30, v21, s[{sWS}:{sWS+3}], s{sFL} offen sc1", tag="XQ1"))
        sk = k.label("skipp")
        g = (xfl + 2) & ~1
        po.put(g, Wait(vm="XQ1")); po.put(g, f"v_cmp_ne_u32 s[{sC2}:{sC2+1}], s{sTAG}, v30")
        po.put(g + 2, f"s_and_b32 s{sC2}, s{sC2}, 0x33333333"); po.put(g + 2, f"s_cbranch_scc1 {sk}", cls="s")
        for x in ploads((0, 1), False): po.put(g + 2, x, cls="s")
        po.put(g + 2, f"s_mov_b32 s{e3}, 1", cls="s"); po.put(g + 2, f"{sk}:", cls="s")
    po.put(511 - xpoll, Ins(pollx, tag="XPOLL"))
    for nm, gp in (("o4", 64), ("o8", 128), ("o16", 256), ("o24", 384)):
        if nm in prof:
            for x in stamp_ins(prof.index(nm)): po.put(gp, x)
    ov = po.emit()
    print("[k9] phase O overflow", ov, "tail", po.load(511))
    st_('oend')
    emit_check(check_items("XPOLL", pollx, [f"v_cmp_ne_u32 vcc, s{sTAG}, v22"]))
    st_('xgo')
    hv = k.label("havep")
    k(f"s_cmp_lg_u32 s{e3}, 0"); k(f"s_cbranch_scc1 {hv}")
    for x in ploads((0, 1), False): k(x)
    k(f"{hv}:")
    for x in ploads((2,), True): k(x)
    OUTR = 128
    k.wait(lgkm=0)
    for n in range(16): k(f"v_add_f32 v{ACO+32+n}, v{ACO+32+n}, v{RD+n}")
    for b in range(2):
        if xbf:
            k.wait(vm=f"P{b}")
            a = ACO + 32 + b*8
            for j in range(3):
                r = PR + (b*3 + j)*4
                for m_ in range(4):
                    k(f"v_lshlrev_b32 v29, 16, v{r+m_}"); k(f"v_and_b32 v30, 0xffff0000, v{r+m_}")
                    k(f"v_add_f32 v{a+2*m_}, v{a+2*m_}, v29"); k(f"v_add_f32 v{a+2*m_+1}, v{a+2*m_+1}, v30")
        for t in range(2):
            n = b*2 + t
            a = ACO + 32 + n*4
            if not xbf:
                k.wait(vm=f"P{n}")
                r = PR + n*12
                for m_ in range(4): k(f"v_add_f32 v{a+m_}, v{a+m_}, v{r+m_}"); k(f"v_add_f32 v{r+4+m_}, v{r+4+m_}, v{r+8+m_}")
                for m_ in range(4): k(f"v_add_f32 v{a+m_}, v{a+m_}, v{r+4+m_}")
            for h in range(2):
                e = b*8 + t*4 + h*2
                x0, x1 = a + 2*h, a + 2*h + 1
                k(f"v_cvt_pk_bf16_f32 v29, v{x0}, v{x1}")
                k(f"v_lshlrev_b32 v{x0}, 16, v29"); k(f"v_and_b32 v{x1}, 0xffff0000, v29")
                k(f"v_mul_f32 v{x0}, v{x0}, v{GF+e}"); k(f"v_mul_f32 v{x1}, v{x1}, v{GF+e+1}")
                k(f"v_cvt_pk_bf16_f32 v29, v{x0}, v{x1}")
                k(f"v_lshlrev_b32 v{x0}, 16, v29"); k(f"v_and_b32 v{x1}, 0xffff0000, v29")
                k(f"v_add_f32 v{x0}, v{x0}, v{XF+e}"); k(f"v_add_f32 v{x1}, v{x1}, v{XF+e+1}")
                k(f"v_cvt_pk_bf16_f32 v{OUTR + b*4 + t*2 + h}, v{x0}, v{x1}")
        k(f"buffer_store_dwordx4 {q4('v', OUTR + b*4)}, v{24+b}, s[{sTS}:{sTS+3}], 0 offen")
    if prof:
        k("s_waitcnt vmcnt(0)"); stamp(k, 7)
        if dbgout:
            k(f"s_load_dwordx2 s[{sDBG}:{sDBG+1}], s[0:1], {KA['dbg']}")
            k("s_waitcnt lgkmcnt(0)")
            k(f"s_mov_b32 s{sDBG+2}, 256"); k(f"s_mov_b32 s{sDBG+3}, 0x00020000")
            k("v_mov_b32 v1, 0"); k("s_mov_b64 exec, 1")
            k(f"s_cmp_eq_u32 s{sWAVE}, 0"); k("s_cselect_b32 s3, 0, 0x1000")
            for i in range(8):
                k(f"s_sub_u32 s{sT}, s{SB+4*i}, s{sTAG}"); k(f"s_add_u32 s{sT}, s{sT}, 1000"); k(f"v_mov_b32 v2, s{sT}")
                k(f"buffer_atomic_umax v2, v1, s[{sDBG}:{sDBG+3}], s3 offen offset:{4+4*i}"); k("s_nop 1")
        else: stamp_dump(k, 8, sWS, sWAVE, 0)
    k(f"{end}:")
    k("s_endpgm")
    k("s_waitcnt vmcnt(0) lgkmcnt(0)")
    for x in ool: k(x)
    if spin_sites: print("spin sites", spin_sites)
    return k, 512, 256
```

```python
from build9 import build
P=['start','aend','pub','go','o0','oend','xgo']
V = {"a": dict(), "b": dict(poll1=True), "c": dict(nwo=8), "d": dict(nwo=8, poll1=True), "e": dict(xdelay=36), "f": dict(xdelay=24, xpoll=10)}
for n, kw in V.items(): build(f"v9{n}.s", prof=P, **kw)
build("t9.s"); build("t9d.s", nwo=8, poll1=True)
```

```python
import re

REG_RE = re.compile(r'\b([vas])\[(\d+):(\d+)\]|\b([vas])(\d+)\b|\b(vcc|exec|m0|scc)\b')

def regs_of(tok):
    out = []
    for m in REG_RE.finditer(tok):
        if m.group(1):
            out += [(m.group(1), i) for i in range(int(m.group(2)), int(m.group(3)) + 1)]
        elif m.group(4):
            out.append((m.group(4), int(m.group(5))))
        else:
            out.append((m.group(6), 0))
    return out

TRANS = ("v_exp_f32", "v_log_f32", "v_rcp_f32", "v_rsq_f32", "v_sqrt_f32", "v_sin_f32", "v_cos_f32")

class Ins:
    __slots__ = ("text", "op", "defs", "uses", "kind", "tag", "wait", "srcc", "comment")
    def __init__(self, text, tag=None):
        self.text = text; self.tag = tag; self.wait = None; self.srcc = []
        t = text.split(";")[0].strip()
        if t.endswith(":") or t.startswith("."):
            self.op = "label" if t.endswith(":") else "dir"; self.kind = "label"; self.defs = []; self.uses = []; return
        sp = t.split(None, 1)
        op = sp[0]; self.op = op
        rest = sp[1] if len(sp) > 1 else ""
        ops = [o.strip() for o in re.split(r',(?![^\[]*\])', rest)] if rest else []
        R = [regs_of(o) for o in ops]
        flat = lambda l: [x for y in l for x in y]
        d, u = [], []
        if op.startswith("v_mfma"):
            self.kind = "mfma"; d = R[0]; u = flat(R[1:]); self.srcc = R[3]
        elif op.startswith("ds_read") or op.startswith("ds_bpermute") or op.startswith("ds_swizzle") or op.startswith("ds_permute"):
            self.kind = "ds"; d = R[0]; u = flat(R[1:])
        elif op.startswith("ds_"):
            self.kind = "ds"; u = flat(R)
        elif op.startswith("buffer_load") or op.startswith("global_load"):
            self.kind = "vmem"
            if re.search(r'\blds\b', rest) or "_lds_" in op:
                u = flat(R) + [("m0", 0)]
            else:
                d = R[0]; u = flat(R[1:])
        elif op.startswith("buffer_store") or op.startswith("global_store"):
            self.kind = "vmem"; u = flat(R)
        elif op.startswith("buffer_atomic") or op.startswith("global_atomic"):
            self.kind = "vmem"; u = flat(R)
            if re.search(r'\bsc0\b', rest): d = R[0]
        elif op.startswith("buffer_inv") or op.startswith("buffer_wbl2"):
            self.kind = "vmem"
        elif op.startswith("s_load") or op.startswith("s_memtime") or op.startswith("s_memrealtime"):
            self.kind = "smem"; d = R[0]; u = flat(R[1:])
        elif op in ("s_waitcnt", "s_barrier", "s_nop", "s_endpgm", "s_sleep", "s_setprio") or op.startswith("s_branch") or op.startswith("s_cbranch"):
            self.kind = "ctl"
            if "scc" in op: u = [("scc", 0)]
            if "vcc" in op: u = [("vcc", 0)]
            if "exec" in op: u = [("exec", 0)]
        elif op.startswith("s_cmp") or op.startswith("s_bitcmp"):
            self.kind = "salu"; d = [("scc", 0)]; u = flat(R)
        elif op.startswith("s_"):
            self.kind = "salu"; d = R[0] + [("scc", 0)]; u = flat(R[1:])
            if "saveexec" in op: d = d + [("exec", 0)]; u = u + [("exec", 0)]
            if op.startswith("s_addc") or op.startswith("s_subb") or op.startswith("s_cselect"): u = u + [("scc", 0)]
            if op.startswith("s_mov") or op.startswith("s_getpc") or op.startswith("s_cselect") or op.startswith("s_mul") or op.startswith("s_getreg"): d = R[0]
        elif op.startswith("v_"):
            self.kind = "valu"
            if op.startswith("v_permlane") and "swap" in op:
                d = R[0] + R[1]; u = R[0] + R[1]
            elif op.startswith("v_add_co") or op.startswith("v_sub_co") or op.startswith("v_addc_co") or op.startswith("v_subb_co"):
                d = R[0] + R[1]; u = flat(R[2:])
            else:
                d = R[0]; u = flat(R[1:])
                if op.startswith("v_fmac") or op.startswith("v_dot2c") or op.startswith("v_writelane") or "_dpp" in op or "dpp" in rest or "row_" in rest or "quad_perm" in rest:
                    u = u + R[0]
        else:
            raise ValueError("unknown op " + text)
        self.defs = d; self.uses = u

    def is_dpp(self):
        return "_dpp" in self.op or "row_" in self.text or "quad_perm" in self.text
    def is_trans(self):
        return any(self.op.startswith(t) for t in TRANS)
    def states(self):
        if self.kind == "label": return 0
        if self.op == "s_nop": return int(self.text.split()[1], 0) + 1
        return 1
    def passes(self):
        if "16x16x32" in self.op: return 4
        if "32x32x16" in self.op: return 8
        raise ValueError(self.op)

class Wait(Ins):
    def __init__(self, vm=None, lgkm=None):
        Ins.__init__(self, "s_waitcnt vmcnt(0)")
        self.wait = (vm, lgkm)

class Kern:
    def __init__(self, name):
        self.name = name; self.ins = []; self._lab = 0
    def I(self, text, tag=None):
        if isinstance(text, Ins): self.ins.append(text); return text
        if isinstance(text, (list, tuple)):
            for t in text: self.I(t)
            return
        i = Ins(text, tag); self.ins.append(i); return i
    __call__ = I
    def label(self, base="L"):
        self._lab += 1; return f"{self.name}_{base}{self._lab}"
    def wait(self, vm=None, lgkm=None): self.ins.append(Wait(vm, lgkm))

    def resolve(self):
        vm = []; lg = []; waited = set()
        for i in self.ins:
            if i.kind in ("vmem", "ds", "smem") and i.tag is not None:
                assert i.tag not in waited, f"op tagged {i.tag} issued after a wait on that tag: {i.text}"
            if isinstance(i, Wait):
                v, l = i.wait
                if v: waited.add(v)
                if l: waited.add(l)
                parts = []
                if v is not None:
                    if v == 0: n = 0
                    else:
                        idx = [k for k, t in enumerate(vm) if t == v]
                        assert idx, f"vm tag {v} not issued before wait in {self.name}"
                        n = len(vm) - 1 - idx[-1]
                    n = min(n, 52)
                    parts.append(f"vmcnt({n})")
                if l is not None:
                    if l == 0: n = 0
                    else:
                        idx = [k for k, t in enumerate(lg) if t == l]
                        assert idx, f"lgkm tag {l} not issued"
                        n = len(lg) - 1 - idx[-1]
                    n = min(n, 15)
                    parts.append(f"lgkmcnt({n})")
                i.text = "s_waitcnt " + " ".join(parts)
            elif i.kind == "vmem": vm.append(i.tag)
            elif i.kind == "ds": lg.append(i.tag)

    def check(self, verbose=True):
        errs = []
        ins = self.ins
        pos = []; p = 0
        for i in ins:
            pos.append(p); p += i.states()
        lastw = {}
        lastc = {}
        laststore = {}
        pend_vm = []; pend_lg = []
        def dist(a, b):
            return pos[b] - pos[a] - ins[a].states() + (ins[a].states() - 1 if ins[a].op == "s_nop" else 0)
        for k, i in enumerate(ins):
            if i.kind == "label": continue
            if i.op == "s_waitcnt":
                m = re.search(r'vmcnt\((\d+)\)', i.text)
                if m:
                    n = int(m.group(1)); pend_vm = pend_vm[len(pend_vm) - n:] if n < len(pend_vm) else pend_vm
                    if n == 0: pend_vm = []
                m = re.search(r'lgkmcnt\((\d+)\)', i.text)
                if m:
                    n = int(m.group(1))
                    if n == 0: pend_lg = []
                    else:
                        sm = [e for e in pend_lg if ins[e[0]].kind == "smem"]; dsl = [e for e in pend_lg if ins[e[0]].kind != "smem"]
                        pend_lg = sm + (dsl[len(dsl) - n:] if n < len(dsl) else dsl)
                continue
            touched = set(i.defs) | set(i.uses)
            for (j, ds) in pend_vm + pend_lg:
                if ds & touched:
                    errs.append(f"[wait] {self.name}#{k} '{i.text}' touches pending dst of #{j} '{ins[j].text}'")
            def need(j, n, why):
                d = pos[k] - pos[j] - ins[j].states()
                if d < n: errs.append(f"[haz {why}] {self.name}#{k} '{i.text}' needs {n} states after #{j} '{ins[j].text}', has {d}")
            for r in set(i.uses):
                j = lastw.get(r)
                if j is None: continue
                w = ins[j]
                if w.kind == "valu" and r[0] in "va":
                    if i.kind == "mfma": need(j, 2, "valu->mfma")
                    if i.kind == "valu":
                        if w.is_trans() and not i.is_trans(): need(j, 1, "trans")
                        if i.op.startswith("v_permlane"): need(j, 2, "permlane")
                        if i.is_dpp(): need(j, 2, "dpp")
                        if i.op.startswith("v_readlane") or i.op.startswith("v_readfirstlane"): need(j, 1, "readlane")
                    if w.is_trans() and i.kind in ("vmem", "ds"): need(j, 1, "trans->mem")
                if w.kind == "valu" and (r[0] == "s" or r[0] == "vcc"):
                    if i.kind == "valu": need(j, 4 if i.op.startswith("v_readlane") or i.op.startswith("v_writelane") else 2, "valu sgpr->valu")
                    if i.kind == "vmem": need(j, 5, "valu sgpr->vmem")
                    if i.kind in ("salu", "ctl", "smem"): need(j, 1, "valu sgpr->salu(pad)")
                if w.kind == "salu" and r == ("m0", 0) and i.kind == "vmem": need(j, 1, "m0")
                if w.kind == "mfma":
                    ps = w.passes()
                    if i.kind == "mfma":
                        if r in i.srcc and r not in (set(i.uses) - set(i.srcc)):
                            if i.srcc == w.defs and i.passes() == ps: pass
                            else: need(j, {4: 6, 8: 10}[ps], "mfma D->C overlap")
                        else: need(j, {4: 8, 8: 12}[ps], "mfma D->AB")
                    else: need(j, {4: 8, 8: 12}[ps], "mfma D->read")
            for r in set(i.defs):
                j = lastw.get(r)
                if j is not None and ins[j].kind == "mfma" and i.kind != "mfma":
                    need(j, {4: 8, 8: 12}[ins[j].passes()], "mfma D WAW")
                if j is not None and ins[j].kind == "mfma" and i.kind == "mfma" and r not in i.srcc:
                    need(j, {4: 6, 8: 10}[ins[j].passes()], "mfma D WAW mfma")
                j = lastc.get(r)
                if j is not None and i.kind == "valu": need(j, {4: 3, 8: 7}[ins[j].passes()], "srcC WAR")
                j = laststore.get(r)
                if j is not None: need(j, 2 if i.kind == "valu" else 1, "store WAR")
            for r in i.defs: lastw[r] = k
            if i.kind == "mfma":
                for r in i.srcc: lastc[r] = k
            if i.kind == "vmem" and ("store_dwordx4" in i.op or "store_dwordx3" in i.op):
                for r in i.uses:
                    if r[0] in "va": laststore[r] = k
            if i.kind == "vmem":
                pend_vm.append((k, set(i.defs)))
                if len(pend_vm) > 63: errs.append(f"[vmcnt>63] {self.name}#{k} {i.text}")
            if i.kind in ("ds", "smem"): pend_lg.append((k, set(i.defs)))
        return errs

    def text(self):
        out = []
        for i in self.ins:
            out.append(i.text if i.kind == "label" else "  " + i.text)
        return "\n".join(out)

    def nbytes_est(self):
        return sum(0 if i.kind == "label" else (4 if i.kind in ("ctl", "salu") else 8) for i in self.ins)

def weave(k, mfmas, gaps):
    for i, m in enumerate(mfmas):
        if m is not None: k.I(m)
        g = gaps.get(i, []) if isinstance(gaps, dict) else gaps[i]
        for x in g: k.I(x)

def kernel_text(k, vgprs, accum, sgprs=96):
    n = k.name
    return (f".globl {n}\n.p2align 8\n.type {n},@function\n{n}:\n" + k.text() + "\n")

def desc_text(name, nfv, accum, sgprs=102):
    return (f".p2align 6\n.amdhsa_kernel {name}\n  .amdhsa_next_free_vgpr {nfv}\n  .amdhsa_next_free_sgpr {sgprs}\n"
            f"  .amdhsa_accum_offset {accum}\n  .amdhsa_group_segment_fixed_size 0\n  .amdhsa_kernarg_size 104\n"
            f"  .amdhsa_user_sgpr_count 2\n  .amdhsa_user_sgpr_kernarg_segment_ptr 1\n  .amdhsa_system_sgpr_workgroup_id_x 1\n"
            f"  .amdhsa_float_denorm_mode_32 3\n"
            f".end_amdhsa_kernel\n")

def fix_hazards(k, maxit=50):
    for _ in range(maxit):
        errs = [e for e in k.check() if e.startswith("[haz")]
        if not errs: return
        need = {}
        for e in errs:
            m = re.match(r"\[haz [^\]]*\] \S+?#(\d+) .* needs (\d+) states after #\d+ .*, has (-?\d+)$", e)
            idx, n, d = int(m.group(1)), int(m.group(2)), int(m.group(3))
            need[idx] = max(need.get(idx, 0), n - d)
        for idx in sorted(need, reverse=True):
            n = need[idx]
            while n > 0:
                c = min(n, 16)
                k.ins.insert(idx, Ins(f"s_nop {c-1}"))
                n -= c
    raise RuntimeError("hazard fixing did not converge")

class Sched:
    def __init__(self, k, budget=8):
        self.k = k; self.mf = []; self.vq = []; self.other = {}; self.budget = budget; self.pre = {}
    def mfma(self, text, needs=()):
        self.mf.append((text, set(needs))); return len(self.mf) - 1
    def valu(self, text, ready=-1, cost=None):
        if cost is None: cost = 8 if any(text.startswith(t) for t in TRANS) else 4
        self.vq.append((text, ready, cost)); return len(self.vq) - 1
    def at(self, gap, item):
        self.other.setdefault(gap, []).append(item)
    def before(self, idx, item):
        self.pre.setdefault(idx, []).append(item)
    def emit(self):
        k = self.k; head = 0; stats = []
        for i, (m, needs) in enumerate(self.mf):
            forced = 0
            if needs:
                mx = max(needs)
                while head <= mx:
                    assert self.vq[head][1] < i, f"valu '{self.vq[head][0]}' ready {self.vq[head][1]} but needed before mfma {i}"
                    k.I(self.vq[head][0]); forced += self.vq[head][2]; head += 1
            for x in self.pre.get(i, []): k.I(x)
            k.I(m)
            for x in self.other.get(i, []): k.I(x)
            b = self.budget
            while head < len(self.vq) and self.vq[head][1] <= i and self.vq[head][2] <= b:
                k.I(self.vq[head][0]); b -= self.vq[head][2]; head += 1
            stats.append(forced)
        rest = 0
        while head < len(self.vq):
            k.I(self.vq[head][0]); rest += self.vq[head][2]; head += 1
        extra = [g for g in self.other if g >= len(self.mf) or g < 0]
        assert not extra, extra
        return sum(stats), rest

def hazard_gap(a, b):
    if a.kind != "valu": return False
    dep = set(a.defs) & set(b.uses)
    if not dep: return False
    if b.kind == "valu" and (b.is_dpp() or b.op.startswith("v_permlane") or b.op.startswith("v_read") or a.is_trans()): return True
    return any(r[0] in ("s", "vcc") for r in dep)

class Plan:
    def __init__(self, k):
        self.k = k; self.mf = []; self.g = {}; self.mslots = set(); self.vgap = 0; self.vms = set(); self.mlimit = 12; self.vcost = 4
    def mfma(self, text):
        self.mf.append(text); return len(self.mf) - 1
    def _g(self, i):
        return self.g.setdefault(i, {"s": [], "m": [], "v": []})
    @staticmethod
    def mk(x): return x if isinstance(x, Ins) else Ins(x)
    @staticmethod
    def cls(x):
        if x.kind in ("ds", "vmem"): return "m"
        if x.kind == "valu": return "v"
        return "s"
    def cost(self, x):
        if x.kind == "valu": return 8 if x.is_trans() else 4
        if x.kind == "label": return 0
        if x.kind == "vmem": return self.vcost
        return 4
    def load(self, i):
        g = self._g(i)
        return sum(self.cost(x) for x in g["m"]) + sum(self.cost(x) for x in g["v"]) + 4 * max(0, len(g["s"]) - 1)
    def put(self, i, x, cls=None):
        x = self.mk(x); self._g(i)[cls or self.cls(x)].append(x)
        if x.kind == "vmem": self.vms.add(i)
        return i
    def fit(self, x, lo, hi, strict_after=None):
        x = self.mk(x); c = self.cls(x)
        hi = max(hi, lo)
        best = None
        for i in range(lo, hi + 1):
            g = self._g(i)
            if c == "s":
                add = 0 if not g["s"] else 4
                if add == 0 and not (g["m"] and self.load(i) >= 8 and False): return self.put(i, x)
                l = self.load(i) + add
            else:
                l = self.load(i) + self.cost(x)
                if c == "m" and g["m"]: l += 2
            if l <= 8: return self.put(i, x)
            if best is None or l < best[0]: best = (l, i)
        return self.put(best[1], x)
    def stream(self, items, lo, hi, spread=False, win=None, only=None):
        order = {"s": 0, "m": 1, "v": 2}
        cur = lo; pc = -1; n = len(items); prev = None
        for idx, x in enumerate(items):
            x = self.mk(x); c = order[self.cls(x)]
            start = cur if c >= pc else cur + 1
            if prev is not None and ("m0", 0) in prev.defs and ("m0", 0) in x.uses: start = cur + 1
            if prev is not None and hazard_gap(prev, x): start = max(start, cur + 1)
            if spread: start = max(start, lo + (idx * (hi - lo + 1)) // n)
            g, cc = self.fit_inorder(x, start, hi, win, only)
            cur = g; pc = order[cc]; prev = x
        return cur
    def fit_inorder(self, x, start, hi, win=None, only=None):
        c = self.cls(x)
        if start > hi:
            return self.put(hi, x, cls="v"), "v"
        if x.kind == "vmem" and self.vgap:
            st2 = start
            while st2 <= hi and any((st2 + d) in self.vms for d in range(-self.vgap + 1, self.vgap)): st2 += 1
            if st2 <= hi: start = st2
        top = hi if win is None else min(hi, start + win)
        for i in range(start, top + 1):
            g = self._g(i)
            if c == "s":
                if not g["s"]: return self.put(i, x), c
            else:
                l = self.load(i) + self.cost(x)
                if c == "m" and g["m"]: continue
                if c == "m" and only is not None and i not in only: continue
                if c == "v" and i in self.mslots and not g["m"]: l += 4
                if l <= (self.mlimit if c == "m" and i in self.mslots else 8): return self.put(i, x), c
        if win is None: return self.put(hi, x, cls="v"), "v"
        best = min(range(start, top + 1), key=lambda i: (self.load(i) + (4 if c == "m" and self._g(i)["m"] else 0), i))
        return self.put(best, x), c
    def emit(self):
        k = self.k; over = 0
        keys = sorted(self.g)
        assert keys[0] >= -1 and keys[-1] <= len(self.mf) - 1, (keys[0], keys[-1], len(self.mf))
        for i in range(-1, len(self.mf)):
            if i >= 0: k.I(self.mf[i])
            g = self.g.get(i)
            if g:
                for c in "smv":
                    for x in g[c]: k.I(x)
                if 0 <= i < len(self.mf) - 1: over += max(0, self.load(i) - 8)
        return over
```

```python
from asmlib import *
from common import *
import struct

MF = "v_mfma_f32_16x16x32_bf16"
def q4(f, r): return f"{f}[{r}:{r+3}]"
def q2(f, r): return f"{f}[{r}:{r+1}]"
def off(o): return f" offset:{o}" if o else ""

aW, aK, aV, oK, oV, oW, oL = 4, 8, 12, 20, 24, 26, 28
AF = 32; SB3 = (32, 40, 96); S = 32; P = 64; NM = 80; LS = 48; CS0 = 96; CSX = 104; STAT = 112; aX = 12; oX = 120; oWO = 120; ONES = 124; ACC = 128
MACC = 116; MT = 104
QF = 0
KB = [64, 96, 192]; VB = [128, 160, 224]
MA = 192
def acc(T, qb): return ACC + (T * 4 + qb) * 4
sX, sWS, sWQ, sK, sV, sWO = 4, 8, 12, 16, 20, 24
pWG, pWU, pWD, pOUT = 28, 30, 32, 34
sDBG = 36
sBAD = 40; sCMP = 42
(sWAVE, sH, sQT, sKSL, sRT, sCT, sM0K, sM0O, sROT, sBW, sOW, sBX, sOX, sM0W, sKR, sT, sBKV, sOKV, sRW, sBWO, sOWO, sOO, sST, sK1, sK2, sM1) = range(44, 70)
sTAG = 43
sC2 = 38
sTS = sWQ
def f32(x): return struct.unpack("<I", struct.pack("<f", x))[0]
QSCALE = f32(1.4426950408889634 * 128 ** -0.5)
OOB = 0x40000000
WREG = [2, 3, 4, 0, 1]
def zslot(z): return WREG[z >> 1] * 32768 + (z & 1) * 4096
def wslot(g): return zslot(g % 10)
R4 = 131072
OSTR = 17664
XSTR = 3328
XREG = [3, 4, 2]
DPP4 = ("quad_perm:[1,0,3,2] row_mask:0xf bank_mask:0xf", "quad_perm:[2,3,0,1] row_mask:0xf bank_mask:0xf",
        "row_half_mirror row_mask:0xf bank_mask:0xf", "row_mirror row_mask:0xf bank_mask:0xf")

def gen_k15(name, prof=False, tailq=3, codepf=1, pk=True, kvpf=7, n1=0, pollat=14, xrot=0, opre=6, xdelay=36, xpoll=24, force_slow=False, early_p=True, dbgout=False, ntr=9, kv0=8, xd01=30, amap=8, touch=None, w1sp=True, nt='', exp=(), nwo=10, xbf=True, omap=0, tstart=0.5, lwfirst=False, vpace=4, qrot=0, crot=2, krot=0, kv1=9, orot=1):
    k = Kern(name)
    if not prof: prof = []
    LO = '' if 'localo' in exp else ' sc1'; LX = '' if 'localx' in exp else ' sc1'
    LL = '' if 'plainld' in exp else ' sc0' if 'sc0ld' in exp else ' nt' if 'ntld' in exp else ' sc1'
    def F1(t, key): return t.replace(' sc1', '') if key in plain1 else t
    def NT(c): return ' nt' if c in nt else ''
    def st_(nm):
        if nm == probe:
            k("s_sleep 64"); k("s_sleep 64")
        if nm in prof: stamp(k, prof.index(nm))
    end = k.label("end")
    ool = []
    spin_sites = []
    def unc(text):
        i = Ins(text); i.kind = "vmem_uncounted"; return i
    def loopwait():
        i = Ins("s_waitcnt vmcnt(0)"); i.op = "s_waitcnt_loop"; return i
    def check_items(tag, load_text, cmp_ops):
        sp = k.label("spin"); lp = k.label("splp"); bk = k.label("back")
        ool.extend([Ins(f"{sp}:"), Ins(f"s_mov_b32 s{sCMP}, 0"), Ins(f"{lp}:")] + [unc(t) for t in ([load_text] if isinstance(load_text, str) else load_text)] + [loopwait()] + [Ins(c) for c in cmp_ops] +
                   [Ins("s_nop 1"), Ins(f"s_cbranch_vccz {bk}"), Ins(f"s_add_u32 s{sCMP}, s{sCMP}, 1"), Ins(f"s_cmp_lt_u32 s{sCMP}, 0x40000"), Ins(f"s_cbranch_scc1 {lp}"), Ins(f"s_branch {bk}")])
        if "spincnt" in exp:
            site = len(spin_sites); spin_sites.append(tag)
            idx = [n for n, x in enumerate(ool) if x.text == f"{lp}:"][0]
            ool[idx+1:idx+1] = [Ins("s_mov_b64 s[98:99], exec"), Ins("s_mov_b64 exec, 1"), Ins("v_accvgpr_write_b32 a255, v0") if False else Ins("s_nop 0"),
                                Ins(f"v_mov_b32 v0, {4 + 4*site}"), unc(f"global_atomic_add v0, v0, s[{sDBG}:{sDBG+1}]"), Ins("s_mov_b64 exec, s[98:99]")]
        return [Wait(vm=tag)] + list(cmp_ops) + [("br", f"s_cbranch_vccnz {sp}", f"{bk}:")]
    def pstream(pl, items, lo, hi, **kw):
        cur = lo; buf = []
        def flush():
            nonlocal cur, buf
            if buf: cur = pl.stream(buf, cur, hi, **kw); buf = []
        for x in items:
            if isinstance(x, tuple):
                flush()
                cur += 1
                while pl._g(cur)["s"]: cur += 1
                pl.put(cur, x[1]); pl.put(cur, x[2], cls="s")
            else: buf.append(x)
        flush()
        return cur

    k("s_cmp_ge_u32 s2, 256"); k(f"s_cbranch_scc1 {end}")
    for e_ in exp:
        if e_.startswith("dly"):
            lab = k.label("nd")
            cond = {"dlylo": ["s_cmp_lt_u32 s2, 128"], "dlyhi": ["s_cmp_ge_u32 s2, 128"], "dlyall": ["s_cmp_ge_u32 s2, 0"], "dlyx": ["s_and_b32 s3, s2, 7", "s_cmp_lt_u32 s3, 4"], "dlyy": ["s_and_b32 s3, s2, 7", "s_cmp_ge_u32 s3, 4"]}[e_]
            for c_ in cond: k(c_)
            k(f"s_cbranch_scc0 {lab}"); k("s_sleep 112"); k(f"{lab}:")
    if "badmap" in exp:
        k("s_lshr_b32 s3, s2, 5"); k("s_and_b32 s2, s2, 31"); k("s_lshl_b32 s2, s2, 3"); k("s_or_b32 s2, s2, s3")
    st_('start')
    k(f"s_memrealtime s[{sK1 & ~1}:{(sK1 & ~1) + 1}]")
    k(f"s_load_dwordx2 s[{sX}:{sX+1}], s[0:1], {KA['x']}")
    k(f"s_load_dwordx2 s[{sWQ}:{sWQ+1}], s[0:1], {KA['wq']}")
    k(f"s_load_dwordx2 s[{sBAD}:{sBAD+1}], s[0:1], {KA['wr']}")
    k(f"s_load_dwordx2 s[{sWS}:{sWS+1}], s[0:1], {KA['ws']}")
    k(f"s_load_dwordx2 s[{sK}:{sK+1}], s[0:1], {KA['k']}")
    k(f"s_load_dwordx2 s[{sV}:{sV+1}], s[0:1], {KA['v']}")
    k(f"s_load_dwordx2 s[{sWO}:{sWO+1}], s[0:1], {KA['wo']}")
    k(f"s_load_dwordx8 s[{pWG}:{pWG+7}], s[0:1], {KA['wg']}")
    k(f"s_load_dwordx2 s[{sDBG}:{sDBG+1}], s[0:1], {KA['dbg']}")
    k("v_and_b32 v1, 63, v0"); k("v_lshrrev_b32 v2, 6, v0")
    k("s_and_b32 s3, s2, 7"); k(f"s_lshr_b32 s{sT}, s2, 3")
    k(f"v_readfirstlane_b32 s{sWAVE}, v2")
    k(f"s_lshr_b32 s{sKSL}, s3, 1"); k(f"s_and_b32 s{sRT}, s3, 1"); k(f"s_lshl_b32 s{sRT}, s{sRT}, 3"); k(f"s_and_b32 s{sM1}, s{sT}, 7"); k(f"s_add_u32 s{sRT}, s{sRT}, s{sM1}")
    k(f"s_lshr_b32 s{sCT}, s{sT}, 3")
    if amap == 1:
        k(f"s_mov_b32 s{sQT}, s3"); k(f"s_mov_b32 s{sH}, s{sT}"); k(f"s_mov_b32 s{sKR}, s3")
        k(f"s_add_u32 s{sROT}, s3, s{sM1}"); k(f"s_lshl_b32 s{sROT}, s{sROT}, 1")
    elif amap == 2:
        k(f"s_lshr_b32 s{sQT}, s3, 1"); k(f"s_lshl_b32 s{sQT}, s{sQT}, 1"); k(f"s_lshr_b32 s{sH}, s{sT}, 4"); k(f"s_add_u32 s{sQT}, s{sQT}, s{sH}")
        k("s_and_b32 s3, s3, 1"); k("s_lshl_b32 s3, s3, 4"); k(f"s_and_b32 s{sH}, s{sT}, 15"); k(f"s_add_u32 s{sH}, s{sH}, s3")
        k(f"s_lshr_b32 s3, s{sQT}, 1"); k(f"s_and_b32 s{sKR}, s{sQT}, 1"); k(f"s_lshl_b32 s{sKR}, s{sKR}, 2"); k(f"s_add_u32 s{sKR}, s{sKR}, s3")
        k(f"s_add_u32 s{sROT}, s{sKR}, s{sM1}"); k(f"s_lshl_b32 s{sROT}, s{sROT}, 1")
    elif amap == 8:
        k("s_lshl_b32 s3, s3, 2"); k(f"s_and_b32 s{sM1}, s{sT}, 3"); k(f"s_add_u32 s{sH}, s3, s{sM1}")
        k(f"s_lshr_b32 s{sQT}, s{sT}, 2"); k(f"s_mul_i32 s{sKR}, s{sQT}, {krot}"); k(f"s_and_b32 s{sKR}, s{sKR}, 7")
        k(f"s_mul_i32 s{sROT}, s{sQT}, {qrot}"); k(f"s_mul_i32 s3, s{sM1}, {xrot}"); k(f"s_add_u32 s{sROT}, s{sROT}, s3")
        k("s_and_b32 s3, s2, 7"); k(f"s_mul_i32 s3, s3, {crot}"); k(f"s_add_u32 s{sROT}, s{sROT}, s3")
    else:
        k(f"s_mov_b32 s{sH}, s{sKSL}"); k(f"s_lshl_b32 s{sH}, s{sH}, 3"); k(f"s_add_u32 s{sH}, s{sH}, s{sM1}")
        k("s_and_b32 s3, s3, 1"); k(f"s_lshl_b32 s{sQT}, s3, 2"); k(f"s_add_u32 s{sQT}, s{sQT}, s{sCT}")
        k(f"s_lshl_b32 s{sKR}, s{sCT}, 1"); k(f"s_add_u32 s{sKR}, s{sKR}, s3")
        k(f"s_add_u32 s{sROT}, s{sKR}, s{sM1}"); k(f"s_lshl_b32 s{sROT}, s{sROT}, 1")
    if hyb:
        n_ = 8 - hyb
        tab = sum((2*(hyb + (i % n_))) << (4*i) for i in range(2*n_))
        k(f"s_mul_i32 s3, s{sM1}, {hx}"); k(f"s_mul_i32 s{sROT}, s{sQT}, {hq}"); k(f"s_add_u32 s3, s3, s{sROT}")
        for _ in range(3): k(f"s_cmp_ge_u32 s3, {n_}"); k(f"s_cselect_b32 s{sROT}, {n_}, 0"); k(f"s_sub_u32 s3, s3, s{sROT}")
        k("s_lshl_b32 s3, s3, 2")
        k(f"s_mov_b32 s{sC2}, {tab & 0xffffffff:#x}"); k(f"s_mov_b32 s{sC2+1}, {tab >> 32:#x}"); k(f"s_lshr_b64 s[{sC2}:{sC2+1}], s[{sC2}:{sC2+1}], s3")
        k(f"s_lshl_b32 s{sROT}, s{sC2}, {4*hyb}"); k(f"s_or_b32 s{sROT}, s{sROT}, {sum((2*i) << (4*i) for i in range(hyb)):#x}")
        k("s_and_b32 s3, s2, 7"); k("s_mul_i32 s3, s3, 0x22222222"); k(f"s_xor_b32 s{sROT}, s{sROT}, s3")
    if amap != 8 and norot:
        k("s_and_b32 s3, s2, 7"); k(f"s_mul_i32 s{sROT}, s3, {crot}"); k(f"s_mul_i32 s{sKR}, s3, {krot}"); k(f"s_and_b32 s{sKR}, s{sKR}, 7")
    if omap == 1:
        k("s_and_b32 s3, s2, 7"); k(f"s_lshl_b32 s{sRT}, s3, 1"); k(f"s_and_b32 s3, s{sT}, 1"); k(f"s_add_u32 s{sRT}, s{sRT}, s3")
        k(f"s_lshr_b32 s{sCT}, s{sT}, 1"); k(f"s_and_b32 s{sCT}, s{sCT}, 3"); k(f"s_lshr_b32 s{sKSL}, s{sT}, 3")
    for d, sz in ((sX, SZ['x']), (sWQ, SZ['wq']), (sWS, SZ['ws'])):
        k(f"s_mov_b32 s{d+2}, {sz:#x}"); k(f"s_mov_b32 s{d+3}, 0x00020000")
    k("v_lshrrev_b32 v2, 4, v1")
    k("v_and_b32 v3, 15, v1")
    k(f"v_lshlrev_b32 v{oL}, 4, v1")
    L = ACC
    k(f"s_lshl_b32 s3, s{sQT}, 8"); k(f"s_lshl_b32 s{sT}, s{sH}, 3"); k(f"s_add_u32 s3, s3, s{sT}"); k(f"s_lshl_b32 s{sT}, s{sWAVE}, 1"); k(f"s_add_u32 s3, s3, s{sT}")
    k(f"v_lshrrev_b32 v{L}, 5, v1"); k(f"v_add_u32 v{L}, s3, v{L}")
    k(f"v_and_b32 v{L+1}, 31, v1")
    k(f"v_lshlrev_b32 v{L+2}, 4, v{L+1}")
    k(f"v_lshl_add_u32 v{L+3}, v{L}, 10, v{L+2}")
    k("v_lshlrev_b32 v29, 2, v2"); k("v_xor_b32 v29, v29, v3"); k("v_lshlrev_b32 v29, 4, v29")
    k(f"v_lshl_add_u32 v{oW}, v2, 13, v29"); k(f"v_add_u32 v{oW+1}, {4*8192-1024}, v{oW}")
    k("v_and_b32 v29, 7, v1"); k("v_xor_b32 v29, v29, v2"); k("v_lshrrev_b32 v30, 3, v1"); k("v_lshlrev_b32 v30, 10, v30")
    k(f"v_lshl_add_u32 v{oX}, v29, 4, v30"); k("v_xor_b32 v29, 4, v29"); k(f"v_lshl_add_u32 v{oX+1}, v29, 4, v30"); k(f"v_add_u32 v{oX+1}, 7168, v{oX+1}")
    k(f"v_add_u32 v{oX+2}, {2*7168}, v{oX}"); k(f"v_add_u32 v{oX+3}, {2*7168}, v{oX+1}")
    k(f"s_lshl_b32 s{sBW}, s{sH}, 8"); k(f"s_lshl_b32 s3, s{sWAVE}, 16"); k(f"s_add_u32 s{sBW}, s{sBW}, s3")
    k(f"s_lshl_b32 s{sBX}, s{sQT}, 18"); k(f"s_add_u32 s{sBX}, s{sBX}, s3")
    k(f"s_lshl_b32 s{sM0W}, s{sWAVE}, 11"); k(f"s_lshl_b32 s{sM0K}, s{sWAVE}, 12"); k(f"s_lshl_b32 s{sM0O}, s{sWAVE}, 13")
    for d, sz in ((sK, SZ['k']), (sV, SZ['v']), (sWO, SZ['wo'])):
        k(f"s_mov_b32 s{d+2}, {sz:#x}"); k(f"s_mov_b32 s{d+3}, 0x00020000")
    k(f"s_lshl_b32 s{sBKV}, s{sH}, 19"); k(f"s_add_u32 s{sBKV}, s{sBKV}, {1536*256}"); k(f"s_add_u32 s{sBKV}, s{sBKV}, s{sM0K}")
    k("s_waitcnt lgkmcnt(0)")
    st_('karg')

    def KS(ks):
        return [f"s_bfe_u32 s{sT}, s{sROT}, {(4 << 16) | (4*(ks >> 1)):#x}", f"s_or_b32 s{sT}, s{sT}, {ks & 1}"]
    def D(ks):
        return (KS(ks) if hyb else [f"s_add_u32 s{sT}, s{sROT}, {ks}", f"s_and_b32 s{sT}, s{sT}, 15"]) + [f"s_lshl_b32 s{sOW}, s{sT}, 18", f"s_add_u32 s{sOW}, s{sOW}, s{sBW}",
                f"s_add_u32 m0, s{sM0W}, {(ks % 8)*8192}",
                Ins(f"buffer_load_dwordx4 v{oW}, s[{sWQ}:{sWQ+3}], s{sOW} offen{NT('q')} lds", tag=f"D{ks}"),
                Ins(f"buffer_load_dwordx4 v{oW+1}, s[{sWQ}:{sWQ+3}], s{sOW} offen offset:1024{NT('q')} lds", tag=f"D{ks}")]
    def XP(p):
        g = (KS(2*p) if hyb else [f"s_add_u32 s{sT}, s{sROT}, {2*p}", f"s_and_b32 s{sT}, s{sT}, 15"]) + [f"s_lshl_b32 s{sOX}, s{sT}, 6", f"s_add_u32 s{sOX}, s{sOX}, s{sBX}"]
        for hf in range(2):
            if hf: g.append(f"s_add_u32 s{sOX}, s{sOX}, 32768")
            g.append(f"s_add_u32 m0, s{sM0O}, {XREG[p % 3]*32768 + hf*4096}")
            for i in range(4):
                g.append(Ins(f"buffer_load_dwordx4 v{oX+i}, s[{sX}:{sX+3}], s{sOX} offen{off(i*1024)}{NT('x')} lds", tag=f"XP{p}"))
        return g
    def XR(p):
        return [Ins(f"ds_read_b128 {q4('a', ((2*p+ksl)*4+qb)*4)}, v{aX + ksl + (2 if XREG[p % 3] == 4 else 0)} offset:{(XREG[p % 3] & 1)*32768 + qb*2048}", tag=f"XR{p}") for ksl in range(2) for qb in range(4)]
    def KV(j):
        base = ((j + 2) % 4) * 32768
        g = [f"s_add_u32 s{sT}, s{sKR}, {j}", f"s_and_b32 s{sT}, s{sT}, 7", f"s_lshl_b32 s{sOKV}, s{sT}, 14", f"s_add_u32 s{sOKV}, s{sOKV}, s{sBKV}",
             f"s_add_u32 m0, s{sM0O}, {base}"]
        g += [Ins(f"buffer_load_dwordx4 v{oK+i}, s[{sK}:{sK+3}], s{sOKV} offen{off(i*1024)}{NT('k')} lds", tag=f"KV{j}") for i in range(4)]
        g += [f"s_add_u32 m0, s{sM0O}, {base+4096}"]
        g += [Ins(f"buffer_load_dwordx4 v{oV+(i&1)}, s[{sV}:{sV+3}], s{sOKV} offen{off(i*1024)}{NT('k')} lds", tag=f"KV{j}") for i in range(4)]
        return g
    def WO(gi, tag=True):
        g = [f"s_add_u32 m0, s{sM0O}, {wslot(gi)}"]
        for n in range(4):
            t = f"buffer_load_dwordx4 v{oWO+n}, s[{sWO}:{sWO+3}], s{sOWO} offen{off(n*1024)}{NT('o')} lds"
            g.append(Ins(t, tag=f"WO{gi}") if tag else unc(t))
        g += [f"s_add_u32 s{sRW}, s{sRW}, 32768", f"s_and_b32 s{sRW}, s{sRW}, 0xf8000", f"s_or_b32 s{sOWO}, s{sRW}, s{sBWO}"]
        return g

    XL, WL = L + 8, L + 16
    FT = CSX
    k(f"buffer_load_dwordx4 {q4('v', XL)}, v{L+3}, s[{sX}:{sX+3}], 0 offen", tag="LX")
    k(f"buffer_load_dwordx4 {q4('v', XL+4)}, v{L+3}, s[{sX}:{sX+3}], 0 offen offset:512", tag="LX")
    k(f"s_mov_b32 s{sDBG+2}, 256"); k(f"s_mov_b32 s{sDBG+3}, 0x00020000")
    k(f"s_or_b32 s{sTAG}, s{sK1 & ~1}, 1"); k(f"v_mov_b32 v{L+24}, s{sTAG}"); k(f"v_mov_b32 v{FT+6}, 0")
    k(f"s_or_b32 s3, s2, s{sWAVE}"); k("s_cmp_eq_u32 s3, 0"); k("s_cselect_b32 s3, 0, 0x1000")
    k(f"buffer_store_dword v{L+24}, v{FT+6}, s[{sDBG}:{sDBG+3}], s3 offen sc1")
    lw = [Ins(f"global_load_dwordx4 {q4('v', WL)}, v{L+2}, s[{sBAD}:{sBAD+1}]", tag="LW"), Ins(f"global_load_dwordx4 {q4('v', WL+4)}, v{L+2}, s[{sBAD}:{sBAD+1}] offset:512", tag="LW")]
    if lwfirst:
        for x in lw: k(x)
        lw = []
    st_('lxiss')
    for x in D(0) + XP(0) + D(1): k(x)
    if tlb:
        tt = {"k": f"buffer_load_dword a246, v{FT+6}, s[{sK}:{sK+3}], s{sBKV} offen", "v": f"buffer_load_dword a247, v{FT+6}, s[{sV}:{sV+3}], s{sBKV} offen",
              "w": f"buffer_load_dword a248, v{FT+6}, s[{sWS}:{sWS+3}], s{sM0K} offen", "o": f"buffer_load_dword a249, v{FT+6}, s[{sWO}:{sWO+3}], s{sBW} offen",
              "g": f"global_load_dword a250, v{FT+6}, s[{pWG}:{pWG+1}]", "u": f"global_load_dword a251, v{FT+6}, s[{pWU}:{pWU+1}]", "d": f"global_load_dword a252, v{FT+6}, s[{pWD}:{pWD+1}]"}
        for c_ in tlb: k(tt[c_])
    st_('d1iss')
    k("v_bfe_u32 v29, v1, 2, 2")
    k("v_and_b32 v30, 3, v1")
    k("v_lshl_add_u32 v31, v2, 3, v29"); k("v_lshlrev_b32 v31, 8, v31"); k("v_lshl_add_u32 v31, v30, 4, v31")
    for i in range(4):
        k(f"s_add_u32 s3, s{sWAVE}, {i}"); k("s_and_b32 s3, s3, 3")
        k(f"v_xor_b32 v{aW+i}, s3, v29"); k(f"v_lshl_add_u32 v{aW+i}, v{aW+i}, 6, v31")
    k("v_lshrrev_b32 v31, 1, v3"); k("v_xor_b32 v31, v31, v2")
    k(f"v_lshlrev_b32 v{aX+1}, 7, v3"); k(f"v_add_u32 v{aX+1}, s{sM0O}, v{aX+1}"); k(f"v_add_u32 v{aX+1}, 0x10000, v{aX+1}")
    k(f"v_lshl_add_u32 v{aX}, v31, 4, v{aX+1}"); k("v_xor_b32 v31, 4, v31"); k(f"v_lshl_add_u32 v{aX+1}, v31, 4, v{aX+1}")
    k(f"v_add_u32 v{aX+2}, 0x10000, v{aX}"); k(f"v_add_u32 v{aX+3}, 0x10000, v{aX+1}")
    for i in range(4): k(f"v_mov_b32 v{ONES+i}, 0x3f803f80")
    A0, A3 = L + 4, L + 7
    k(f"v_lshlrev_b32 v{FT+5}, 4, v{L}"); k(f"v_lshlrev_b32 v{FT+4}, 3, v{L}"); k(f"v_sub_u32 v{A3}, 0xffff, v{L}")
    cpf = []
    if codepf:
        pcl = k.label("pc")
        pcp = sK2
        assert pcp % 2 == 0
        k(f"s_getpc_b64 s[{pcp}:{pcp+1}]"); k(f"{pcl}:")
        k(f"s_lshr_b32 s3, s2, 3"); k(f"s_lshl_b32 s3, s3, 2"); k(f"s_add_u32 s3, s3, s{sWAVE}"); k("s_lshl_b32 s3, s3, 9")
        k(f"s_min_u32 s3, s3, {end}-{pcl}-512")
        k(f"v_lshl_add_u32 v{L+5}, v1, 3, s3")
        cpf = [Ins(f"global_load_dwordx2 a[254:255], v{L+5}, s[{pcp}:{pcp+1}]")]
    st_('issued')
    ln = []
    A = ln.append
    F, Dv, T0, T1, T2 = L + 32, L + 48, L + 26, L + 27, L + 30
    def hsum(v, t):
        for m in DPP4: A(f"v_add_f32_dpp v{v}, v{v}, v{v} {m}")
        A(f"v_mov_b32 v{t}, v{v}"); A(f"v_permlane16_swap_b32 v{v}, v{t}"); A(f"v_add_f32 v{v}, v{v}, v{t}")
    polln = f"buffer_load_dword v{FT+1}, v{FT+6}, s[{sDBG}:{sDBG+3}], 0 offen sc1"
    k.wait(vm="LX")
    st_('lx')
    for i in range(8): A(f"v_lshlrev_b32 v{F+2*i}, 16, v{XL+i}"); A(f"v_and_b32 v{F+2*i+1}, 0xffff0000, v{XL+i}")
    for i in range(8): A(f"v_add_f32 v{Dv+i}, v{F+2*i}, v{F+2*i+1}")
    for i in range(4): A(f"v_add_f32 v{Dv+i}, v{Dv+i}, v{Dv+4+i}")
    A(f"v_add_f32 v{Dv}, v{Dv}, v{Dv+2}"); A(f"v_add_f32 v{Dv+1}, v{Dv+1}, v{Dv+3}"); A(f"v_add_f32 v{T0}, v{Dv}, v{Dv+1}")
    hsum(T0, T1)
    A(f"v_mul_f32 v{T0}, 0x3b000000, v{T0}")
    for i in range(16): A(f"v_sub_f32 v{Dv+i}, v{F+i}, v{T0}")
    A(f"v_mul_f32 v{T1}, v{Dv}, v{Dv}"); A(f"v_mul_f32 v{T2}, v{Dv+1}, v{Dv+1}")
    for i in range(2, 16, 2): A(f"v_fmac_f32 v{T1}, v{Dv+i}, v{Dv+i}"); A(f"v_fmac_f32 v{T2}, v{Dv+i+1}, v{Dv+i+1}")
    A(f"v_add_f32 v{T1}, v{T1}, v{T2}")
    hsum(T1, T2)
    A(f"v_mul_f32 v{T1}, 0x3b000000, v{T1}")
    A(f"v_cvt_pk_bf16_f32 v{T2}, v{T0}, v{T1}")
    A(f"v_lshlrev_b32 v{T0}, 16, v{T2}"); A(f"v_and_b32 v{T1}, 0xffff0000, v{T2}")
    A(f"v_add_f32 v{T1}, 0x3727c5ac, v{T1}"); A(f"v_cvt_pk_bf16_f32 v{T1}, v{T1}, v{T1}"); A(f"v_lshlrev_b32 v{T1}, 16, v{T1}")
    A(f"v_sqrt_f32 v{T1}, v{T1}")
    for i in range(16): A(f"v_sub_f32 v{Dv+i}, v{F+i}, v{T0}")
    A(f"v_cvt_pk_bf16_f32 v{FT}, v{T0}, v{T1}")
    A(f"v_and_b32 v{T1}, 0xffff0000, v{FT}"); A(f"v_rcp_f32 v{T1}, v{T1}")
    for i in range(8): A(f"v_cvt_pk_bf16_f32 v{XL+i}, v{Dv+2*i}, v{Dv+2*i+1}")
    for i in range(8): A(f"v_lshlrev_b32 v{Dv+2*i}, 16, v{XL+i}"); A(f"v_and_b32 v{Dv+2*i+1}, 0xffff0000, v{XL+i}")
    for i in range(16): A(f"v_mul_f32 v{Dv+i}, v{Dv+i}, v{T1}")
    for i in range(8): A(f"v_cvt_pk_bf16_f32 v{XL+i}, v{Dv+2*i}, v{Dv+2*i+1}")
    trickle = list(lw)
    trickle += cpf + D(2) + D(3) + XP(1)[:ntr]
    n0 = int(len(ln) * tstart)
    nv_ = sum(1 for x in trickle if isinstance(x, Ins)); per = max(1, (len(ln) - n0) // nv_)
    ti = 0
    for n, x in enumerate(ln):
        k(x)
        if n >= n0 and (n - n0) % per == per - 1:
            while ti < len(trickle):
                y = trickle[ti]; ti += 1; k(y)
                if isinstance(y, Ins): break
    while ti < len(trickle): k(trickle[ti]); ti += 1
    st_('ln1')
    ln = []; A = ln.append
    A(f"v_mov_b32 v{T0}, 0")
    for i in range(8): A(f"v_dot2c_f32_bf16 v{T0}, v{XL+i}, v{WL+i}")
    A("s_nop 2")
    hsum(T0, T1)
    A(f"v_cvt_pk_bf16_f32 v{T0}, v{T0}, v{T0}")
    A(f"v_bfe_i32 v{T1}, v{T0}, 15, 1"); A(f"v_and_b32 v{T1}, 0x7fff, v{T1}"); A(f"v_or_b32 v{T1}, 0x8000, v{T1}")
    A(f"v_xor_b32 v{T0}, v{T0}, v{T1}"); A(f"v_lshl_or_b32 v{FT+2}, v{T0}, 16, v{A3}")
    ln_tail = ln
    st_('ln')

    steps = [[(ks, T) for T in range(8)] for ks in range(12)]
    steps += [[(ks, 2*i+t) for ks in range(12, 16) for t in range(2)] for i in range(4)]
    def wreads(st):
        out = []
        for f, (ks, T) in enumerate(steps[st]):
            i, t = T >> 1, T & 1
            for u in range(2):
                out.append(Ins(f"ds_read_b64_tr_b16 {q2('v', AF + (st&1)*32 + f*4 + u*2)}, v{aW+i} offset:{(ks % 8) * 8192 + u * 1024 + t * 8}", tag=f"W{st}"))
        return out
    k.wait(vm="D1"); st_('d1'); k("s_barrier")
    for x in XR(0)[:4] + wreads(0) + XR(0)[4:]: k(x)
    k.wait(vm="LW")
    for x in ln_tail: k(x)
    k.wait(lgkm=0)

    pl = Plan(k); pl.mlimit = 8; pl.vcost = 8
    seen = set(); G0 = {}
    for st in range(16):
        G0[st] = len(pl.mf)
        for f, (ks, T) in enumerate(steps[st]):
            af = q4('v', AF + (st&1)*32 + f*4)
            for qb in range(4):
                a = acc(T, qb)
                pl.mfma(f"{MF} {q4('v', a)}, {af}, {q4('a', (ks*4+qb)*4)}, {q4('v', a) if (T, qb) in seen else '0'}")
                seen.add((T, qb))
            if T < 2:
                a = CS0 + 4 * T
                pl.mfma(f"{MF} {q4('v', a)}, {af}, {q4('v', ONES)}, {q4('v', a) if ('c', T) in seen else '0'}")
                seen.add(('c', T))
    NQ = len(pl.mf); G0[16] = NQ
    units = [(p, qb) for p in range(16 - tailq) for qb in range(4)] + [(p, qb) for qb in range(4) for p in range(16 - tailq, 16)]
    def buf(p): return {14: 2, 15: 0}.get(p, p & 1)
    Spos = {}; PVpos = {}; seenO = set(); Xpos = {}
    def Sblk(i):
        p, qb = units[i]
        Spos[i] = len(pl.mf)
        for kb2 in range(2):
            d = SB3[i % 3] + kb2 * 4
            for s in range(4):
                c = q4('v', d) if s else ("0" if p == 0 else q4('v', NM + 4*qb))
                pl.mfma(f"{MF} {q4('v', d)}, {q4('a', KB[buf(p)] + (kb2*4+s)*4)}, {q4('a', QF + (qb*4+s)*4)}, {c}")
    def PVblk(i):
        p, qb = units[i]
        PVpos[i] = len(pl.mf)
        pl.mfma(f"{MF} {q4('v', LS + 4*qb)}, {q4('v', ONES)}, {q4('v', P + 4*(i%4))}, {q4('v', LS + 4*qb) if qb in seenO else '0'}")
        for T in range(8):
            a = acc(T, qb)
            pl.mfma(f"{MF} {q4('v', a)}, {q4('a', VB[buf(p)] + T*4)}, {q4('v', P + 4*(i%4))}, {q4('v', a) if qb in seenO else '0'}")
        seenO.add(qb)
    U1, U2 = u1, 45
    for i in range(64):
        Sblk(i)
        if i >= 2: PVblk(i - 2)
        if i - 2 == U1 - 2:
            Xpos[1] = len(pl.mf)
            for n in range(4): pl.mfma(f"{MF} {q4('v', MACC)}, {q4('a', MA + 16 + 4*n)}, {q4('a', MA + 4*n)}, {q4('v', MACC) if n else '0'}")
        if i - 2 == U2 - 2:
            Xpos[2] = len(pl.mf)
            for n in range(6): pl.mfma(f"{MF} {q4('v', MACC)}, {q4('a', MA + 24 + 4*n)}, {q4('a', MA + 4*n)}, {q4('v', MACC) if n else '0'}")
    PVblk(62); PVblk(63)
    NMF = len(pl.mf); LAST = NMF - 1

    barg = {}
    for st in range(16):
        g0 = G0[st]
        if st > 0: pl.put(g0 - 1, Wait(lgkm=0))
        bar = None
        if st % 2 == 1 and st <= 9: bar = f"D{st+2}"
        if st == 11: bar = "D15"
        if st == 15: bar = "KV0"
        r0 = g0
        if bar:
            pl.put(g0, Wait(vm=bar)); pl.put(g0 + 1, "s_barrier"); r0 = g0 + 1; barg[st] = g0 + 1
        if st < 15: pl.stream(wreads(st + 1), r0, G0[st+1] - 8, spread=True, win=1)
    xr_step = dict(zip(range(1, 8), xrs))
    for p, st in xr_step.items():
        lo = G0[st] + xlo
        pl.stream([Wait(vm=f"XP{p}")] + XR(p), lo, G0[st+1] - 6, win=2)
    stl = [f"buffer_load_dwordx2 {q2('v', STAT + 2*qb)}, v{FT+7}, s[{sWS}:{sWS+3}], s{sM1} offen{off(qb*256)} sc1" for qb in range(4)]
    stq = [f"s_lshr_b32 s{sM1}, s{sBX}, 6", f"s_add_u32 s{sM1}, s{sM1}, {W6_STAT:#x}", f"v_lshlrev_b32 v{FT+7}, 4, v3"] + [Ins(F1(t, "s"), tag="STAT") for t in stl]
    sU2 = sROT
    mw = [f"s_and_b32 s{sT}, s2, 7", f"s_lshl_b32 s{sU2}, s{sT}, 3", f"s_mul_i32 s{sT}, s{sT}, 22", f"s_lshr_b32 s{sOW}, s2, 3", f"s_add_u32 s{sT}, s{sT}, s{sOW}",
          ("pair", f"s_cmp_lt_u32 s{sOW}, 22", f"s_cselect_b32 s{sBW}, s{sT}, 172"),
          f"s_add_u32 s{sU2}, s{sU2}, s{sOW}", f"s_sub_u32 s{sU2}, s{sU2}, 24", ("pair", f"s_cmp_ge_u32 s{sOW}, 24", f"s_cselect_b32 s{sU2}, s{sU2}, 64"),
          f"s_lshl_b32 s{sT}, s{sBW}, 4", f"s_mul_i32 s{sOW}, s{sWAVE}, {128*2752}", f"s_add_u32 s{sOW}, s{sOW}, s{sT}",
          ("pair", f"s_cmp_lt_u32 s{sBW}, 172", f"s_cselect_b32 s{sOW}, s{sOW}, {OOB:#x}"),
          f"s_lshr_b32 s{sM0W}, s{sU2}, 5", f"s_lshl_b32 s{sM0W}, s{sM0W}, 2", f"s_add_u32 s{sM0W}, s{sM0W}, s{sWAVE}", f"s_mul_i32 s{sM0W}, s{sM0W}, 6",
          f"s_lshl_b32 s{sOX}, s{sM0W}, 15", f"s_and_b32 s{sT}, s{sU2}, 31", f"s_lshl_b32 s{sT}, s{sT}, 5", f"s_add_u32 s{sOX}, s{sOX}, s{sT}",
          ("pair", f"s_cmp_lt_u32 s{sU2}, 64", f"s_cselect_b32 s{sOX}, s{sOX}, {OOB:#x}"),
          ("pair", f"s_cmp_lt_u32 s{sU2}, 64", f"s_cselect_b64 s[{sC2}:{sC2+1}], -1, 0"),
          f"s_mov_b32 s{sTS+2}, {SZ['wg']:#x}", f"s_mov_b32 s{sTS+3}, 0x00020000",
          f"v_mul_u32_u24 v{aW+1}, 2752, v1", f"v_lshrrev_b32 v{aW}, 1, v1", f"v_lshlrev_b32 v{aW}, 10, v{aW}", f"v_and_b32 v{aW+2}, 1, v1", f"v_lshl_add_u32 v{aW}, v{aW+2}, 4, v{aW}",
          f"v_cndmask_b32 v{aW+1}, v{aW+1}, v{aW}, s[{sC2}:{sC2+1}]"]
    assert SZ['wg'] == SZ['wu'] == SZ['wd']
    def WP(e):
        g = []
        if e in (0, 2): g += [("pair", f"s_cmp_lt_u32 s{sU2}, 64", f"s_cselect_b64 s[{sTS}:{sTS+1}], s[{pWD}:{pWD+1}], s[{(pWG, pWU)[e >> 1]}:{(pWG, pWU)[e >> 1]+1}]")]
        g += [f"s_add_u32 s{sT}, s{sOX}, {e*32768}"]
        if e < 4: g += [f"s_add_u32 s{sOKV}, s{sOW}, {(e & 1)*64*2752}", f"s_min_u32 s{sT}, s{sT}, s{sOKV}"]
        return g + [f"s_add_u32 m0, s{sM0O}, {R4 + e*1024}", Ins(f"buffer_load_dwordx4 v{aW+1}, s[{sTS}:{sTS+3}], s{sT} offen lds", tag="W1" if e < 4 else "W2")]
    def pairstream(items, lo, hi, **kw):
        cur = lo; b = []
        for x in items:
            if isinstance(x, tuple):
                if b: cur = pl.stream(b, cur, hi, **kw); b = []
                cur += 1
                while pl._g(cur)["s"]: cur += 1
                pl.put(cur, x[1]); pl.put(cur, x[2], cls="s")
            else: b.append(x)
        if b: cur = pl.stream(b, cur, hi, **kw)
        return cur
    vq = [(XP(1)[ntr:] + [Ins(F1(polln, "n"), tag="PN")], 0), (D(4) + D(5), 0), (XP(2), 0), (XP(3), 0), (D(6) + D(7), 0)]
    later = [(XP(p + 3), G0[xr_step[p] + 1]) for p in range(1, 5)] + [(D(8 + 2*n) + D(9 + 2*n), barg[2*n + 1] + 1) for n in range(4)]
    later.sort(key=lambda t: t[1])
    vq += later + [(stq, 0), (KV(0), G0[xr_step[5] + 1])]
    kvl = [(KV(1), max(G0[xr_step[6] + 1], G0[kvs[0]])), (KV(2), max(barg[11] + 1, G0[kvs[1]])), (KV(3), barg[15] + 1 + kvs[2])]
    vq += kvl
    gq = 0
    for items, lo in vq:
        n = sum(1 for x in items if isinstance(x, Ins))
        lo = max(lo, gq + 1)
        if n == 0 or n == 1: gq = pairstream(items, lo, lo + 30, win=2)
        else: gq = pl.stream(items, lo, lo + (vpace if lo < G0[4] else 4) * n - 1, spread=True, win=2)
    su = []
    A = su.append
    A(f"s_lshl_b32 s3, s{sQT}, 2"); A(f"s_add_u32 s3, s3, s{sWAVE}")
    A(f"s_mul_i32 s{sOO}, s3, 33"); A(f"s_add_u32 s{sOO}, s{sOO}, s{sH}"); A(f"s_mul_i32 s{sOO}, s{sOO}, {OSTR}"); A(f"s_add_u32 s{sOO}, s{sOO}, {WS_O:#x}")
    A(f"s_lshl_b32 s{sBWO}, s{sKSL}, 20"); A(f"s_lshl_b32 s3, s{sCT}, 8"); A(f"s_add_u32 s{sBWO}, s{sBWO}, s3"); A(f"s_and_b32 s3, s{sWAVE}, 1"); A("s_lshl_b32 s3, s3, 7"); A(f"s_add_u32 s{sBWO}, s{sBWO}, s3")
    A(f"s_lshl_b32 s3, s{sCT}, 1"); A(f"s_add_u32 s3, s3, s{sRT}"); A(f"s_mul_i32 s3, s3, {orot}"); A(f"s_and_b32 s3, s3, 7")
    A(f"s_lshl_b32 s{sRW}, s3, 17"); A(f"s_lshr_b32 s3, s{sWAVE}, 1"); A("s_lshl_b32 s3, s3, 19"); A(f"s_xor_b32 s{sRW}, s{sRW}, s3"); A(f"s_or_b32 s{sOWO}, s{sRW}, s{sBWO}")
    A(f"s_mov_b64 s[{sBAD}:{sBAD+1}], 0")
    csu = pl.stream(su, 0, 90)
    sv = []
    A = sv.append
    for i in range(4):
        A(f"s_add_u32 s3, s{sWAVE}, {i}"); A("s_and_b32 s3, s3, 3"); A("s_lshl_b32 s3, s3, 2")
        A(f"v_add_u32 v31, s3, v2"); A("v_xor_b32 v31, v31, v3"); A("v_lshlrev_b32 v31, 4, v31"); A(f"v_lshl_add_u32 v{aK+i}, v3, 8, v31"); A(f"v_add_u32 v{aK+i}, 0x10000, v{aK+i}")
    sv1 = sv; sv = []; A = sv.append
    t0, t1 = FT + 4, FT + 5
    A(f"v_lshl_add_u32 v{aV+7}, v2, 2, v29")
    A(f"v_and_b32 v{t0}, 7, v{aV+7}"); A(f"v_lshlrev_b32 v{t0}, 1, v{t0}")
    A(f"v_lshrrev_b32 v{t1}, 1, v30"); A(f"v_xor_b32 v{t0}, v{t0}, v{t1}")
    A(f"v_and_b32 v{t1}, 1, v30"); A(f"v_lshlrev_b32 v{t1}, 3, v{t1}"); A(f"v_lshl_add_u32 v{t1}, v{aV+7}, 8, v{t1}")
    A(f"v_add_u32 v{t1}, {4096 + 65536}, v{t1}")
    for T in range(8):
        A(f"v_xor_b32 v{aV+T}, {2*T}, v{t0}"); A(f"v_lshl_add_u32 v{aV+T}, v{aV+T}, 4, v{t1}")
    sv2 = sv; sv = sv1; A = sv.append
    for i in range(4):
        A(f"v_add_u32 v31, {4*i}, v2"); A("v_xor_b32 v31, v31, v3"); A("v_lshlrev_b32 v31, 4, v31"); A(f"v_lshl_add_u32 v{oK+i}, v2, 8, v31")
    for i in range(2):
        A(f"v_add_u32 v31, {4*i}, v2"); A("v_lshlrev_b32 v31, 1, v31"); A("v_xor_b32 v31, v31, v3"); A("v_lshlrev_b32 v31, 4, v31"); A(f"v_lshl_add_u32 v{oV+i}, v2, 8, v31")
    csv = pl.stream(sv, csu + 1, G0[6])
    pl.stream(sv2, G0[xr_step[7] + 1], G0[xr_step[7] + 2] - 1)
    if touch:
        ct = -1
        tl = [f"buffer_load_dword a{246+n}, v{oL}, s[{(sK, sV)[n & 1]}:{(sK, sV)[n & 1]+3}], s{sK1} offen{off((n >> 1)*1024)}" for n in range(8)]
        pl.stream(tl, max(ct + 1, G0[touch[0]]), G0[touch[1]] - 1, spread=True, win=2)
    its = check_items("PN", polln, [f"v_cmp_eq_u32 vcc, 0, v{FT+1}"])
    its += [f"s_mov_b32 s{sM1}, {W6_STAT:#x}", Ins(f"buffer_store_dwordx2 {q2('v', FT)}, v{FT+5}, s[{sWS}:{sWS+3}], s{sM1} offen sc1", tag="PUB0"),
            f"v_readfirstlane_b32 s{sTAG}, v{FT+1}", f"v_mov_b32 v{FT+3}, v{FT+1}"]
    c = pstream(pl, its, G0[2] + 4, G0[3] - 2, win=2)
    pl.stream([Wait(vm="PUB0"), f"buffer_store_dwordx2 {q2('v', FT+2)}, v{FT+4}, s[{sWS}:{sWS+3}], 0 offen sc1"], G0[7] + 4, G0[8] - 2, win=2)
    cm = [f"v_xor_b32 v{FT}, s{sTAG}, v{STAT+1}", f"v_xor_b32 v{FT+1}, s{sTAG}, v{STAT+3}", f"v_xor_b32 v{FT+3}, s{sTAG}, v{STAT+5}", f"v_or3_b32 v{FT}, v{FT}, v{FT+1}, v{FT+3}",
          f"v_xor_b32 v{FT+1}, s{sTAG}, v{STAT+7}", f"v_or_b32 v{FT}, v{FT}, v{FT+1}", f"v_cmp_ne_u32 vcc, 0, v{FT}"]
    its = check_items("STAT", stl, cm)
    for qb in range(4):
        a, b = STAT + 2*qb, STAT + 2*qb + 1
        its += [f"v_and_b32 v{b}, 0xffff0000, v{a}", f"v_rcp_f32 v{b}, v{b}", f"v_lshlrev_b32 v{a}, 16, v{a}", f"v_sub_f32 v{a}, 0, v{a}", f"v_mul_f32 v{b}, {QSCALE:#x}, v{b}"]
    c = pstream(pl, its, G0[12] + 2, G0[13] - 1, win=2)
    its = ["v_lshlrev_b32 v31, 1, v2", f"v_and_b32 v{oWO}, 7, v1", f"v_xor_b32 v31, v31, v{oWO}", "v_lshlrev_b32 v31, 4, v31", f"v_lshrrev_b32 v{oWO}, 3, v1", f"v_lshl_add_u32 v{oWO}, v{oWO}, 10, v31"]
    its += [f"v_add_u32 v{oWO+i}, {i*7168}, v{oWO}" for i in range(1, 4)]
    its += [f"v_add_u32 v{oW}, s{sM0O}, v{oL}", f"v_add_u32 v{oW}, {R4 + 6144}, v{oW}", f"v_add_u32 v{oW+1}, {R4 + 6144}, v{oL}"]
    pl.stream(its, G0[11] + 2, G0[12] - 1)
    g13 = G0[13]
    pl.stream([f"ds_write_b128 v{oW}, {q4('v', CS0)}", Ins(f"ds_write_b128 v{oW}, {q4('v', CS0+4)} offset:1024", tag="CSW")], g13 + 3, g13 + 8, win=1)
    cb = g13 + 16
    pl.put(cb - 1, Wait(lgkm="CSW")); pl.put(cb, "s_barrier")
    def csread(i, dst, lo, hi):
        c = pl.stream([f"s_add_u32 s3, s{sWAVE}, {i}", "s_and_b32 s3, s3, 3", "s_lshl_b32 s3, s3, 13", f"v_add_u32 v31, s3, v{oW+1}"], lo, hi, win=1)
        return pl.stream([f"ds_read_b128 {q4('v', dst)}, v31", Ins(f"ds_read_b128 {q4('v', dst+4)}, v31 offset:1024", tag=f"CS{i}")], max(c + 1, cb), hi, win=1)
    csreg = {0: CS0, 1: CSX, 2: CS0, 3: CSX}
    cur = 0; fin_end = {}
    for i in range(4):
        lo = max(cur, G0[13 + i] + (3 if i < 3 else -1))
        if i >= 1: pl.put(lo - 1, Wait(lgkm=f"CS{i}"))
        for qb in range(4):
            a0, a1 = acc(2*i, qb), acc(2*i+1, qb)
            cs = csreg[i]
            ops = [f"v_fmac_f32 v{a0+n}, v{cs+n}, v{STAT+2*qb}" for n in range(4)] + [f"v_fmac_f32 v{a1+n}, v{cs+4+n}, v{STAT+2*qb}" for n in range(4)]
            ops += [f"v_mul_f32 v{a0+n}, v{a0+n}, v{STAT+2*qb+1}" for n in range(4)] + [f"v_mul_f32 v{a1+n}, v{a1+n}, v{STAT+2*qb+1}" for n in range(4)]
            ops += [f"v_cvt_pk_bf16_f32 v{a0}, v{a0}, v{a0+1}", f"v_cvt_pk_bf16_f32 v{a0+1}, v{a0+2}, v{a0+3}",
                    f"v_cvt_pk_bf16_f32 v{a0+2}, v{a1}, v{a1+1}", f"v_cvt_pk_bf16_f32 v{a0+3}, v{a1+2}, v{a1+3}"]
            ops += [f"v_accvgpr_write_b32 a{QF + (qb*4+i)*4 + n}, v{a0+n}" for n in range(4)]
            if i < 3:
                span = G0[14 + i] + (2 if i < 2 else -2) - lo
                l2 = lo + (qb * span) // 4; h2 = lo + ((qb + 1) * span) // 4 - 1
                cur = pl.stream(ops, max(cur, l2), h2, spread=True, win=0)
            else:
                cur = pl.stream(ops, max(cur, lo), Spos[qb] + 2, spread=True, win=0)
        fin_end[i] = cur
        if i == 0: csread(1, CSX, cb - 4, cb + 8)
        if i in (0, 1): pass
    csread(2, CS0, fin_end[0] + 1, fin_end[0] + 14); csread(3, CSX, fin_end[1] + 1, fin_end[1] + 14)

    def kreads(p):
        slot = (p // 2) % 4
        return [Ins(f"ds_read_b128 {q4('a', KB[buf(p)] + (kb2*4+s)*4)}, v{aK+s} offset:{(slot & 1) * 32768 + (2*(p & 1) + kb2) * 8192}", tag=f"K{p}")
                for kb2 in range(2) for s in range(4)]
    def vreads(p):
        slot = (p // 2) % 4
        return [Ins(f"ds_read_b64_tr_b16 {q2('a', VB[buf(p)] + T*4 + u*2)}, v{aV+T} offset:{(slot & 1) * 32768 + (2*(p & 1) + u) * 8192}", tag=f"V{p}")
                for T in range(8) for u in range(2)]
    firstS = {}; firstPV = {}; lastS = {}; lastPV = {}
    for i, (p, qb) in enumerate(units):
        firstS.setdefault(p, Spos[i]); firstPV.setdefault(p, PVpos[i]); lastS[p] = Spos[i] + 7; lastPV[p] = PVpos[i] + 8
    vcur = cur
    PAT = [("E",0,0),("E",1,1),("E",2,3),("C",0,4),("E",3,5),("E",4,7),("C",1,8),("E",5,9),("E",6,11),("C",2,12),("E",7,13),("C",3,15)]
    lastunit = {qb: max(i for i, u in enumerate(units) if u[1] == qb) for qb in range(4)}
    for i, (p, qb) in enumerate(units):
        b = SB3[i % 3]
        w0 = Spos[i] + 7 + 3
        dead = PVpos[i] - 1
        def op(kind, n):
            if kind == "E": return f"v_exp_f32 v{b+n}, v{b+n}"
            if kind == "A":
                if p == 0 and n < 2: return f"v_mov_b32 v{LS+2*qb+n}, v{b+n}"
                return f"v_add_f32 v{LS+2*qb+(n&1)}, v{LS+2*qb+(n&1)}, v{b+n}"
            return f"v_cvt_pk_bf16_f32 v{P+4*(i%4)+n}, v{b+2*n}, v{b+2*n+1}"
        if p == 0:
            t, t2 = 0, 31
            ops = [f"v_max3_f32 v{t}, v{b}, v{b+1}, v{b+2}", f"v_max3_f32 v{t2}, v{b+3}, v{b+4}, v{b+5}", f"v_max3_f32 v{t}, v{t}, v{b+6}, v{b+7}", f"v_max_f32 v{t}, v{t}, v{t2}"]
            for sw in ("v_permlane32_swap_b32", "v_permlane16_swap_b32"):
                ops += [f"v_mov_b32 v{t2}, v{t}", f"{sw} v{t}, v{t2}", f"v_max_f32 v{t}, v{t}, v{t2}"]
            ops += [f"v_sub_f32 v{b+n}, v{b+n}, v{t}" for n in range(8)]
            ops += [f"v_sub_f32 v{NM+4*qb+n}, 0, v{t}" for n in range(4)]
            ops += [op(kd, n) for kd, n, _ in PAT]
            vcur = pl.stream(ops, min(dead, max(w0, vcur)), dead, spread=True, win=0)
        elif w0 + 15 <= dead and w0 > vcur:
            for kd, n, pos in PAT: pl.put(w0 + pos, op(kd, n))
            pl.mslots |= {w0 + j for j in mres}
            vcur = w0 + 15
        else:
            lo = max(min(w0, dead), vcur)
            vcur = pl.stream([op(kd, n) for kd, n, _ in PAT], lo, min(dead, max(w0 + 15, lo + 10)), spread=True, win=0)
    Bgap = {0: barg[15]}
    for j in range(1, 7):
        p = 2*j - 1
        Bgap[j] = firstPV[p] - 1
        pl.put(Bgap[j] - 1, Wait(vm=f"KV{j if j < 6 else 7}", lgkm=0)); pl.put(Bgap[j], "s_barrier")
    cur = Bgap[0]
    order = [(kd, p) for p in range(13) for kd in "KV"] + [("K", 13), ("K", 14), ("V", 13), ("K", 15), ("V", 14), ("V", 15)]
    cur_k = cur_v = 0
    for kind, p in order:
        lo = max(cur, Bgap[min(p // 2, 6)])
        prevuser = [pp for pp in range(p) if buf(pp) == buf(p)]
        late = p >= 13
        if kind == "K":
            if prevuser: lo = max(lo, lastS[prevuser[-1]])
            hi = firstS[p] - 5
            if p % 4 == 0 and p: pl.stream([f"v_xor_b32 v{aK+s}, 0x10000, v{aK+s}" for s in range(4)], max(cur_k + 1, lo - 12), lo - 1, spread=True, win=1)
            n_av = hi - lo + 1
            cur = cur_k = pl.stream(kreads(p), lo, hi, win=(None if n_av >= 20 and p and not late else 1), spread=(n_av < 20 or p == 0), only=(pl.mslots if dsonly and 2 <= p < 12 else None))
            pl.put(firstS[p] - 1, Wait(lgkm=f"K{p}"))
        else:
            if prevuser: lo = max(lo, lastPV[prevuser[-1]])
            hi = firstPV[p] - 7
            if p % 4 == 0 and p: pl.stream([f"v_xor_b32 v{aV+T}, 0x10000, v{aV+T}" for T in range(8)], max(cur_v + 1, lo - 24), lo - 1, spread=True, win=1)
            n_av = hi - lo + 1
            cur = cur_v = pl.stream(vreads(p), lo, hi, win=(None if n_av >= 36 and p > 1 and not late else 1), spread=(n_av < 36 or p <= 1), only=(pl.mslots if dsonly and 2 <= p < 12 else None))
            if p % 2 == 0 or p >= 13: pl.put(firstPV[p] - 1, Wait(lgkm=f"V{p}"))
    Bgap[7] = firstPV[15]
    pl.put(Bgap[7], "s_barrier")
    dcur = pairstream(mw, max(gq + 1, NQ + 2), Bgap[1] - 2, win=2)
    wpos = [dcur + 1, Bgap[1] + wsp[0], Bgap[1] + wsp[1], Bgap[2] + wsp[2], Bgap[3] + 4, Bgap[3] + 50]
    dm = [(WP(e), wpos[e], wpos[e] + 16, "p") for e in range(6)]
    for j in range(1, 5): dm.append((KV(j + 3), Bgap[j] + kvo, Bgap[j+1] - 2, None))
    dm.sort(key=lambda t: t[1])
    dm.append((WO(0) + WO(1), Bgap[5] + 1, Bgap[6] - 2, None)); dm.append((WO(2) + WO(3) + WO(4), Bgap[6] + 1, Bgap[7] - 30, 3))
    if nwo > 5: dm.append((sum((WO(g) for g in range(5, nwo)), []), Bgap[7] + 1, LAST - 10, 3))
    pl.vgap = avgap
    for items, lo, hi, w in dm:
        if w == 'p': dcur = pairstream(items, max(lo, dcur + 1), max(hi, dcur + 16), win=2)
        else: dcur = pl.stream(items, max(lo, dcur + 1), hi, win=w, spread=bool(w))
    if 'nomoe' not in exp:
        m = MT
        fin3 = fin_end[3]
        keyl = [f"buffer_load_dwordx4 {q4('v', m + 4*n)}, v{oL}, s[{sWS}:{sWS+3}], s{sM0K} offen{off(n*1024)} sc1" for n in range(4)]
        assert W6_KEY == 0
        c = pl.stream([Ins(F1(t, "k"), tag="KEYS") for t in keyl], Bgap[1] - 30, Bgap[1] - 6, spread=True, win=1)
        t0_, t1_ = 0, 31
        cm = [f"v_min3_u32 v{t0_}, v{m+1}, v{m+3}, v{m+5}", f"v_max3_u32 v{t1_}, v{m+1}, v{m+3}, v{m+5}"]
        for a, b in ((7, 9), (11, 13)): cm += [f"v_min3_u32 v{t0_}, v{t0_}, v{m+a}, v{m+b}", f"v_max3_u32 v{t1_}, v{t1_}, v{m+a}, v{m+b}"]
        cm += [f"v_min3_u32 v{t0_}, v{t0_}, v{m+15}, s{sTAG}", f"v_max3_u32 v{t1_}, v{t1_}, v{m+15}, s{sTAG}", f"v_cmp_ne_u32 vcc, v{t0_}, v{t1_}"]
        c = pstream(pl, check_items("KEYS", keyl, cm), Bgap[1] + 30, Bgap[1] + 50, spread=False, win=1)
        m1, m2, mt = 0, 31, 7
        def top2of8(st=1):
            o = [f"v_max_u32 v{m1}, v{m}, v{m+st}", f"v_min_u32 v{m2}, v{m}, v{m+st}"]
            for i in range(2, 8): o += [f"v_med3_u32 v{m2}, v{m1}, v{m2}, v{m+i*st}", f"v_max_u32 v{m1}, v{m1}, v{m+i*st}"]
            return o
        def wmax(v, t):
            o = [f"v_max_u32_dpp v{v}, v{v}, v{v} {d}" for d in DPP4]
            for sw in ("v_permlane16_swap_b32", "v_permlane32_swap_b32"): o += [f"v_mov_b32 v{t}, v{v}", f"{sw} v{v}, v{t}", f"v_max_u32 v{v}, v{v}, v{t}"]
            return o
        its = top2of8(2) + [f"v_mov_b32 v{m}, v{m1}"] + wmax(m, mt) + [f"v_cmp_eq_u32 vcc, v{m}, v{m1}", f"v_cndmask_b32 v{m+1}, v{m1}, v{m2}, vcc"] + wmax(m + 1, mt)
        its += [f"v_mov_b32 v{mt}, s{sM0O}", f"v_add_u32 v{mt}, {R4 + 6144}, v{mt}", f"ds_write_b64 v{mt}, {q2('v', m)}"]
        c = pl.stream(its, c + 1, Bgap[2] - 6, spread=True, win=mw_)
        its = [f"v_mov_b32 v{mt}, {R4 + 6144}"] + [Ins(f"ds_read_b64 {q2('v', m + 2*w)}, v{mt} offset:{w*8192}", tag="T2R") for w in range(4)]
        c = pl.stream(its, Bgap[2], Bgap[2] + 8, win=1)
        its = [f"v_lshl_add_u32 v{aW}, v2, 3, v29", f"v_lshlrev_b32 v{aW}, 4, v{aW}", f"v_lshrrev_b32 v{aW+2}, 1, v30", f"v_lshl_add_u32 v{aW}, v{aW+2}, 11, v{aW}",
               f"v_and_b32 v{aW+2}, 1, v30", f"v_lshl_add_u32 v{aW}, v{aW+2}, 3, v{aW}", f"v_add_u32 v{aW}, s{sM0O}, v{aW}", f"v_add_u32 v{aW}, {R4}, v{aW}"]
        its += [Wait(lgkm="T2R")] + top2of8()
        its += [f"v_readfirstlane_b32 s{sK1}, v{m1}", f"v_readfirstlane_b32 s{sK2}, v{m2}",
                f"v_cmp_lt_u32 vcc, 31, v1", f"v_cndmask_b32 v{m}, v{m1}, v{m2}, vcc",
                f"v_and_b32 v{m}, 0xffff, v{m}", f"v_sub_u32 v{m}, 0xffff, v{m}",
                f"v_and_b32 v{mt}, 31, v1", f"v_lshlrev_b32 v{mt}, 3, v{mt}", f"v_lshl_add_u32 v{m+1}, v{m}, 10, v{mt}", f"v_lshlrev_b32 v{m}, 4, v{m}",
                f"s_lshl_b32 s{sM1}, s{sWAVE}, 8",
                Ins(f"buffer_load_dwordx2 {q2('v', m+2)}, v{m+1}, s[{sX}:{sX+3}], s{sM1} offen", tag="XS"), f"s_mov_b32 s{sM1}, {W6_STAT:#x}",
                Ins(f"buffer_load_dword v{m+4}, v{m}, s[{sWS}:{sWS+3}], s{sM1} offen sc1", tag="XS")]
        c = pl.stream(its, c + 1, c + 36, spread=True, win=mw_)
        its = [Ins(f"ds_read_b64_tr_b16 {q2('a', MA + 16 + 4*n + 2*u)}, v{aW} offset:{n*512 + u*64}", tag="W1R") for n in range(4) for u in range(2)]
        its += [f"v_lshlrev_b32 v{m+10}, 3, v1", f"v_add_u32 v{m+10}, s{sM0O}, v{m+10}", f"v_add_u32 v{m+10}, {R4 + 6656}, v{m+10}",
                f"v_and_b32 v{m+11}, 1, v1", f"v_lshlrev_b32 v{m+11}, 8, v{m+11}", f"v_lshl_add_u32 v{m+11}, v2, 4, v{m+11}", f"v_add_u32 v{m+11}, s{sM0O}, v{m+11}", f"v_add_u32 v{m+11}, {R4 + 6656}, v{m+11}"]
        c = pl.stream(its[8:], c + 1, c + 40, win=mw_)
        c = pl.stream([Wait(vm="W1")] + its[:8], max(c + 1, Xpos[1] - 80), Xpos[1] - 56, spread=True, win=2)
        c = max(c, Xpos[1] - 56)
        its = [Wait(vm="XS"), f"v_and_b32 v{m+5}, 0xffff0000, v{m+4}", f"v_rcp_f32 v{m+5}, v{m+5}", f"v_lshlrev_b32 v{m+4}, 16, v{m+4}"]
        for n in range(2): its += [f"v_lshlrev_b32 v{m+6+2*n}, 16, v{m+2+n}", f"v_and_b32 v{m+7+2*n}, 0xffff0000, v{m+2+n}"]
        its += [f"v_sub_f32 v{m+6+n}, v{m+6+n}, v{m+4}" for n in range(4)] + [f"v_cvt_pk_bf16_f32 v{m+2+n}, v{m+6+2*n}, v{m+7+2*n}" for n in range(2)]
        for n in range(2): its += [f"v_lshlrev_b32 v{m+6+2*n}, 16, v{m+2+n}", f"v_and_b32 v{m+7+2*n}, 0xffff0000, v{m+2+n}"]
        its += [f"v_mul_f32 v{m+6+n}, v{m+6+n}, v{m+5}" for n in range(4)] + [f"v_cvt_pk_bf16_f32 v{m+2+n}, v{m+6+2*n}, v{m+7+2*n}" for n in range(2)]
        its += [f"ds_write_b64 v{m+10}, {q2('v', m+2)}"] + [Ins(f"ds_read_b128 {q4('a', MA + 4*n)}, v{m+11} offset:{n*64}", tag="XSR") for n in range(4)]
        c = pl.stream(its, c + 1, Xpos[1] - 6, spread=True, win=mw_)
        pl.put(Xpos[1] - 1, Wait(lgkm="XSR"))
        pl.stream([Ins(f"ds_write_b128 v{oW}, {q4('v', MACC)} offset:1024", tag="S1W")], Xpos[1] + 7, Xpos[1] + 8, win=1)
        if u1 == 21: BX = Bgap[3]
        else:
            BX = Xpos[1] + 15
            while pl._g(BX)["s"] or pl._g(BX - 1)["s"]: BX += 1
            pl.put(BX - 1, Wait(lgkm="S1W")); pl.put(BX, "s_barrier")
        pl.stream([f"s_lshl_b32 s3, s{sWAVE}, 2", f"v_add_u32 v{oW+1}, s3, v{oW+1}"], Bgap[1] + 2, Bgap[1] + 28, win=3)
        its = [Ins(f"ds_read_b32 v{m+w}, v{oW+1} offset:{w*8192 + 1024}", tag="S1R") for w in range(4)]
        c = pl.stream(its, BX, BX + 12, win=2)
        its = [f"v_and_b32 v{m+6}, 1, v1", f"v_lshlrev_b32 v{m+6}, 4, v{m+6}", f"v_and_b32 v{m+7}, 1, v2", f"v_lshl_add_u32 v{m+7}, v{m+7}, 3, v{m+6}",
               Wait(lgkm="S1R"), f"v_add_f32 v{m}, v{m}, v{m+1}", f"v_add_f32 v{m+2}, v{m+2}, v{m+3}", f"v_add_f32 v{m}, v{m}, v{m+2}",
               f"v_cvt_pk_bf16_f32 v{m}, v{m}, v{m}", f"v_lshlrev_b32 v{m}, 16, v{m}", f"v_mov_b32 v{m+1}, v{m}", f"v_permlane32_swap_b32 v{m}, v{m+1}",
               f"v_mul_f32 v{m+2}, 0xbfb8aa3b, v{m}", f"v_exp_f32 v{m+2}, v{m+2}", f"v_add_f32 v{m+2}, 1.0, v{m+2}", f"v_rcp_f32 v{m+2}, v{m+2}", f"v_mul_f32 v{m}, v{m}, v{m+2}",
               f"v_cvt_pk_bf16_f32 v{m}, v{m}, v{m}", f"v_lshlrev_b32 v{m}, 16, v{m}", f"v_mul_f32 v{m}, v{m}, v{m+1}", f"v_cvt_pk_bf16_f32 v{m+4}, v{m}, v{m}"]
        spart = [f"s_lshl_b32 s{sM1}, s{sBW}, 7", f"s_lshl_b32 s3, s{sWAVE}, 1", f"s_add_u32 s{sM1}, s{sM1}, s3", f"s_add_u32 s{sM1}, s{sM1}, {W6_H:#x}", ("pair", f"s_cmp_lt_u32 s{sBW}, 172", f"s_cselect_b32 s{sM1}, s{sM1}, {OOB:#x}")]
        pairstream(spart, c + 1, c + 30, win=1)
        c = pl.stream(its + [Ins(f"buffer_store_short v{m+4}, v{m+7}, s[{sWS}:{sWS+3}], s{sM1} offen sc1", tag="HS"), f"v_mov_b32 v{m}, s{sTAG}", f"v_mov_b32 v{m+1}, 64"], c + 1, BX + hsp, win=mw_)
        print('[k15] H store at B4', c - Bgap[4])
        c = pairstream([("pair", f"s_cmp_eq_u32 s{sWAVE}, 0", f"s_cselect_b32 s{sM1}, s{sM1}, {OOB:#x}")], c + 1, c + 10)
        pl.put(Bgap[4] - 2, Wait(vm="HS"))
        c = pl.stream([f"buffer_store_dword v{m}, v{m+1}, s[{sWS}:{sWS+3}], s{sM1} offen sc1"], Bgap[4], Bgap[4] + 8, win=2)
        pollh = f"buffer_load_dword v{m}, v{m+1}, s[{sWS}:{sWS+3}], s{sM1} offen sc1"
        its = [f"s_lshl_b32 s{sM1}, s{sM0W}, 2", f"v_min_u32 v{m+1}, 23, v1", f"v_add_u32 v{m+1}, s{sM1}, v{m+1}", f"v_min_u32 v{m+1}, 171, v{m+1}", f"v_lshlrev_b32 v{m+1}, 7, v{m+1}", f"s_mov_b32 s{sM1}, {OOB:#x}",
               ("pair", f"s_cmp_lt_u32 s{sU2}, 64", f"s_cselect_b32 s{sM1}, {W6_H + 64:#x}, s{sM1}"), ("pair", f"s_cmp_lt_u32 s{sU2}, 64", f"s_cselect_b32 s3, s{sTAG}, 0"), Ins(pollh, tag="PH")]
        c = pairstream(its, Bgap[5] - phat, Bgap[5] + 20, win=2)
        pl.stream([f"v_lshl_add_u32 v{aW}, v2, 3, v29", f"v_lshlrev_b32 v{aW}, 5, v{aW}", f"v_lshl_add_u32 v{aW}, v30, 3, v{aW}", f"v_add_u32 v{aW}, s{sM0O}, v{aW}", f"v_add_u32 v{aW}, {R4}, v{aW}", Wait(vm="W2")] +
                  [Ins(f"ds_read_b64_tr_b16 {q2('a', MA + 24 + 4*e + 2*u)}, v{aW} offset:{e*1024 + u*128}", tag="W2R") for e in range(6) for u in range(2)], Bgap[4] + 30, Bgap[5] - 20, spread=True, win=2)
        pl.stream([f"s_mov_b32 s{sTS}, s{sWS}", f"s_mov_b32 s{sTS+1}, s{sWS+1}", f"s_mov_b32 s{sTS+2}, {W6_H + 172*128:#x}", f"s_mov_b32 s{sTS+3}, 0x00020000",
                   f"s_lshl_b32 s{sOX}, s{sM0W}, 9", f"s_add_u32 s{sOX}, s{sOX}, {W6_H:#x}", f"v_lshl_add_u32 v{m+7}, v2, 7, v{m+6}"], Bgap[4] + 12, Bgap[4] + 60, win=3)
        its = check_items("PH", pollh, [f"v_cmp_ne_u32 vcc, s3, v{m}"])
        its += [Ins(f"buffer_load_dwordx4 {q4('a', MA + 4*e)}, v{m+7}, s[{sTS}:{sTS+3}], s{sOX} offen{off(e*512)} sc1", tag="HL") for e in range(6)]
        c = pstream(pl, its, Bgap[5] + 40, Bgap[5] + 80, win=3)
        assert c < Xpos[2] - 30, (c, Xpos)
        pl.put(Xpos[2] - 1, Wait(vm="HL", lgkm="W2R"))
        assert Xpos[2] + 11 < Bgap[6] - 1
        pl.stream([f"ds_write_b128 v{oW}, {q4('v', MACC)}"], Xpos[2] + 9, Xpos[2] + 10, win=1)
        c = pl.stream([Ins(f"ds_read_b32 v{m+w}, v{oW+1} offset:{w*8192}", tag="S2R") for w in range(4)], Bgap[6], Bgap[6] + 12, win=2)
        spart = [f"s_lshl_b32 s{sM1}, s{sU2}, 7", f"s_lshl_b32 s3, s{sWAVE}, 2", f"s_add_u32 s{sM1}, s{sM1}, s3", f"s_add_u32 s{sM1}, s{sM1}, {W6_YP:#x}",
                 ("pair", f"s_cmp_lt_u32 s{sU2}, 64", f"s_cselect_b32 s{sM1}, s{sM1}, {OOB:#x}")]
        c2 = pairstream(spart, Bgap[6] + 1, c + 20, win=1)
        its = [f"v_lshlrev_b32 v{m+4}, 2, v{m+6}", f"v_lshl_add_u32 v{m+4}, v2, 4, v{m+4}",
               Wait(lgkm="S2R"), f"v_add_f32 v{m}, v{m}, v{m+1}", f"v_add_f32 v{m+2}, v{m+2}, v{m+3}", f"v_add_f32 v{m}, v{m}, v{m+2}"]
        c = pl.stream(its, c + 2, c + 30, win=mw_)
        c = pl.stream([Ins(f"buffer_store_dword v{m}, v{m+4}, s[{sWS}:{sWS+3}], s{sM1} offen sc1", tag="YS"), f"v_mov_b32 v{m+8}, s{sTAG}", f"v_mov_b32 v{m+9}, {W6_YT - W6_YP}"], max(c, c2) + 1, max(c, c2) + 20, win=mw_)
        c = pairstream([("pair", f"s_cmp_eq_u32 s{sWAVE}, 0", f"s_cselect_b32 s{sM1}, s{sM1}, {OOB:#x}")], c + 1, c + 10)
        assert c < Bgap[7] - 4
        pl.put(Bgap[7] - 2, Wait(vm="YS"))
        pl.stream([f"buffer_store_dword v{m+8}, v{m+9}, s[{sWS}:{sWS+3}], s{sM1} offen sc1"], Bgap[7], Bgap[7] + 8, win=2)
    else:
        pl.stream([f"s_mov_b32 s{sK1}, 0", f"s_mov_b32 s{sK2}, 0"], NQ, NQ + 40)
    def ofin_body(qb, t, usepk, tag):
        ops = []
        for s in range(4):
            a0, a1 = acc(2*s, qb), acc(2*s+1, qb)
            if usepk: ops += [f"v_pk_mul_f32 {q2('v', a)}, {q2('v', a)}, {q2('v', t)}" for a in (a0, a0+2, a1, a1+2)]
            else: ops += [f"v_mul_f32 v{a0+n}, v{a0+n}, v{t}" for n in range(4)] + [f"v_mul_f32 v{a1+n}, v{a1+n}, v{t}" for n in range(4)]
            ops += [f"v_cvt_pk_bf16_f32 v{a0}, v{a0}, v{a0+1}", f"v_cvt_pk_bf16_f32 v{a0+1}, v{a0+2}, v{a0+3}",
                    f"v_cvt_pk_bf16_f32 v{a0+2}, v{a1}, v{a1+1}", f"v_cvt_pk_bf16_f32 v{a0+3}, v{a1+2}, v{a1+3}"]
            st = f"buffer_store_dwordx4 {q4('v', a0)}, v{oL}, s[{sWS}:{sWS+3}], s{sST} offen{off(s*1024)}{LO}"
            ops += ([f"s_add_u32 s{sST}, s{sOO}, {qb*4096}"] if s == 0 else []) + [Ins(st, tag=tag) if tag else unc(st)]
        return ops
    ocur = 0
    pl.put(Bgap[7] - 8, f"v_mov_b32 v31, {f32(2.0**-24) if force_slow else f32(2.0**24):#x}")
    for qb in range(4):
        i = lastunit[qb]
        t = MT + 2 * qb
        usepk = pk and qb == 3
        ops = [f"v_cmp_nle_f32 s[{sC2}:{sC2+1}], v{LS+4*qb}, v31", f"v_rcp_f32 v{t}, v{LS+4*qb}"] + ([f"v_mov_b32 v{t+1}, v{t}"] if usepk else [])
        ops += [f"s_or_b64 s[{sBAD}:{sBAD+1}], s[{sBAD}:{sBAD+1}], s[{sC2}:{sC2+1}]"]
        c = pl.stream(ops, min(LAST, PVpos[i] + 4), min(LAST, PVpos[i] + 9), win=1)
        lo = min(LAST, max(ocur, PVpos[i] + 8 + 3, c))
        hi = min(LAST, lo + 17 * tailq - 4)
        ocur = pl.stream(ofin_body(qb, t, usepk, "OST"), lo, hi, spread=True, win=2)
    for nm, gp in (("q1", 0), ("qhalf", G0[8]), ("qend", NQ - 1), ("ahalf", NQ + 512), ("aend", LAST - 1)) + tuple((f"a{n}", NQ + 136*n) for n in range(1, 8)) + tuple((f"h{n}", NQ + 68*n) for n in range(1, 16)) + tuple((f"q{n}", G0[n]) for n in range(2, 16)):
        if nm == probe: pl.put(gp, "s_sleep 64"); pl.put(gp, "s_sleep 64")
        if nm in prof:
            for x in stamp_ins(prof.index(nm)): pl.put(gp, x)
    over = pl.emit()
    print("[k15] overflow per 64 gaps:", [sum(max(0, pl.load(i)-8) for i in range(b, min(b+64, LAST))) for b in range(0, NMF, 64)])
    print(f"[k15] QA mfma={NMF} overflow_cycles={over} tail={pl.load(LAST)}")

    slow = k.label("slow"); sback = k.label("sback")
    k(f"s_cmp_lg_u64 s[{sBAD}:{sBAD+1}], 0"); k(f"s_cbranch_scc1 {slow}")
    k(f"{sback}:")
    O = ool.append
    def OI(t): ool.append(Ins(t))
    OI(f"{slow}:")
    O(loopwait())
    OI(f"s_sub_u32 s{sOKV}, s{sBKV}, s{sM0K}")
    for i in range(4):
        OI(f"s_add_u32 s3, s{sWAVE}, {i}"); OI("s_and_b32 s3, s3, 3"); OI("s_lshl_b32 s3, s3, 6")
        OI(f"v_lshlrev_b32 v{aK+i}, 8, v3"); OI(f"v_lshl_add_u32 v{aK+i}, v2, 4, v{aK+i}"); OI(f"v_add_u32 v{aK+i}, s3, v{aK+i}")
    OI(f"v_lshl_add_u32 v{aV}, v2, 2, v29"); OI(f"v_lshlrev_b32 v{aV}, 8, v{aV}"); OI(f"v_lshl_add_u32 v{aV}, v30, 3, v{aV}"); OI(f"v_add_u32 v{aV}, s{sM0O}, v{aV}"); OI(f"v_add_u32 v{aV}, {zslot(0)}, v{aV}")
    for qb in range(4): OI(f"v_mov_b32 v{MT+qb}, 0xff800000")
    SS = (32, 40, 96, 112)
    def kload():
        for kb2 in range(2):
            OI(f"s_add_u32 s3, s{sT}, {kb2*4096}")
            for i in range(4): O(unc(f"buffer_load_dwordx4 {q4('a', KB[0] + (kb2*4+i)*4)}, v{aK+i}, s[{sK}:{sK+3}], s3 offen"))
    def smfma(useNM):
        for qb in range(4):
            for kb2 in range(2):
                d = SS[qb] + kb2*4
                for s in range(4):
                    c = q4('v', d) if s else (q4('v', NM + 4*qb) if useNM else "0")
                    OI(f"{MF} {q4('v', d)}, {q4('a', KB[0] + (kb2*4+s)*4)}, {q4('a', QF + (qb*4+s)*4)}, {c}")
        OI("s_nop 7")
    l1 = k.label("sl1"); l2 = k.label("sl2")
    OI(f"s_mov_b32 s{sT}, s{sOKV}"); OI(f"s_mov_b32 s{sM1}, 0")
    OI(f"{l1}:")
    kload(); O(loopwait()); smfma(False)
    for qb in range(4):
        b = SS[qb]
        for n in range(0, 8, 2): OI(f"v_max3_f32 v{MT+qb}, v{MT+qb}, v{b+n}, v{b+n+1}")
    OI(f"s_add_u32 s{sT}, s{sT}, 8192"); OI(f"s_add_u32 s{sM1}, s{sM1}, 1"); OI(f"s_cmp_lt_u32 s{sM1}, 16"); OI(f"s_cbranch_scc1 {l1}")
    for qb in range(4):
        t = MT + qb
        for sw in ("v_permlane32_swap_b32", "v_permlane16_swap_b32"):
            OI(f"v_mov_b32 v{MT+4}, v{t}"); OI(f"{sw} v{t}, v{MT+4}"); OI(f"v_max_f32 v{t}, v{t}, v{MT+4}")
        for n in range(4): OI(f"v_sub_f32 v{NM+4*qb+n}, 0, v{t}")
    for n in range(16): OI(f"v_mov_b32 v{LS+n}, 0")
    for n in range(128): OI(f"v_mov_b32 v{ACC+n}, 0")
    OI(f"s_mov_b32 s{sT}, s{sOKV}"); OI(f"s_mov_b32 s{sM1}, 0")
    OI(f"{l2}:")
    kload()
    for hf in range(2):
        OI(f"s_add_u32 m0, s{sM0O}, {zslot(0) + hf*4096}"); OI(f"s_add_u32 s3, s{sT}, {hf*4096}")
        for i in range(4): O(unc(f"buffer_load_dwordx4 v{oL}, s[{sV}:{sV+3}], s3 offen{off(i*1024)} lds"))
    O(loopwait())
    for T in range(8):
        for u in range(2): OI(f"ds_read_b64_tr_b16 {q2('a', VB[0] + T*4 + u*2)}, v{aV} offset:{u*4096 + T*32}")
        if T == 3: OI("s_waitcnt lgkmcnt(0)")
    smfma(True)
    for qb in range(4):
        b = SS[qb]
        for n in range(8): OI(f"v_exp_f32 v{b+n}, v{b+n}")
        for n in range(4): OI(f"v_cvt_pk_bf16_f32 v{P+4*qb+n}, v{b+2*n}, v{b+2*n+1}")
    OI("s_waitcnt lgkmcnt(0)"); OI("s_nop 1")
    for qb in range(4):
        for T in range(8): OI(f"{MF} {q4('v', acc(T, qb))}, {q4('a', VB[0] + T*4)}, {q4('v', P + 4*qb)}, {q4('v', acc(T, qb))}")
        OI(f"{MF} {q4('v', LS + 4*qb)}, {q4('v', ONES)}, {q4('v', P + 4*qb)}, {q4('v', LS + 4*qb)}")
    OI(f"s_add_u32 s{sT}, s{sT}, 8192"); OI(f"s_add_u32 s{sM1}, s{sM1}, 1"); OI(f"s_cmp_lt_u32 s{sM1}, 16"); OI(f"s_cbranch_scc1 {l2}")
    OI("s_nop 7")
    for qb in range(4):
        t = MT + 2*qb
        for x in [f"v_rcp_f32 v{t}, v{LS+4*qb}"] + ofin_body(qb, t, False, None): ool.append(x if isinstance(x, Ins) else Ins(x))
    OI(f"s_sub_u32 s{sRW}, s{sRW}, {nwo*32768}"); OI(f"s_and_b32 s{sRW}, s{sRW}, 0xf8000"); OI(f"s_or_b32 s{sOWO}, s{sRW}, s{sBWO}")
    for gi in range(2):
        for n, x in enumerate(WO(gi, tag=False)):
            ool.append(x if isinstance(x, Ins) else Ins(x))
            if n == 0: OI("s_nop 0")
    OI(f"s_add_u32 s{sRW}, s{sRW}, {(nwo-2)*32768}"); OI(f"s_and_b32 s{sRW}, s{sRW}, 0xf8000"); OI(f"s_or_b32 s{sOWO}, s{sRW}, s{sBWO}")
    O(loopwait())
    OI(f"s_branch {sback}")

    sFL, sRO, sBOL, sOOL, sQX, sXB, sXF, sXD, sPB = sROT, sBX, sOX, sKR, sBW, sM0W, sBKV, sOKV, sOO
    aT = 96; aB = 7; oL2 = 10; aS = 4
    XR, GF, XF, PR, YF, SR = 136, 144, 160, 176, 224, 128
    GT = 176
    if yuni: YF = 192; GT = 128
    e1, e2, e3 = sK, sK + 1, sK + 2
    def emit_check(items):
        for x in items:
            if isinstance(x, tuple): k(x[1]); k(x[2])
            else: k(x)
    sKH, sWP = sK + 3, sDBG
    k(f"s_lshr_b32 s{sKH}, s{sWAVE}, 1"); k(f"s_lshl_b32 s3, s{sKH}, 2")
    k("v_lshl_add_u32 v16, v2, 2, v29")
    k("v_bfe_u32 v17, v16, 1, 2"); k("v_lshlrev_b32 v17, 1, v17"); k("v_xor_b32 v17, v17, v30"); k("v_xor_b32 v17, s3, v17")
    k("v_lshlrev_b32 v18, 7, v16"); k(f"v_add_u32 v18, s{sM0O}, v18")
    k(f"v_lshl_add_u32 v{aT}, v17, 4, v18"); k("v_xor_b32 v17, 4, v17"); k(f"v_lshl_add_u32 v{aT+1}, v17, 4, v18")
    for i in range(2): k(f"v_add_u32 v{aT+2+i}, 0x10000, v{aT+i}"); k(f"v_add_u32 v{aT+4+i}, 0x20000, v{aT+i}")
    def treads(gi):
        a = wslot(gi)
        return [Ins(f"ds_read_b64_tr_b16 {q2('a', gi*16 + (i*2+t)*4 + u*2)}, v{aT + 2*(a >> 16) + i} offset:{(a & 0xffff) + u*2048 + t*8}", tag=f"T{gi}")
                for i in range(2) for t in range(2) for u in range(2)]
    st_('tail')
    nxt = nwo
    k.wait(vm="WO4")
    for gi in range(5):
        for x in treads(gi): k(x)
    es = [f"s_lshr_b32 s{e1}, s{sKSL}, 1", f"s_lshl_b32 s{e2}, s{sRT}, 1", f"s_add_u32 s{e1}, s{e1}, s{e2}",
          f"s_and_b32 s{e2}, s{sKSL}, 1", f"s_lshl_b32 s{e2}, s{e2}, 1",
          f"s_lshl_b32 s{e3}, s{e1}, 2", f"s_add_u32 s{e3}, s{e3}, s{e2}", f"s_lshl_b32 s{e3}, s{e3}, 4",
          f"s_and_b32 s{sV}, s{sK1}, 0xffff", f"s_sub_u32 s{sV}, 0xffff, s{sV}", f"s_and_b32 s{sV+1}, s{sK2}, 0xffff", f"s_sub_u32 s{sV+1}, 0xffff, s{sV+1}",
          f"s_sub_u32 s{sV}, s{sV}, s{e3}", f"s_sub_u32 s{sV+1}, s{sV+1}, s{e3}",
          f"s_lshl_b32 s{sST}, s{e3}, 4", f"s_add_u32 s{sST}, s{sST}, {W6_STAT:#x}",
          f"s_and_b32 s{e2}, s{sBWO}, 0x3ff", f"s_lshl_b32 s{e1}, s{sKH}, 6", f"s_add_u32 s{e2}, s{e2}, s{e1}",
          f"s_lshl_b32 s{e3}, s{e3}, 10", f"s_add_u32 s{e3}, s{e3}, s{e2}",
          f"s_lshl_b32 s{e2}, s{e2}, 2", f"s_add_u32 s{sM1}, s{e2}, {W6_YT:#x}", f"s_add_u32 s{e2}, s{e2}, {W6_YP:#x}", f"s_add_u32 s{sV+2}, s{e2}, 4096", f"s_add_u32 s{sV+3}, s{e2}, 8192"]
    for x in es: k(x)
    k(f"s_min_u32 s{sC2}, s{sV}, s{sV+1}"); k(f"s_cmp_lt_u32 s{sC2}, 32"); k(f"s_cselect_b32 s{sM1}, s{sM1}, {OOB:#x}")
    for x in ["v_lshlrev_b32 v24, 10, v3", "v_lshl_add_u32 v24, v2, 4, v24", f"v_add_u32 v24, s{e3}, v24", "v_add_u32 v25, 16384, v24", "v_lshlrev_b32 v6, 4, v3",
              "v_lshrrev_b32 v13, 1, v1", "v_min_u32 v13, 1, v13", "v_lshlrev_b32 v13, 12, v13", "v_and_b32 v27, 1, v1", "v_lshl_add_u32 v13, v27, 7, v13"]: k(x)
    polly = f"buffer_load_dword v12, v13, s[{sWS}:{sWS+3}], s{sM1} offen sc1"
    small = {"p": [Ins(polly, tag="PY")],
             "s": [Ins(f"buffer_load_dword v{SR}, v6, s[{sWS}:{sWS+3}], s{sST} offen sc1", tag="E"), Ins(f"buffer_load_dword v{SR+1}, v6, s[{sWS}:{sWS+3}], s{sST} offen offset:256 sc1", tag="E")],
             "x": [Ins(f"buffer_load_dwordx4 {q4('v', XR)}, v24, s[{sX}:{sX+3}], 0 offen", tag="E"), Ins(f"buffer_load_dwordx4 {q4('v', XR+4)}, v25, s[{sX}:{sX+3}], 0 offen", tag="E")]}
    late_small = []
    for key, its_ in small.items():
        if key in smlate: late_small += its_
        else:
            for x in its_: k(x)
    k.wait(lgkm=0)
    while nxt < nwo + n1:
        for x in WO(nxt): k(x)
        nxt += 1
    if nwo > 5:
        k.wait(vm=f"WO{nwo-1}")
        for gi in range(5, nwo):
            for x in treads(gi): k(x)
    k(f"s_lshl_b32 s3, s{sKH}, 14"); k(f"v_add_u32 v{aB}, s3, v{oL}"); k(f"v_add_u32 v{aB+1}, 0x10000, v{aB}"); k(f"v_add_u32 v{aB+2}, 0x20000, v{aB}"); k(f"v_add_u32 v{oL2}, 2048, v{oL}")
    k(f"s_add_u32 s3, s{sM0O}, {zslot(5)}"); k(f"v_add_u32 v{aS}, s3, v{oL}"); k(f"v_xor_b32 v{aS+1}, 0x4000, v{aS}")
    k("v_and_b32 v21, 7, v1"); k("v_lshlrev_b32 v21, 7, v21")
    k(f"s_lshl_b32 s3, s{sQT}, 12"); k(f"s_lshl_b32 s{sT}, s{sH}, 7"); k(f"s_add_u32 s3, s3, s{sT}"); k(f"s_add_u32 s3, s3, {W6_OF:#x}")
    k(f"s_cmp_eq_u32 s{sWAVE}, 0"); k(f"s_cselect_b32 s3, s3, {OOB:#x}")
    k(f"v_mov_b32 v23, s{sTAG}"); k("v_mov_b32 v20, 0")
    st_('w2iss')
    k.wait(vm="OST", lgkm=0)
    st_('ost')
    k("s_barrier")
    k(f"buffer_store_dword v23, v20, s[{sWS}:{sWS+3}], s3 offen{LO}")
    st_('pub')
    k(f"s_lshr_b32 s{sFL}, s{sRT}, 1"); k(f"s_lshl_b32 s{sFL}, s{sFL}, 12"); k(f"s_lshl_b32 s{sT}, s{sKSL}, 10"); k(f"s_add_u32 s{sFL}, s{sFL}, s{sT}"); k(f"s_add_u32 s{sFL}, s{sFL}, {W6_OF:#x}")
    if poll1:
        k(f"s_cmp_eq_u32 s{sWAVE}, 0"); k(f"s_cselect_b32 s{sFL}, s{sFL}, {OOB:#x}"); k(f"s_cselect_b32 s{sC2+1}, s{sTAG}, 0")
    pollo = f"buffer_load_dword v22, v21, s[{sWS}:{sWS+3}], s{sFL} offen sc1"
    ev = ["v_lshrrev_b32 v27, 1, v2", "v_lshlrev_b32 v27, 7, v27", "v_and_b32 v26, 1, v2", "v_lshl_add_u32 v27, v26, 5, v27", "v_mov_b32 v11, 64"]
    for n, sk in enumerate((sK1, sK2)):
        r = 16 + n
        ev += [f"v_mov_b32 v{r}, s{sk}", f"v_ashrrev_i32 v26, 31, v{r}", "v_not_b32 v26, v26", "v_or_b32 v26, 0x80000000, v26", f"v_xor_b32 v{r}, v{r}, v26", f"v_and_b32 v{r}, 0xffff0000, v{r}",
               f"v_mul_f32 v{r}, 0xbfb8aa3b, v{r}", f"v_exp_f32 v{r}, v{r}", f"v_add_f32 v{r}, 1.0, v{r}", f"v_rcp_f32 v{r}, v{r}", f"v_cvt_pk_bf16_f32 v{r}, v{r}, v{r}", f"v_lshlrev_b32 v{r}, 16, v{r}"]
    for b in range(2):
        ev += [f"v_add_u32 v26, {16*b}, v3", f"v_mov_b32 v31, {OOB:#x}", f"v_cmp_eq_u32 vcc, s{sV}, v26", "v_cndmask_b32 v31, v31, 0, vcc",
               f"v_cmp_eq_u32 vcc, s{sV+1}, v26", "v_cndmask_b32 v31, v31, v11, vcc", f"v_cndmask_b32 v{14+b}, v16, v17, vcc", f"v_add_u32 v{18+b}, v31, v27"]
    ex = [Wait(vm="E")]
    for b in range(2): ex += [f"v_and_b32 v{SR+2+b}, 0xffff0000, v{SR+b}", f"v_rcp_f32 v{SR+2+b}, v{SR+2+b}", f"v_lshlrev_b32 v{SR+b}, 16, v{SR+b}"]
    for i in range(8):
        a, b_, bb = GF + 2*i, GF + 2*i + 1, i >> 2
        ex += [f"v_lshlrev_b32 v{XF+2*i}, 16, v{XR+i}", f"v_and_b32 v{XF+2*i+1}, 0xffff0000, v{XR+i}",
               f"v_sub_f32 v{a}, v{XF+2*i}, v{SR+bb}", f"v_sub_f32 v{b_}, v{XF+2*i+1}, v{SR+bb}", f"v_cvt_pk_bf16_f32 v29, v{a}, v{b_}",
               f"v_lshlrev_b32 v{a}, 16, v29", f"v_and_b32 v{b_}, 0xffff0000, v29", f"v_mul_f32 v{a}, v{a}, v{SR+2+bb}", f"v_mul_f32 v{b_}, v{b_}, v{SR+2+bb}",
               f"v_cvt_pk_bf16_f32 v29, v{a}, v{b_}", f"v_lshlrev_b32 v{a}, 16, v29", f"v_and_b32 v{b_}, 0xffff0000, v29"]
    def mix(vm_items, valu_items):
        nv_ = max(1, sum(1 for x in vm_items if isinstance(x, Ins) and x.kind == "vmem")); per = (len(valu_items) + nv_ - 1) // nv_
        vi = 0
        for x in vm_items:
            k(x)
            if isinstance(x, Ins) and x.kind == "vmem":
                for y in valu_items[vi:vi+per]: k(y)
                vi += per
        for y in valu_items[vi:]: k(y)
    rest = []
    while nxt < 16:
        if nxt == pollat and not spec: rest.append(Ins(F1(pollo, "o"), tag="POLL"))
        rest += WO(nxt); nxt += 1
    if (pollat >= 16 or pollat < nwo + n1) and not spec: rest.append(Ins(F1(pollo, "o"), tag="POLL"))
    mix(rest, ([f"v_mov_b32 v{PR+n}, 0" for n in range(32)] if yuni else []) + ev + (ex if not exlate else []))
    st_('mix')
    k(f"s_lshl_b32 s{sT}, s{sCT}, 1"); k(f"s_add_u32 s{sT}, s{sT}, s{sRT}"); k(f"s_mul_i32 s{sT}, s{sT}, {orot}"); k(f"s_and_b32 s{sT}, s{sT}, 7")
    k(f"s_lshl_b32 s{sRO}, s{sKH}, 2"); k(f"s_add_u32 s{sRO}, s{sRO}, s{sT}")
    k(f"s_mul_i32 s{sOW}, s{sRT}, 66"); k(f"s_lshl_b32 s{sT}, s{sKSL}, 3"); k(f"s_add_u32 s{sOW}, s{sOW}, s{sT}"); k(f"s_mul_i32 s{sOW}, s{sOW}, {OSTR}")
    k(f"s_and_b32 s{sT}, s{sWAVE}, 1"); k(f"s_lshl_b32 s{sT}, s{sT}, 11"); k(f"s_add_u32 s{sOW}, s{sOW}, s{sT}"); k(f"s_add_u32 s{sOW}, s{sOW}, {WS_O:#x}")
    def quarter(j):
        return [f"s_add_u32 s{sQX}, s{sKSL}, {j+1}", f"s_and_b32 s{sQX}, s{sQX}, 3", f"s_lshr_b32 s{sBOL}, s{sQX}, 1", f"s_mul_i32 s{sBOL}, s{sBOL}, {33*OSTR}", f"s_add_u32 s{sBOL}, s{sBOL}, s{sOW}",
                f"s_and_b32 s{sQX}, s{sQX}, 1", f"s_lshl_b32 s{sQX}, s{sQX}, 13", f"s_add_u32 s{sBOL}, s{sBOL}, s{sQX}"]
    CZ = [6, 7, 8, 9, 0, 1, 2, 3, 4]
    def cslot(c): return zslot(CZ[c % 9])
    def OCa(c):
        so = (sOOL, sRW)[c & 1]
        return (quarter(c >> 2) if c % 4 == 0 else []) + [f"s_add_u32 s{so}, s{sRO}, {c & 3}", f"s_and_b32 s{so}, s{so}, 7", f"s_mul_i32 s{so}, s{so}, {OSTR}", f"s_add_u32 s{so}, s{so}, s{sBOL}"]
    def OCd(c):
        so = (sOOL, sRW)[c & 1]
        return [f"s_add_u32 m0, s{sM0O}, {cslot(c)}"] + [Ins(f"buffer_load_dwordx4 v{(oL, oL2)[b]}, s[{sWS}:{sWS+3}], s{so} offen{off(b*2048 + a*1024)}{LL} lds", tag=f"OC{c}") for b in range(2) for a in range(2)]
    def OC(c): return OCa(c) + OCd(c)
    def ybranch():
        noy = k.label("noy")
        k(f"s_cmp_ge_u32 s{sC2}, 32"); k(f"s_cbranch_scc1 {noy}")
        emit_check(check_items("PY", polly, [f"v_cmp_ne_u32 vcc, s{sTAG}, v12"]))
        for so, base in ((e2, YF), (sV+2, PR)):
            for b in range(2):
                for h in range(2): k(unc(f"buffer_load_dwordx4 {q4('v', base + b*8 + h*4)}, v{18+b}, s[{sWS}:{sWS+3}], s{so} offen{off(h*16)} sc1"))
        k(f"{noy}:")
    yops = [f"v_add_f32 v{YF+i}, v{YF+i}, v{PR+i}" for i in range(16)]
    for i in range(8):
        a, b, t, u = GF + 2*i, GF + 2*i + 1, YF + 2*i, YF + 2*i + 1
        rs = 14 + (i >> 2)
        yops += [f"v_cvt_pk_bf16_f32 v29, v{t}, v{u}", f"v_lshlrev_b32 v{t}, 16, v29", f"v_and_b32 v{u}, 0xffff0000, v29",
                 f"v_mul_f32 v{t}, v{t}, v{rs}", f"v_mul_f32 v{u}, v{u}, v{rs}", f"v_cvt_pk_bf16_f32 v29, v{t}, v{u}", f"v_lshlrev_b32 v{t}, 16, v29", f"v_and_b32 v{u}, 0xffff0000, v29",
                 f"v_add_f32 v{a}, v{a}, v{t}", f"v_add_f32 v{b}, v{b}, v{u}", f"v_cvt_pk_bf16_f32 v29, v{a}, v{b}", f"v_lshlrev_b32 v{a}, 16, v29", f"v_and_b32 v{b}, 0xffff0000, v29"]
    def ybranch2():
        if yuni: return
        noy = k.label("noy")
        k(f"s_cmp_ge_u32 s{sC2}, 32"); k(f"s_cbranch_scc1 {noy}")
        for x in yops: k(x)
        k(f"{noy}:")
    ybranch()
    st_('w3iss')
    if spec:
        assert nwo == 10 and not poll1 and not late_small and not exlate
        for x in OCa(0) + OCa(1): k(x)
        lp_ = k.label("sp"); ok_ = k.label("spok")
        k(f"s_mov_b32 s{sCMP}, 0")
        k(f"{lp_}:")
        k(pollo, tag="POLL2")
        for c in range(spec):
            for x in OCd(c): k(x)
        k.wait(vm="POLL2")
        k(f"v_cmp_ne_u32 vcc, s{sTAG}, v22"); k(f"s_add_u32 s{sCMP}, s{sCMP}, 1"); k(f"s_cbranch_vccz {ok_}")
        k(f"s_cmp_lt_u32 s{sCMP}, 0x40000"); k(f"s_cbranch_scc1 {lp_}")
        k(f"{ok_}:")
        st_('go')
        for c in range(spec, 4):
            for x in (OCa(c) if c >= 2 else []) + OCd(c): k(x)
    else:
        emit_check(check_items("POLL", pollo, [f"v_cmp_ne_u32 vcc, s{sC2+1 if poll1 else sTAG}, v22"]))
        if poll1: k("s_barrier")
        st_('go')
        if nwo < 10:
            k.wait(vm="WO9")
            for gi in range(nwo, 10):
                for x in treads(gi): k(x)
            k.wait(lgkm=0)
        if late_small:
            for x in OC(0) + OC(1) + late_small + OC(2) + OC(3): k(x)
        else: mix(sum((OC(c) for c in range(4)), []), ex if exlate else [])
    k.wait(vm="WO15")
    for gi in range(10, 16):
        for x in treads(gi): k(x)
    if late_small:
        for x in ex: k(x)
    k("s_waitcnt vmcnt(16)")
    assert not late_small
    ybranch2()
    for x in OCa(4): k(x)
    st_('oiss')
    ACO = 32; BF = 216; NB = 10; XS = 112; RD = 96
    assert xbf
    def bread(f):
        c, e, b = f >> 3, (f >> 1) & 3, f & 1
        a = cslot(c) + (e >> 1) * 8192 + (e & 1) * 1024 + b * 2048
        return Ins(f"ds_read_b128 {q4('v', BF + (f % NB)*4)}, v{aB + (a >> 16)} offset:{a & 0xffff}", tag=f"B{f}")
    k.wait(vm="OC0", lgkm=0); k("s_barrier")
    st_('o0')
    AH = ah
    for f in range(AH): k(bread(f))
    k.wait(lgkm="B0")
    po = Plan(k)
    def omf(f, i, t):
        j = f >> 5; g = (f >> 1) & 15; b = f & 1
        a = ACO + (j & 1) * 32 + i * 16 + (b*2 + t) * 4
        po.mfma(f"{MF} {q4('v', a)}, {q4('a', g*16 + (i*2+t)*4)}, {q4('v', BF + (f % NB)*4)}, {q4('v', a) if g else '0'}")
    use = {}
    for c_ in range(16):
        fr = range(8*c_, 8*c_ + 8)
        if c_ % 4 == 3 and (c_ >> 2) >= gfirst:
            for i in (1, 0):
                for f in fr:
                    use.setdefault(f, len(po.mf))
                    for t in range(2): omf(f, i, t)
        else:
            for f in fr:
                use[f] = len(po.mf)
                for i in range(2):
                    for t in range(2): omf(f, i, t)
    lastuse = {f: (use[f] + 3 if not ((f >> 3) % 4 == 3 and (f >> 5) >= gfirst) else use[f] + 17) for f in range(128)}
    cover = [{1: 1, 2: 3, 4: 5, 6: 7, 8: 9, 10: 11, 12: 13, 14: 15}, {1: 1, 2: 5, 6: 9, 10: 13, 14: 15}][cov]
    bgap = {}
    for f in range(AH, 128):
        gp = use[f] - 4 * AH
        if f >= NB: gp = max(gp, lastuse[f - NB])
        if f % 8 == 0 and (f >> 3) in cover:
            c = f >> 3
            bgap[c] = gp
            if "o_nodma" not in exp or cover[c] < 4: po.put(gp - 2, Wait(vm=f"OC{cover[c]}"))
            if "o_nobar" not in exp: po.put(gp, "s_barrier")
        if 'o_nord' not in exp: po.put(gp, bread(f))
    for f in range(1, 128):
        if 'o_nord' in exp: continue
        if wstep == 1 or f % 2 == 0 or f == 1: po.put(use[f] - 1, Wait(lgkm=f"B{min(127, f + (wstep - 1) * (f % 2 == 0))}"))
    po.vgap = ovgap
    dend = {2: -1, 3: -1}; aend_ = -1
    for c in range(4, 16):
        if c > 4: aend_ = po.stream(OCa(c), max(aend_, dend[c - 2]) + 1, 500)
        lo = max(dend[c - 1], aend_) + 1
        if c >= 9: lo = max(lo, min(g for g in bgap.values() if g >= 32 * (c - 8)) + 1)
        dend[c] = po.stream(OCd(c) if 'o_nodma' not in exp else OCd(c)[:1], lo, lo + 40, win=2)
    def pair_reduce(j, gw, gb, newbar):
        ab = ACO + (j & 1) * 32
        c = po.stream([Ins(f"ds_write_b128 v{aS}, {q4('v', ab + 16 + n*4)} offset:{n*1024}", tag=f"RW{j}") for n in range(4)], gw, gw + 6, win=1)
        assert c < gb - 1
        po.put(gb - 1, Wait(lgkm=f"RW{j}"))
        if newbar and 'o_nobar' not in exp: po.put(gb, "s_barrier")
        return po.stream([Ins(f"ds_read_b128 {q4('v', RD + n*4)}, v{aS+1} offset:{n*1024}", tag=f"RR{j}") for n in range(4)], gb, gb + 6, win=1)
    c0 = po.stream([f"s_lshl_b32 s{sXB}, s{sRT}, 2", f"s_add_u32 s{sXB}, s{sXB}, s{sCT}", f"s_lshl_b32 s{sXB}, s{sXB}, 2",
                    f"s_add_u32 s{sFL}, s{sXB}, s{sKSL}", f"s_mul_i32 s{sPB}, s{sFL}, 13", f"s_add_u32 s{sPB}, s{sPB}, s{sWAVE}", f"s_mul_i32 s{sPB}, s{sPB}, {XSTR}", f"s_add_u32 s{sPB}, s{sPB}, {WS_XB:#x}",
                    f"s_add_u32 s{e1}, s{sPB}, {4*XSTR}", f"s_add_u32 s{e2}, s{sPB}, {8*XSTR}", f"s_mov_b32 s{e3}, 0",
                    f"s_mov_b32 s{sTS}, s{pOUT}", f"s_mov_b32 s{sTS+1}, s{pOUT+1}", f"s_mov_b32 s{sTS+2}, {SZ['out']:#x}", f"s_mov_b32 s{sTS+3}, 0x00020000"], 0, 90)
    def xi(n): return (n // 3) * 4 + n % 3
    for j in range(3):
        g0 = (j + 1) * 128
        its = [f"s_add_u32 s{sT}, s{sKSL}, {j+1}", f"s_and_b32 s{sT}, s{sT}, 3", f"s_add_u32 s{sT}, s{sT}, s{sXB}",
               f"s_mul_i32 s{sXD}, s{sT}, 13", f"s_add_u32 s{sXD}, s{sXD}, s{sWAVE}", f"s_mul_i32 s{sXD}, s{sXD}, {XSTR}", f"s_add_u32 s{sXD}, s{sXD}, {WS_XB + j*4*XSTR:#x}"]
        po.stream(its, g0 - 24, g0)
        ab = ACO + (j & 1) * 32
        c = pair_reduce(j, g0 - 13, g0 - 5, True) if j >= gfirst else pair_reduce(j, g0 + 4, g0 + 14 if j >= nbj else bgap[4*j + 6], j >= nbj)
        if j >= gfirst: c = max(c, g0 - 3)
        c = po.stream([Wait(lgkm=f"RR{j}")] + [f"v_add_f32 v{ab+n}, v{ab+n}, v{RD+n}" for n in range(16)] + [f"v_cvt_pk_bf16_f32 v{XS + xi(n)}, v{ab+2*n}, v{ab+2*n+1}" for n in range(8)], c + 5, c + 30)
        sts = [Ins(f"buffer_store_dwordx4 {q4('v', XS + n*4)}, v{oL}, s[{sWS}:{sWS+3}], s{sXD} offen{off(n*1024)} sc1", tag=f"XS{j}") for n in range(3)]
        c = po.stream(sts, c + 1, c + (12 if j >= nbj else 20), win=2, spread=True)
        assert c < g0 + 102
        xsend = c
    gops = [f"v_mov_b32 v{XS+n}, s{sTAG}" for n in (3, 7, 10, 11)]
    for i in range(8):
        a, b, t, u = GF + 2*i, GF + 2*i + 1, GT + 2*i, GT + 2*i + 1
        gops += [f"v_mul_f32 v{t}, 0xbfb8aa3b, v{a}", f"v_mul_f32 v{u}, 0xbfb8aa3b, v{b}", f"v_exp_f32 v{t}, v{t}", f"v_exp_f32 v{u}, v{u}",
                 f"v_add_f32 v{t}, 1.0, v{t}", f"v_add_f32 v{u}, 1.0, v{u}", f"v_rcp_f32 v{t}, v{t}", f"v_rcp_f32 v{u}, v{u}",
                 f"v_mul_f32 v{a}, v{a}, v{t}", f"v_mul_f32 v{b}, v{b}, v{u}", f"v_cvt_pk_bf16_f32 v29, v{a}, v{b}",
                 f"v_lshlrev_b32 v{a}, 16, v29", f"v_and_b32 v{b}, 0xffff0000, v29"]
    po.stream(gops[:4] + (yops if yuni else []) + gops[4:], gpos[0], gpos[1] + (110 if yuni else 0))
    pair_reduce(3, 499, 507, True)
    def ploads(j): return [f"buffer_load_dwordx4 {q4('v', PR + j*12 + n*4)}, v{oL}, s[{sWS}:{sWS+3}], s{(sPB, e1, e2)[j]} offen{off(n*1024)} sc1" for n in range(3)]
    def tagcmp(js):
        t = [PR + j*12 + n*4 + 3 for j in js for n in range(3)]
        o = [f"v_min3_u32 v29, v{t[0]}, v{t[1]}, v{t[2]}", f"v_max3_u32 v30, v{t[0]}, v{t[1]}, v{t[2]}"]
        if len(t) > 3: o += [f"v_min3_u32 v29, v29, v{t[3]}, v{t[4]}", f"v_max3_u32 v30, v30, v{t[3]}, v{t[4]}", f"v_min3_u32 v29, v29, v{t[5]}, s{sTAG}", f"v_max3_u32 v30, v30, v{t[5]}, s{sTAG}"]
        else: o += [f"v_min_u32 v29, s{sTAG}, v29", f"v_max_u32 v30, s{sTAG}, v30"]
        return o + ["v_cmp_ne_u32 vcc, v29, v30"]
    SUM = ACO + 16
    c = po.stream([Ins(t, tag="PA") for t in ploads(0) + ploads(1)], pa_at, pa_at + 34, win=2)
    its = check_items("PA", ploads(0) + ploads(1), tagcmp((0, 1)))
    for n in range(8):
        a, b = PR + xi(n), PR + 12 + xi(n)
        its += [f"v_lshlrev_b32 v{SUM+2*n}, 16, v{a}", f"v_and_b32 v{SUM+2*n+1}, 0xffff0000, v{a}", f"v_lshlrev_b32 v29, 16, v{b}", f"v_and_b32 v30, 0xffff0000, v{b}",
                f"v_add_f32 v{SUM+2*n}, v{SUM+2*n}, v29", f"v_add_f32 v{SUM+2*n+1}, v{SUM+2*n+1}, v30"]
    c = pstream(po, its, max(c + pa_chk, xsend + 2), 505)
    po.stream([Ins(t, tag="PB") for t in ploads(2)], 511 - xpoll, 511, win=1)
    for nm, gp in (("o4", 64), ("o8", 128), ("o16", 256), ("o24", 384)):
        if nm in prof:
            for x in stamp_ins(prof.index(nm)): po.put(gp, x)
    ov = po.emit()
    print("[k15] phase O overflow", ov, "tail", po.load(511))
    if "xmf" in exp:
        for n in range(512): k(f"{MF} {q4('v', ACO + (n % 4)*4)}, {q4('a', (n % 64)*4)}, {q4('v', BF + (n % NB)*4)}, {q4('v', ACO + (n % 4)*4)}")
    if "xcode" in exp:
        for n in range(1024): k("v_add3_u32 v29, v29, v29, v29")
    if "xloop" in exp:
        xl = k.label("xl")
        k("s_mov_b32 s3, 0"); k(f"{xl}:")
        for n in range(64): k("v_add3_u32 v29, v29, v29, v29")
        k("s_add_u32 s3, s3, 1"); k("s_cmp_lt_u32 s3, 16"); k(f"s_cbranch_scc1 {xl}")
    if "xsl" in exp:
        for n in range(2): k("s_sleep 64")
    st_('oend')
    OUTR = 128
    k.wait(lgkm=0)
    for n in range(16): k(f"v_add_f32 v{SUM+n}, v{SUM+n}, v{RD+n}")
    for n in range(16): k(f"v_add_f32 v{ACO+32+n}, v{ACO+32+n}, v{SUM+n}")
    emit_check(check_items("PB", ploads(2), tagcmp((2,))))
    st_('xgo')
    for b in range(2):
        a = ACO + 32 + b*8
        for m_ in range(4):
            r = PR + 24 + xi(b*4 + m_)
            k(f"v_lshlrev_b32 v29, 16, v{r}"); k(f"v_and_b32 v30, 0xffff0000, v{r}")
            k(f"v_add_f32 v{a+2*m_}, v{a+2*m_}, v29"); k(f"v_add_f32 v{a+2*m_+1}, v{a+2*m_+1}, v30")
        for t in range(2):
            n = b*2 + t
            a = ACO + 32 + n*4
            for h in range(2):
                e = b*8 + t*4 + h*2
                x0, x1 = a + 2*h, a + 2*h + 1
                k(f"v_cvt_pk_bf16_f32 v29, v{x0}, v{x1}")
                k(f"v_lshlrev_b32 v{x0}, 16, v29"); k(f"v_and_b32 v{x1}, 0xffff0000, v29")
                k(f"v_mul_f32 v{x0}, v{x0}, v{GF+e}"); k(f"v_mul_f32 v{x1}, v{x1}, v{GF+e+1}")
                k(f"v_cvt_pk_bf16_f32 v29, v{x0}, v{x1}")
                k(f"v_lshlrev_b32 v{x0}, 16, v29"); k(f"v_and_b32 v{x1}, 0xffff0000, v29")
                k(f"v_add_f32 v{x0}, v{x0}, v{XF+e}"); k(f"v_add_f32 v{x1}, v{x1}, v{XF+e+1}")
                k(f"v_cvt_pk_bf16_f32 v{OUTR + b*4 + t*2 + h}, v{x0}, v{x1}")
        k(f"buffer_store_dwordx4 {q4('v', OUTR + b*4)}, v{24+b}, s[{sTS}:{sTS+3}], 0 offen")
    if prof:
        k("s_waitcnt vmcnt(0)"); stamp(k, 7)
        if dbgout:
            k(f"s_load_dwordx2 s[{sDBG}:{sDBG+1}], s[0:1], {KA['dbg']}")
            k("s_waitcnt lgkmcnt(0)")
            k(f"s_mov_b32 s{sDBG+2}, 256"); k(f"s_mov_b32 s{sDBG+3}, 0x00020000")
            k("v_mov_b32 v1, 0"); k("s_mov_b64 exec, 1")
            k(f"s_cmp_eq_u32 s{sWAVE}, 0"); k("s_cselect_b32 s3, 0, 0x1000")
            for i in range(8):
                k(f"s_sub_u32 s{sT}, s{SB+4*i}, s{sTAG}"); k(f"s_add_u32 s{sT}, s{sT}, 1000"); k(f"v_mov_b32 v2, s{sT}")
                k(f"buffer_atomic_umax v2, v1, s[{sDBG}:{sDBG+3}], s3 offen offset:{4+4*i}"); k("s_nop 1")
        else: stamp_dump(k, 8, sWS, sWAVE, 0)
    k(f"{end}:")
    k("s_endpgm")
    k("s_waitcnt vmcnt(0) lgkmcnt(0)")
    for x in ool: k(x)
    if spin_sites: print("spin sites", spin_sites)
    return k, 512, 256
```

```python
from asmlib import *
from common import *
import k15
def warm(name, full=True):
    k = Kern(name); end = k.label("end")
    k("s_cmp_ge_u32 s2, 256"); k(f"s_cbranch_scc1 {end}")
    k("s_load_dwordx16 s[16:31], s[0:1], 0"); k("s_load_dwordx8 s[32:39], s[0:1], 64"); k("s_load_dwordx2 s[40:41], s[0:1], 96")
    k("v_lshlrev_b32 v1, 4, v0")
    k("s_waitcnt lgkmcnt(0)")
    r = 8
    def rd(ptr, size, per_wg, base="0"):
        nonlocal r
        k(f"s_mov_b32 s8, s{ptr}"); k(f"s_mov_b32 s9, s{ptr+1}"); k(f"s_mov_b32 s10, {size:#x}"); k("s_mov_b32 s11, 0x00020000")
        for i in range(per_wg // 4096 if full else 1):
            k(f"s_add_u32 s3, s12, {i*4096}")
            k(f"buffer_load_dwordx4 v[{r}:{r+3}], v1, s[8:11], s3 offen"); r += 4
    k("s_lshl_b32 s12, s2, 13"); rd(16, SZ['x'], 8192)
    k("s_lshl_b32 s12, s2, 14"); rd(22, SZ['wq'], 16384); rd(24, SZ['wo'], 16384)
    k("s_lshr_b32 s12, s2, 3"); k("s_lshl_b32 s12, s12, 19"); k("s_and_b32 s3, s2, 7"); k("s_lshl_b32 s3, s3, 14"); k("s_add_u32 s12, s12, s3"); k(f"s_add_u32 s12, s12, {1536*256}")
    rd(18, SZ['k'], 16384); rd(20, SZ['v'], 16384)
    k("s_lshl_b32 s12, s2, 13"); rd(30, SZ['wg'], 8192); rd(32, SZ['wu'], 8192); rd(34, SZ['wd'], 8192)
    k("s_waitcnt vmcnt(0)")
    k(f"{end}:"); k("s_endpgm")
    return k, 128, 128
def build(path, seq):
    kn = NAME + "_kernel"
    km = k15.gen_k15(kn); kw = warm("warm_kernel"); kt = warm("touch_kernel", False); kz = Kern("nop_kernel"); kz("s_endpgm")
    hdr = open(f"cdna_kernels/{NAME}.s.ref").read().split("; Override launch")[0]
    L = {"m": f"; @launch kernel={kn} grid=(256,1,1) block=(256,1,1) lds=163840", "w": "; @launch kernel=warm_kernel grid=(256,1,1) block=(256,1,1) lds=0",
         "t": "; @launch kernel=touch_kernel grid=(256,1,1) block=(256,1,1) lds=0", "n": "; @launch kernel=nop_kernel grid=(256,1,1) block=(256,1,1) lds=0"}
    out = [hdr.rstrip("\n")] + [L[c] for c in seq] + ['.amdgcn_target "amdgcn-amd-amdhsa--gfx950"', ".text"]
    ks = [km, kw, kt, (kz, 8, 8)]
    for k, nfv, acc in ks:
        fix_hazards(k); k.resolve(); out.append(kernel_text(k, nfv, acc))
    out.append('.section .rodata,"a"')
    for k, nfv, acc in ks: out.append(desc_text(k.name, nfv, acc))
    open(path, "w").write("\n".join(out).replace(kn + "_", "L_"))
for seq in ("m", "nm", "wm", "wwm", "tm", "mw"): build(f"l{seq}.s", seq)
```
